```python
import torch

def _softmax(x, axis=-1):
    return torch.softmax(x, dim=axis)
def _gelu(x):
    return torch.nn.functional.gelu(x, approximate="tanh")
def _silu(x):
    return torch.nn.functional.silu(x)
def _sigmoid(x):
    return torch.sigmoid(x)
def _layernorm(x, axis=-1, eps=1e-5):
    m = x.mean(dim=axis, keepdim=True)
    v = x.var(dim=axis, keepdim=True, unbiased=False)
    return (x - m) / torch.sqrt(v + eps)
def _scatter_add(tgt, idx, src, axis=0):
    return tgt.clone().index_add_(axis, idx, src)
def _segment_sum(src, seg, n):
    out = torch.zeros((n,) + src.shape[1:], dtype=src.dtype)
    return out.index_add_(0, seg, src)
def _pad(x, pw):
    flat = tuple(v for pair in reversed(pw) for v in pair)
    return torch.nn.functional.pad(x, flat)

kernel_name = 'sequential_preLN__ssm_conv_h3__geglu_ffn__prompt'

def setup_inputs():

    _w = (lambda a: (lambda t: t.to(torch.bfloat16) if t.is_floating_point() else t)(torch.as_tensor(a)))
    def _A_setup():
        B, S, D = 1, 2048, 640
        ks = 4
        return {
            "q": _w((lambda *s: torch.randn(*s, dtype=torch.bfloat16) * 0.05)(B, S, D)),
            "k": _w((lambda *s: torch.randn(*s, dtype=torch.bfloat16) * 0.4)(B, S, D)),
            "v": _w((lambda *s: torch.randn(*s, dtype=torch.bfloat16) * 0.4)(B, S, D)),
            "shift_k": _w((lambda *s: torch.randn(*s, dtype=torch.bfloat16) * 0.4)(D, ks) * 0.5),
            "ssm_k": _w((lambda *s: torch.randn(*s, dtype=torch.bfloat16) * 0.4)(D, S) * (1.0 / S ** 0.5)),
            "ssm_D": _w((lambda *s: torch.randn(*s, dtype=torch.bfloat16) * 0.4)(D)),
        }
    _A_in = _A_setup()

    def _B_setup():
        B, S, D, F = 1, 2048, 640, 1536
        return {
            "x": _w((lambda *s: torch.randn(*s, dtype=torch.bfloat16) * 0.05)(B, S, D)),
            "w_gate": _w((lambda *s: torch.randn(*s, dtype=torch.bfloat16) * 0.05)(D, F)),
            "w_up": _w((lambda *s: torch.randn(*s, dtype=torch.bfloat16) * 0.05)(D, F)),
            "w_down": _w((lambda *s: torch.randn(*s, dtype=torch.bfloat16) * 0.05)(F, D)),
        }
    _B_in = _B_setup()

    return {
        "A_q": _A_in["q"],
        "A_k": _A_in["k"],
        "A_v": _A_in["v"],
        "A_shift_k": _A_in["shift_k"],
        "A_ssm_k": _A_in["ssm_k"],
        "A_ssm_D": _A_in["ssm_D"],
        "B_x": _B_in["x"],
        "B_w_gate": _B_in["w_gate"],
        "B_w_up": _B_in["w_up"],
        "B_w_down": _B_in["w_down"],
    }

def reference(A_q, A_k, A_v, A_shift_k, A_ssm_k, A_ssm_D, B_x, B_w_gate, B_w_up, B_w_down):
    def _A_ref(q, k, v, shift_k, ssm_k, ssm_D):
        B, S, D = q.shape
        ks = shift_k.shape[-1]
        k_pad = _pad(k, ((0, 0), (ks - 1, 0), (0, 0)))
        k_shift = torch.zeros_like(k)
        for t in range(ks):
            k_shift = k_shift + k_pad[:, t:t + S, :] * shift_k[:, ks - 1 - t][None, None, :]
        kv = k_shift * v
        L = 2 * S
        kv_pad = _pad(kv, ((0, 0), (0, S), (0, 0)))
        kf_pad = _pad(ssm_k, ((0, 0), (0, S)))
        kv_f = (lambda x, axes=(-2,-1): torch.fft.rfft2(x.float(), dim=axes))(kv_pad[:, None, :, :], axes=(1, 2))
        kf_f = (lambda x, axes=(-2,-1): torch.fft.rfft2(x.float(), dim=axes))(kf_pad[:, None, :], axes=(1, 2))
        kf_f = (lambda x, *d: x.permute(*d))(kf_f, 1, 2, 0)
        y_f = kv_f * kf_f[None, :, :, :]
        y = (lambda x, s, axes=(-2,-1): torch.fft.irfft2(x, s=s, dim=axes).to(torch.bfloat16))(y_f, (1, L), axes=(1, 2))[:, 0, :S, :]
        y = y + kv * ssm_D[None, None, :]
        return q * y

    def _B_ref(x, w_gate, w_up, w_down):
        return (_gelu(x @ w_gate) * (x @ w_up)) @ w_down

    x = A_q
    h = x + _A_ref(_layernorm(x, axis=-1), A_k, A_v, A_shift_k, A_ssm_k, A_ssm_D)
    h2 = h + _B_ref(_layernorm(h, axis=-1), B_w_gate, B_w_up, B_w_down)
    return h2
```

```python
import re

class Op:
    __slots__ = ("text", "kind", "tag")
    def __init__(self, text, kind="x", tag=None):
        self.text = text; self.kind = kind; self.tag = tag
    def __repr__(self): return f"Op({self.kind},{self.text},{self.tag})"

class S(list):
    def i(self, text):
        for t in text.strip().split("\n"):
            t = t.strip()
            if t: self.append(Op(t))
        return self
    def vm(self, text, tag=None): self.append(Op(text, "vm", tag)); return self
    def lg(self, text, tag=None): self.append(Op(text, "lg", tag)); return self
    def wvm(self, tag): self.append(Op("", "wvm", tag)); return self
    def wlg(self, tag): self.append(Op("", "wlg", tag)); return self
    def wvm0(self): self.append(Op("s_waitcnt vmcnt(0)", "wvm0")); return self
    def wlg0(self): self.append(Op("s_waitcnt lgkmcnt(0)", "wlg0")); return self
    def label(self, name): self.append(Op(name + ":", "label")); return self
    def cmt(self, text): self.append(Op("; " + text, "cmt")); return self
    def add(self, other): self.extend(other); return self

def group(*ops):
    g = S()
    for o in ops:
        if isinstance(o, list): g.extend(o)
        else: g.append(o)
    return g

def weave(main, fill, start=0, end=None, per=None):
    n = len(main)
    if end is None: end = n
    out = S(); j = 0; m = len(fill); span = end - start
    for k, x in enumerate(main):
        out.extend(x if isinstance(x, list) else [x])
        if start <= k < end:
            tgt = m if k == end - 1 else ((k - start + 1) * m + span - 1) // span if per is None else min(m, (k - start + 1) * per)
            while j < tgt:
                f = fill[j]; out.extend(f if isinstance(f, list) else [f]); j += 1
    assert j == m
    return out

def resolve(ops, vm_state=None):
    vm = list(vm_state or []); lg = []
    vm_done = 0; lg_done = 0
    out = []
    for o in ops:
        if o.kind == "vm": vm.append(o.tag); out.append(o.text)
        elif o.kind == "lg": lg.append(o.tag); out.append(o.text)
        elif o.kind == "wvm0": vm_done = len(vm); out.append(o.text)
        elif o.kind == "wlg0": lg_done = len(lg); out.append(o.text)
        elif o.kind in ("wvm", "wlg"):
            q = vm if o.kind == "wvm" else lg
            tags = o.tag if isinstance(o.tag, list) else [o.tag]
            idx = -1
            for tg in tags:
                cand = [k for k, t in enumerate(q) if t == tg]
                assert cand, f"wait on unknown tag {tg}"
                idx = max(idx, cand[-1])
            done = vm_done if o.kind == "wvm" else lg_done
            if idx < done: continue
            n = len(q) - 1 - idx
            mx = 63 if o.kind == "wvm" else 15
            n = min(n, mx)
            if o.kind == "wvm": vm_done = len(q) - n; out.append(f"s_waitcnt vmcnt({n})")
            else: lg_done = len(q) - n; out.append(f"s_waitcnt lgkmcnt({n})")
        else: out.append(o.text)
    res = []
    for t in out:
        if res and t.startswith("s_waitcnt") and res[-1].startswith("s_waitcnt"):
            a = dict(re.findall(r"(\w+cnt)\((\d+)\)", res[-1])); b = dict(re.findall(r"(\w+cnt)\((\d+)\)", t))
            for k, v in b.items(): a[k] = str(min(int(v), int(a.get(k, 99))))
            res[-1] = "s_waitcnt " + " ".join(f"{k}({v})" for k, v in a.items())
        else: res.append(t)
    return res

_REG = re.compile(r"\b([vas])(\d+)\b|\b([vas])\[(\d+):(\d+)\]|\b(vcc|exec|m0)\b")
def regs(s):
    r = set()
    for m in _REG.finditer(s):
        if m.group(1): r.add((m.group(1), int(m.group(2))))
        elif m.group(3): r.update((m.group(3), k) for k in range(int(m.group(4)), int(m.group(5)) + 1))
        else: r.add((m.group(6), 0))
    return r
TRANS = ("v_exp_", "v_log_", "v_rcp_", "v_rsq_", "v_sqrt_", "v_sin_", "v_cos_")
class I:
    def __init__(self, t):
        self.t = t
        p = t.split(None, 1); self.op = p[0]; rest = p[1] if len(p) > 1 else ""
        self.args = [a.strip() for a in rest.split(",")]
        op = self.op
        self.mfma = op.startswith("v_mfma"); self.valu = op.startswith("v_") and not self.mfma
        self.vmem = op.startswith(("buffer_", "global_")); self.ds = op.startswith("ds_")
        self.salu = op.startswith("s_")
        self.trans = op.startswith(TRANS); self.dot = op.startswith("v_dot")
        self.dpp = "_dpp" in op or "row_" in t or "quad_perm" in t
        self.perm = op.startswith("v_permlane"); self.rdlane = op.startswith(("v_readlane", "v_readfirstlane"))
        self.ldsdma = self.vmem and (t.rstrip().endswith(" lds") or " lds " in t or "load_lds" in op)
        self.passes = 0
        a = self.args; w = set(); r = set()
        if self.mfma:
            self.passes = 4 if "16x16x32" in op else 8
            w = regs(a[0]); self.A = regs(a[1]); self.B = regs(a[2]); self.C = regs(a[3]); r = self.A | self.B | self.C
        elif self.valu:
            w = regs(a[0]); r = set().union(*[regs(x) for x in a[1:]]) if len(a) > 1 else set()
            if self.perm or op.startswith("v_swap"): w |= regs(a[1]); r |= regs(a[0])
            if op.startswith(("v_fmac", "v_dot2c", "v_writelane", "v_pk_fmac")) or self.dpp: r |= regs(a[0])
            if op.startswith(("v_add_co", "v_sub_co", "v_addc_co")): w |= regs(a[1])
            if op.startswith("v_cmpx"): w.add(("exec", 0))
        elif self.vmem:
            if "load" in op and not self.ldsdma:
                w = regs(a[0]); r = set().union(*[regs(x) for x in a[1:]])
            else:
                r = set().union(*[regs(x) for x in a])
                if "atomic" in op and "sc0" in t: w = regs(a[0])
            self.wide_store = ("store" in op and ("x3" in op or "x4" in op))
            self.data = (regs(a[0]) if op.startswith("buffer") else regs(a[1])) if "store" in op else set()
        elif self.ds:
            if op.startswith(("ds_read", "ds_bpermute", "ds_permute", "ds_swizzle")):
                w = regs(a[0]); r = set().union(*[regs(x) for x in a[1:]])
            else: r = set().union(*[regs(x) for x in a])
        elif self.salu:
            if op.startswith(("s_cmp", "s_cbranch", "s_branch", "s_waitcnt", "s_barrier", "s_nop", "s_endpgm", "s_setprio", "s_bitcmp")): r = set().union(*[regs(x) for x in a])
            else:
                w = regs(a[0]); r = set().union(*[regs(x) for x in a[1:]]) if len(a) > 1 else set()
                if "saveexec" in op: w.add(("exec", 0))
        self.w = w; self.r = r
        self.states = (int(a[0], 0) + 1) if op == "s_nop" else 1

def need(p, c):
    n = 0
    vec = lambda s: {x for x in s if x[0] in "va" and len(x[0]) == 1}
    sc = lambda s: {x for x in s if x[0] == "s" or x[0] == "vcc"}
    if p.valu:
        pw = vec(p.w)
        if c.mfma and pw & c.r: n = max(n, 3 if p.dot else 2)
        if c.perm and pw & c.r: n = max(n, 2)
        if c.valu and c.dpp and pw & c.r: n = max(n, 2)
        if c.rdlane and pw & c.r: n = max(n, 1)
        if p.trans and c.valu and not c.trans and pw & c.r: n = max(n, 1)
        if p.trans and (c.vmem or c.ds) and pw & c.r: n = max(n, 1)
        if p.dot and pw & (c.r | c.w):
            if not (c.dot and c.op == p.op and not (pw & (regs(c.args[1]) | regs(c.args[2])))): n = max(n, 3)
        ps = sc(p.w)
        if ps:
            if c.vmem and ps & c.r: n = max(n, 5)
            if c.valu and ps & c.r: n = max(n, 4 if c.rdlane else 2)
        if ("exec", 0) in p.w and (c.mfma or c.perm or c.rdlane): n = max(n, 4)
        if ("exec", 0) in p.w and c.dpp: n = max(n, 5)
    if p.mfma:
        big = {4: 8, 8: 12}[p.passes]
        if c.mfma:
            if p.w & (c.A | c.B): n = max(n, big)
            if p.w & c.C and not (p.w == c.C and p.passes == c.passes): n = max(n, big - 2)
            if p.w & c.w and not (p.w & c.C): n = max(n, big - 2)
        elif c.valu or c.vmem or c.ds:
            if p.w & (c.r | c.w): n = max(n, big)
            if c.valu and p.C & c.w: n = max(n, {4: 3, 8: 7}[p.passes])
    if p.salu and ("m0", 0) in p.w and c.ldsdma: n = max(n, 1)
    if p.vmem and getattr(p, "wide_store", False) and p.data & c.w: n = max(n, 2 if c.valu else 1)
    return n

def pad_hazards(lines, verbose=False):
    out = []; hist = []
    added = 0
    for t in lines:
        s = t.strip()
        if not s or s.startswith(";") or s.startswith(".") or s.endswith(":"):
            out.append(t); continue
        c = I(s.split(";")[0].strip())
        dist = 0; req = 0
        for p in reversed(hist):
            k = need(p, c)
            if k > dist: req = max(req, k - dist)
            dist += p.states
            if dist >= 20: break
        if req:
            out.append(f"s_nop {req - 1}"); hist.append(I(f"s_nop {req - 1}")); added += req
            if verbose: print(f"pad {req} before: {s}")
        out.append(t); hist.append(c)
        if c.op in ("s_branch", "s_endpgm"): hist = []
        hist = hist[-24:]
    return out, added

class Regs:
    def __init__(self, prefix, lo, hi): self.p = prefix; self.n = lo; self.hi = hi; self.max = lo
    def get(self, cnt=1, align=None):
        if align is None: align = 1 if cnt == 1 else (2 if self.p != "s" or cnt == 2 else 4)
        self.n = (self.n + align - 1) // align * align
        r = self.n; self.n += cnt
        assert self.n <= self.hi, f"out of {self.p} regs"
        self.max = max(self.max, self.n)
        return r
    def mark(self): return self.n
    def release(self, m): self.n = m
def v(r, n=1): return f"v{r}" if n == 1 else f"v[{r}:{r+n-1}]"
def a(r, n=1): return f"a{r}" if n == 1 else f"a[{r}:{r+n-1}]"
def s(r, n=1): return f"s{r}" if n == 1 else f"s[{r}:{r+n-1}]"
```

```python
import sys, os, struct, math
sys.path.insert(0, os.path.dirname(os.path.abspath(__file__)))
from asmlib import *

NAME = "sequential_preLN__ssm_conv_h3__geglu_ffn__prompt_kernel"
CFG = dict(diag=0, g1map=(8, 4), g2map=4, wA=2, wd_in_b=36, out_sc_a=" sc1", out_sc_b="", epiA_after=0,
           poll2_at=3, chk2_at=5, f2a_after=2, spin=200000)
for kv in sys.argv[2:]:
    k, val = kv.split("=", 1); CFG[k] = eval(val)
DIAG = CFG["diag"]

FLAGS = 0
F1A, F1B, F2A, F2B, F3A, F3B, FW, FS, FD = 0, 160, 320, 480, 640, 896, 1152, 1216, 1248
NFLAG = 1280
STATS = 0x40000; CSUM = 0x48000; DIAGO = 0x60000
U_WS = 0x100000; XT_WS = 0x380000; HT_WS = 0x600000; WF_WS = 0x880000; WDF_WS = 0xC40000; ACT_WS = 0xE20000
WS_END = ACT_WS + 32 * 196608
OOB = 0x80000000
L_U = 0; U_ROW = 4576; L_HC = 18304; HC_COPY = 4160; HC_CH = 16640
L_SHU = 98304; L_SHX = 114688
L_R1 = 81920; L_R2 = 0
def f2u(x): return struct.unpack("<I", struct.pack("<f", x))[0]
C0 = -2.0 * math.log2(math.e) * math.sqrt(2.0 / math.pi); C1 = C0 * 0.044715

sX, sK, sV, sSH, sHK, sWG, sWU, sWD, sOUT, sDBG, sWS = 4, 8, 12, 16, 20, 24, 28, 32, 36, 40, 44
sDp = 48
SR = Regs("s", 50, 100)
sW = SR.get(); sXc = SR.get(); sY = SR.get(); sMask = SR.get(); sSpin = SR.get()
sRB = SR.get(); sCB = SR.get(); sWoff = SR.get(); sHoff = SR.get(); sM0 = SR.get(); sF2 = SR.get()
sT = [SR.get() for _ in range(8)]
sP = [SR.get(2) for _ in range(4)]
sStamp = SR.get(2) if DIAG else None
VR = Regs("v", 1, 256)
vL = VR.get(); vL16 = VR.get(); vFO = VR.get(); vFOc = VR.get(); vOne = VR.get(); vJ = VR.get(); vG = VR.get()
vPoll = VR.get(); vPA = VR.get(); vPollB = VR.get(); vPollC = VR.get(); vStamps = VR.get() if DIAG else None
slow = S()
_lab = [0]
def newlab(p): _lab[0] += 1; return f"L_{p}{_lab[0]}"

def stamp(o, k):
    if not DIAG: return
    o.i(f"s_memrealtime {s(sStamp,2)}"); o.wlg0(); o.i(f"v_writelane_b32 {v(vStamps)}, {s(sStamp)}, {k}")

def poll_issue(o, loads, tag):
    for d, ad, srd, so, imm in loads:
        o.vm(f"buffer_load_dword {v(d)}, {v(ad)}, {s(srd,4)}, {so} offen offset:{imm} sc1", tag)
def poll_check(o, loads, tag):
    back = newlab("ok"); sl = newlab("spin")
    def chk(q):
        d0 = loads[0][0]
        for d, *_ in loads[1:]: q.i(f"v_min_u32 {v(d0)}, {v(d0)}, {v(d)}")
        q.i(f"v_cmp_eq_u32 vcc, 0, {v(d0)}")
    o.wvm(tag); chk(o); o.i(f"s_cbranch_vccnz {sl}"); o.label(back)
    slow.label(sl); slow.i(f"s_mov_b32 {s(sSpin)}, {CFG['spin']}")
    lp = newlab("lp"); slow.label(lp)
    for d, ad, srd, so, imm in loads:
        slow.i(f"buffer_load_dword {v(d)}, {v(ad)}, {s(srd,4)}, {so} offen offset:{imm} sc1")
    slow.i("s_waitcnt vmcnt(0)"); chk(slow)
    slow.i(f"s_cbranch_vccz {back}\ns_sub_u32 {s(sSpin)}, {s(sSpin)}, 1\ns_cmp_lg_u32 {s(sSpin)}, 0\ns_cbranch_scc1 {lp}\ns_branch {back}")
def poll(o, loads):
    t = newlab("pt"); poll_issue(o, loads, t); poll_check(o, loads, t)
def flag_store(o, soff, vfo=None):
    o.vm(f"buffer_store_dword {v(vOne)}, {v(vFO if vfo is None else vfo)}, {s(sWS,4)}, {soff} offen sc1")
def go_loads(tmp):
    return [(vPoll, tmp, sDBG, "0", 0)]
def bf16r(o, d, x):
    o.i(f"v_cvt_pk_bf16_f32 {v(d)}, {v(x)}, {v(x)}\nv_lshlrev_b32 {v(d)}, 16, {v(d)}")
def ln_finalize(o, vsum, vsq, vmean, vsd, t):
    o.i(f"v_mul_f32 {v(vmean)}, {hex(f2u(1/640))}, {v(vsum)}")
    o.i(f"v_mul_f32 {v(t)}, {hex(f2u(1/640))}, {v(vsq)}")
    o.i(f"v_fma_f32 {v(t)}, -{v(vmean)}, {v(vmean)}, {v(t)}")
    o.i(f"v_max_f32 {v(t)}, 0, {v(t)}")
    bf16r(o, vmean, vmean); bf16r(o, t, t)
    o.i(f"v_add_f32 {v(t)}, {hex(f2u(1e-5))}, {v(t)}")
    bf16r(o, t, t)
    o.i(f"v_sqrt_f32 {v(t)}, {v(t)}")
    bf16r(o, vsd, t)

def prologue():
    o = S()
    o.i("s_cmp_ge_u32 s2, 256\ns_cbranch_scc1 L_end")
    for srd, off in ((sK, 8), (sV, 16), (sX, 0), (sSH, 24), (sHK, 32), (sWS, 96), (sDBG, 88), (sWG, 56), (sWU, 64), (sWD, 72), (sOUT, 80), (sDp, 40)):
        o.i(f"s_load_dwordx2 {s(srd,2)}, s[0:1], {off}")
    if DIAG: o.i(f"s_memrealtime {s(sStamp,2)}")
    o.i(f"v_lshrrev_b32 {v(vPoll)}, 6, v0\nv_and_b32 {v(vL)}, 63, v0")
    o.i(f"v_readfirstlane_b32 {s(sW)}, {v(vPoll)}")
    o.i(f"s_and_b32 {s(sXc)}, s2, 7\ns_lshr_b32 {s(sY)}, s2, 3\ns_mov_b32 {s(sMask)}, 0xffff0000")
    for srd, n in ((sK, 2621440), (sV, 2621440), (sX, 2621440), (sSH, 5120), (sHK, 2621440), (sWS, WS_END), (sDBG, 256),
                   (sWG, 1966080), (sWU, 1966080), (sWD, 1966080), (sOUT, 2621440)):
        o.i(f"s_mov_b32 {s(srd+2)}, {n}\ns_mov_b32 {s(srd+3)}, 0x00020000")
    o.i(f"v_lshlrev_b32 {v(vL16)}, 4, {v(vL)}\nv_and_b32 {v(vJ)}, 15, {v(vL)}\nv_lshrrev_b32 {v(vG)}, 4, {v(vL)}")
    o.i(f"v_mov_b32 {v(vOne)}, 1\nv_bfrev_b32 {v(vFOc)}, 1\nv_cmp_ne_u32 vcc, 0, v0\nv_cndmask_b32 {v(vFO)}, 0, {v(vFOc)}, vcc")
    R, C = CFG["g1map"]; lr = R.bit_length() - 1; nxr = 16 // R; lx = nxr.bit_length() - 1
    o.i(f"s_and_b32 {s(sRB)}, {s(sXc)}, {nxr-1}\ns_lshl_b32 {s(sRB)}, {s(sRB)}, {lr}\ns_and_b32 {s(sT[0])}, {s(sY)}, {R-1}\ns_add_u32 {s(sRB)}, {s(sRB)}, {s(sT[0])}")
    o.i(f"s_lshr_b32 {s(sCB)}, {s(sXc)}, {lx}\ns_mul_i32 {s(sCB)}, {s(sCB)}, {C}\ns_lshr_b32 {s(sT[0])}, {s(sY)}, {lr}\ns_add_u32 {s(sCB)}, {s(sCB)}, {s(sT[0])}")
    o.i(f"s_lshl_b32 {s(sWoff)}, {s(sCB)}, 2\ns_add_u32 {s(sWoff)}, {s(sWoff)}, {s(sW)}\ns_mul_i32 {s(sWoff)}, {s(sWoff)}, 61440\ns_add_u32 {s(sWoff)}, {s(sWoff)}, {WF_WS}")
    o.wlg0()
    if DIAG: o.i(f"v_mov_b32 {v(vStamps)}, 0\nv_writelane_b32 {v(vStamps)}, {s(sStamp)}, 0")
    o.i(f"s_cmp_ge_u32 {s(sY)}, 20\ns_cbranch_scc1 L_prep")
    return o

def w_loads(i0, i1, tagp="W", per=3):
    r = []
    for i in range(i0, i1):
        g = S()
        g.vm(f"buffer_load_dwordx4 {a(4*i,4)}, {v(vL16)}, {s(sWS,4)}, {s(sWoff)} offen offset:{1024*(i%4)} sc1", (tagp, i // per))
        if i % 4 == 3: g.i(f"s_add_u32 {s(sWoff)}, {s(sWoff)}, 4096")
        r.append(g)
    return r
def h_dma_setup(o, half):
    o.i(f"s_add_u32 {s(sT[0])}, {s(sW)}, 1\ns_and_b32 {s(sT[0])}, {s(sT[0])}, 3\ns_lshl_b32 {s(sT[0])}, {s(sT[0])}, 12")
    o.i(f"s_mul_i32 {s(sHoff)}, {s(sRB)}, 81920\ns_add_u32 {s(sHoff)}, {s(sHoff)}, {s(sT[0])}\ns_add_u32 {s(sHoff)}, {s(sHoff)}, {HT_WS + half*16*81920}")
    o.i(f"s_add_u32 {s(sM0)}, {s(sT[0])}, {L_R1 if half == 0 else L_R2}")
def h_dma(gam, half):
    g = S()
    g.i(f"s_mov_b32 m0, {s(sM0)}\ns_add_u32 {s(sM0)}, {s(sM0)}, 16384")
    for q in range(4):
        g.vm(f"buffer_load_dwordx4 {v(vL16)}, {s(sWS,4)}, {s(sHoff)} offen offset:{1024*q} sc1 lds", ("H", half, gam))
    g.i(f"s_add_u32 {s(sHoff)}, {s(sHoff)}, 16384")
    return g
def f2_loads(half):
    base = (F2A if half == 0 else F2B) * 128
    return [(vPoll, vPA, sWS, s(sT[5]), 0), (vPollB, vPA, sWS, s(sT[6]), 0), (vPollC, vPA, sWS, s(sT[7]), 0)]
def f2_setup(o, half):
    base = (F2A if half == 0 else F2B) * 128
    o.i(f"v_lshlrev_b32 {v(vPA)}, 7, {v(vL)}")
    o.i(f"s_mov_b32 {s(sT[5])}, {base}\ns_mov_b32 {s(sT[6])}, {base + 64*128}\ns_mov_b32 {s(sT[7])}, {base + 96*128}")

def role_conv():
    o = S(); m0 = VR.mark()
    sCI, sCBK, sTBK, sCH, sU, sD = SR.get(), SR.get(), SR.get(), SR.get(), SR.get(), SR.get(2)
    o.i(f"s_mul_i32 {s(sCI)}, {s(sXc)}, 20\ns_add_u32 {s(sCI)}, {s(sCI)}, {s(sY)}\ns_lshr_b32 {s(sCBK)}, {s(sCI)}, 4\ns_and_b32 {s(sTBK)}, {s(sCI)}, 15")
    vAa, vBa, vUe, vXo, vSo, vHo = [VR.get() for _ in range(6)]
    m1 = VR.mark()
    vcgl, vtcl, vOff, vOffH, vt0, vt1 = [VR.get() for _ in range(6)]
    kr = VR.get(22); vr_ = VR.get(16); xr = VR.get(16); shr = VR.get(8); wt = VR.get(16)
    o.i(f"v_and_b32 {v(vcgl)}, 7, {v(vL)}\nv_lshrrev_b32 {v(vtcl)}, 3, {v(vL)}")
    o.i(f"s_and_b32 {s(sT[0])}, {s(sW)}, 1\ns_lshl_b32 {s(sT[1])}, {s(sTBK)}, 1\ns_add_u32 {s(sT[0])}, {s(sT[0])}, {s(sT[1])}")
    o.i(f"s_lshr_b32 {s(sT[1])}, {s(sW)}, 1\ns_lshl_b32 {s(sT[2])}, {s(sCBK)}, 1\ns_add_u32 {s(sT[1])}, {s(sT[1])}, {s(sT[2])}")
    o.i(f"s_mul_i32 {s(sT[2])}, {s(sT[0])}, {64*1280}\ns_lshl_b32 {s(sT[3])}, {s(sT[1])}, 6\ns_add_u32 {s(sT[2])}, {s(sT[2])}, {s(sT[3])}")
    o.i(f"v_mul_u32_u24 {v(vOff)}, {8*1280}, {v(vtcl)}\nv_lshl_add_u32 {v(vOff)}, {v(vcgl)}, 3, {v(vOff)}\nv_add_u32 {v(vOff)}, {s(sT[2])}, {v(vOff)}")
    o.i(f"v_subrev_u32 {v(vOffH)}, 3840, {v(vOff)}\nv_cmp_gt_u32 vcc, 3840, {v(vOff)}\ns_movk_i32 {s(sT[4])}, 5120\nv_cndmask_b32 {v(vOffH)}, {v(vOffH)}, {v(vFOc)}, vcc")
    for r in range(8):
        so = "0" if r < 4 else s(sT[4])
        o.vm(f"buffer_load_dwordx2 {v(kr+6+2*r,2)}, {v(vOff)}, {s(sK,4)}, {so} offen offset:{1280*(r%4)}", ("k", r))
        if r < 3: o.vm(f"buffer_load_dwordx2 {v(kr+2*r,2)}, {v(vOffH)}, {s(sK,4)}, 0 offen offset:{1280*r}", "kh")
    o.i(f"s_lshl_b32 {s(sT[3])}, {s(sT[1])}, 8\nv_lshlrev_b32 {v(vt0)}, 5, {v(vcgl)}")
    o.vm(f"buffer_load_dwordx4 {v(shr,4)}, {v(vt0)}, {s(sSH,4)}, {s(sT[3])} offen", "sh")
    o.vm(f"buffer_load_dwordx4 {v(shr+4,4)}, {v(vt0)}, {s(sSH,4)}, {s(sT[3])} offen offset:16", "sh")
    for r in range(8):
        so = "0" if r < 4 else s(sT[4])
        o.vm(f"buffer_load_dwordx2 {v(vr_+2*r,2)}, {v(vOff)}, {s(sV,4)}, {so} offen offset:{1280*(r%4)}", ("v", r))
    hd = VR.get(16); hm = VR.get(8); vM0, vM1 = VR.get(), VR.get()
    o.i(f"s_lshl_b32 {s(sCH)}, {s(sCI)}, 2\ns_add_u32 {s(sCH)}, {s(sCH)}, {s(sW)}\ns_lshl_b32 {s(sT[5])}, {s(sCH)}, 12")
    o.i(f"s_lshr_b32 {s(sT[6])}, {s(sCH)}, 1\ns_lshl_b32 {s(sT[6])}, {s(sT[6])}, 2\ns_load_dword {s(sD)}, {s(sDp,2)}, {s(sT[6])}")
    o.i(f"v_add_u32 {v(vM1)}, 1016, {v(vL16)}\nv_subrev_u32 {v(vM0)}, 8, {v(vL16)}\nv_cmp_eq_u32 vcc, 0, {v(vL)}\nv_cndmask_b32 {v(vM0)}, {v(vM0)}, {v(vFOc)}, vcc")
    second = S()
    for r in range(8):
        so = "0" if r < 4 else s(sT[4])
        second.vm(f"buffer_load_dwordx2 {v(xr+2*r,2)}, {v(vOff)}, {s(sX,4)}, {so} offen offset:{1280*(r%4)}", "x")
    for it in range(4):
        second.vm(f"buffer_load_dwordx4 {v(hd+4*it,4)}, {v(vL16)}, {s(sHK,4)}, {s(sT[5])} offen offset:{1024*it}", "hk")
        second.vm(f"buffer_load_dwordx2 {v(hm+2*it,2)}, {v(vM0 if it == 0 else vM1)}, {s(sHK,4)}, {s(sT[5])} offen offset:{1024*(it-1) if it else 0}", "hk")
    if CFG.get("second_early", 0): o.add(second)
    vSW, vSR, vSt = VR.get(), VR.get(4, 1), VR.get()
    o.i(f"s_lshl_b32 {s(sT[2])}, {s(sW)}, 12\ns_add_u32 {s(sT[2])}, {s(sT[2])}, {L_SHU}")
    o.i(f"v_xor_b32 {v(vt0)}, {v(vtcl)}, {v(vcgl)}\nv_lshlrev_b32 {v(vt0)}, 4, {v(vt0)}\nv_lshl_add_u32 {v(vSW)}, {v(vcgl)}, 9, {v(vt0)}\nv_add_u32 {v(vSW)}, {s(sT[2])}, {v(vSW)}")
    o.i(f"v_lshrrev_b32 {v(vt0)}, 5, {v(vL)}\nv_xor_b32 {v(vt0)}, {v(vt0)}, {v(vcgl)}\nv_lshlrev_b32 {v(vt0)}, 4, {v(vt0)}\nv_lshl_add_u32 {v(vSR)}, {v(vtcl)}, 7, {v(vt0)}\nv_add_u32 {v(vSR)}, {s(sT[2])}, {v(vSR)}")
    for i in range(1, 4): o.i(f"v_xor_b32 {v(vSR+i)}, {32*i}, {v(vSR)}")
    o.i(f"v_lshlrev_b32 {v(vSt)}, 12, {v(vtcl)}\nv_lshl_add_u32 {v(vSt)}, {v(vcgl)}, 4, {v(vSt)}")
    o.i(f"s_lshl_b32 {s(sU)}, {s(sT[1])}, 17\ns_lshl_b32 {s(sT[3])}, {s(sT[0])}, 7\ns_add_u32 {s(sU)}, {s(sU)}, {s(sT[3])}")
    o.i(f"s_mul_i32 {s(sT[2])}, {s(sW)}, {HC_CH}\ns_add_u32 {s(sT[2])}, {s(sT[2])}, {L_HC + 56}")
    o.i(f"v_and_b32 {v(vt0)}, 3, {v(vJ)}\nv_sub_u32 {v(vt0)}, 3, {v(vt0)}\nv_mul_u32_u24 {v(vAa)}, {HC_COPY}, {v(vt0)}\nv_lshrrev_b32 {v(vt0)}, 2, {v(vJ)}")
    o.i(f"v_lshl_add_u32 {v(vAa)}, {v(vt0)}, 3, {v(vAa)}\nv_lshlrev_b32 {v(vt0)}, 4, {v(vG)}\nv_sub_u32 {v(vAa)}, {v(vAa)}, {v(vt0)}\nv_add_u32 {v(vAa)}, {s(sT[2])}, {v(vAa)}")
    o.i(f"s_mul_i32 {s(sT[3])}, {s(sW)}, {U_ROW}\nv_lshl_add_u32 {v(vBa)}, {v(vJ)}, 1, {v(vG)}\nv_lshlrev_b32 {v(vBa)}, 4, {v(vBa)}\nv_add_u32 {v(vBa)}, {s(sT[3])}, {v(vBa)}")
    o.i(f"v_lshrrev_b32 {v(vt0)}, 1, {v(vG)}\nv_lshl_add_u32 {v(vUe)}, {v(vJ)}, 1, {v(vt0)}\nv_lshlrev_b32 {v(vUe)}, 4, {v(vUe)}\nv_and_b32 {v(vt1)}, 1, {v(vG)}\nv_lshlrev_b32 {v(vt1)}, 3, {v(vt1)}\nv_sub_u32 {v(vUe)}, {v(vUe)}, {v(vt1)}")
    o.i(f"s_add_u32 {s(sT[6])}, {s(sT[3])}, {L_U + 488}\nv_add_u32 {v(vUe)}, {s(sT[6])}, {v(vUe)}")
    o.i(f"v_lshl_add_u32 {v(vSo)}, {v(vJ)}, 2, {v(vG)}\nv_lshlrev_b32 {v(vXo)}, 3, {v(vSo)}\nv_lshlrev_b32 {v(vSo)}, 5, {v(vSo)}")
    o.i(f"s_bfe_u32 {s(sT[6])}, {s(sCH)}, 0x10001\ns_bfe_u32 {s(sT[7])}, {s(sCH)}, 0x10003\ns_lshl_b32 {s(sT[7])}, {s(sT[7])}, 1\ns_or_b32 {s(sT[6])}, {s(sT[6])}, {s(sT[7])}")
    o.i(f"v_and_b32 {v(vt0)}, 2, {v(vG)}\nv_bfe_u32 {v(vt1)}, {v(vJ)}, 1, 1\nv_or_b32 {v(vt0)}, {v(vt0)}, {v(vt1)}\nv_xor_b32 {v(vt0)}, {s(sT[6])}, {v(vt0)}\nv_lshlrev_b32 {v(vt0)}, 5, {v(vt0)}")
    o.i(f"v_and_b32 {v(vt1)}, 1, {v(vJ)}\nv_lshl_add_u32 {v(vt0)}, {v(vt1)}, 4, {v(vt0)}\nv_and_b32 {v(vt1)}, 1, {v(vG)}\nv_lshlrev_b32 {v(vt1)}, 2, {v(vt1)}\nv_lshrrev_b32 {v(vHo)}, 2, {v(vJ)}\nv_add_u32 {v(vHo)}, {v(vHo)}, {v(vt1)}")
    o.i(f"s_mov_b32 {s(sT[7])}, 81920\nv_mad_u32_u24 {v(vHo)}, {v(vHo)}, {s(sT[7])}, {v(vt0)}")
    zq = VR.get(4); vHW = VR.get()
    for k in range(4): o.i(f"v_mov_b32 {v(zq+k)}, 0")
    o.i(f"v_add_u32 {v(vt0)}, {s(sT[3])}, {v(vL16)}\nv_subrev_u32 {v(vt1)}, 30, {v(vL)}\nv_lshrrev_b32 {v(vHW)}, 1, {v(vt1)}\nv_mul_u32_u24 {v(vHW)}, {HC_COPY}, {v(vHW)}\nv_and_b32 {v(vt1)}, 1, {v(vt1)}\nv_lshl_add_u32 {v(vHW)}, {v(vt1)}, 4, {v(vHW)}")
    o.i(f"s_sub_u32 {s(sT[2])}, {s(sT[2])}, 56\nv_add_u32 {v(vHW)}, {s(sT[2])}, {v(vHW)}\nv_cmp_gt_u32 vcc, 30, {v(vL)}\nv_cndmask_b32 {v(vt0)}, {v(vHW)}, {v(vt0)}, vcc")
    o.i(f"s_mov_b32 exec_hi, 0x3f")
    o.lg(f"ds_write_b128 {v(vt0)}, {v(zq,4)}")
    o.i(f"s_mov_b32 exec_hi, -1\nv_add_u32 {v(vHW)}, {s(sT[2])}, {v(vL16)}")
    o.wlg0()
    o.i(f"s_bitcmp1_b32 {s(sCH)}, 0\ns_cselect_b32 {s(sT[6])}, 0, 16\ns_lshl_b32 {s(sD)}, {s(sD)}, {s(sT[6])}\ns_and_b32 {s(sD)}, {s(sD)}, {s(sMask)}\ns_mov_b32 {s(sD+1)}, {s(sD)}")
    o.i(f"s_lshl_b32 {s(sF2)}, {s(sCI)}, 7")
    kf = VR.get(44); uf = VR.get(32); vf = VR.get(4); up = VR.get(16)
    o.wvm("sh")
    for p in range(2):
        for m in range(4):
            for h in range(2):
                src = shr + 2 * (2 * p + h) + (m >> 1); d = wt + (p * 4 + m) * 2 + h
                o.i(f"v_lshlrev_b32 {v(d)}, 16, {v(src)}" if m % 2 == 0 else f"v_and_b32 {v(d)}, {s(sMask)}, {v(src)}")
    stamp(o, 1)
    if not CFG.get("second_early", 0): o.add(second)
    o.i(f"v_mov_b32 {v(vPA)}, 0")
    poll_issue(o, go_loads(vPA), "go")
    for r in range(11):
        for p in range(2):
            o.i(f"v_lshlrev_b32 {v(kf+4*r+2*p)}, 16, {v(kr+2*r+p)}\nv_and_b32 {v(kf+4*r+2*p+1)}, {s(sMask)}, {v(kr+2*r+p)}")
    for m in range(4):
        for t in range(8):
            for p in range(2):
                d = v(uf + 4 * t + 2 * p, 2); kk = v(kf + 4 * (t + 3 - m) + 2 * p, 2); w_ = v(wt + (p * 4 + m) * 2, 2)
                o.i(f"v_pk_mul_f32 {d}, {kk}, {w_}" if m == 0 else f"v_pk_fma_f32 {d}, {kk}, {w_}, {d}")
    o.wvm(("v", 7))
    for t in range(8):
        for p in range(2):
            o.i(f"v_lshlrev_b32 {v(kf+4*t+2*p)}, 16, {v(vr_+2*t+p)}\nv_and_b32 {v(kf+4*t+2*p+1)}, {s(sMask)}, {v(vr_+2*t+p)}")
    for t in range(8):
        for p in range(2):
            o.i(f"v_pk_mul_f32 {v(uf+4*t+2*p,2)}, {v(uf+4*t+2*p,2)}, {v(kf+4*t+2*p,2)}")
    for c in range(4):
        for q in range(4):
            o.i(f"v_cvt_pk_bf16_f32 {v(up+4*c+q)}, {v(uf+4*(7-2*q)+c)}, {v(uf+4*(6-2*q)+c)}")
        o.lg(f"ds_write_b128 {v(vSW)}, {v(up+4*c,4)} offset:{128*c}")
    def shuffle_out(base_off, wsbase, tag):
        for i in range(4): o.lg(f"ds_read_b128 {v(uf+4*i,4)}, {v(vSR+i)} offset:{1024*i + base_off}", (tag, i))
        for i in range(4):
            o.i(f"s_add_u32 {s(sT[6])}, {s(sU)}, {wsbase + 32768*i}")
            o.wlg((tag, i))
            o.vm(f"buffer_store_dwordx4 {v(uf+4*i,4)}, {v(vSt)}, {s(sWS,4)}, {s(sT[6])} offen sc1", tag + "st")
    shuffle_out(0, U_WS, "u")
    stamp(o, 2)
    poll_check(o, go_loads(vPA), "go")
    o.i(f"s_mov_b32 {s(sT[2])}, 0x05040100\ns_mov_b32 {s(sT[3])}, 0x07060302")
    for c in range(4):
        for q in range(4):
            o.i(f"v_perm_b32 {v(up+4*c+q)}, {v(xr+2*(2*q+1)+(c>>1))}, {v(xr+2*(2*q)+(c>>1))}, {s(sT[2] if c % 2 == 0 else sT[3])}")
        o.lg(f"ds_write_b128 {v(vSW)}, {v(up+4*c,4)} offset:{128*c + L_SHX - L_SHU}")
    c1 = kf; c2 = kf + 4; c3 = kf + 8
    def copies(it):
        d = [hm + 2 * it, hm + 2 * it + 1] + [hd + 4 * it + k for k in range(4)]
        base = (it % 2) * 12
        for k in range(4): o.i(f"v_alignbit_b32 {v(c1+base+k)}, {v(d[k+2])}, {v(d[k+1])}, 16")
        for k in range(4): o.i(f"v_mov_b32 {v(c2+base+k)}, {v(d[k+1])}")
        for k in range(4): o.i(f"v_alignbit_b32 {v(c3+base+k)}, {v(d[k+1])}, {v(d[k])}, 16")
        for c, r in enumerate((hd + 4 * it, c1 + base, c2 + base, c3 + base)):
            o.lg(f"ds_write_b128 {v(vHW)}, {v(r,4)} offset:{c*HC_COPY + 32 + 1024*it}", ("hc", it))
    copies(0); copies(1)
    o.wvm("ust"); o.i("s_barrier")
    flag_store(o, s(sF2))
    stamp(o, 3)
    shuffle_out(L_SHX - L_SHU, XT_WS, "x")
    copies(2); copies(3)
    o.i(f"v_lshlrev_b32 {v(vPA)}, 7, {v(vJ)}\ns_lshl_b32 {s(sT[5])}, {s(sCBK)}, 11")
    f1 = [(vPoll, vPA, sWS, s(sT[5]), 0)]
    poll_issue(o, f1, "f1a")
    o.wvm("xst"); o.i(f"s_barrier\ns_add_u32 {s(sT[6])}, {s(sF2)}, {F1B*128}")
    flag_store(o, s(sT[6]))
    poll_check(o, f1, "f1a")
    stamp(o, 4)
    o.i(f"s_mul_i32 {s(sT[3])}, {s(sW)}, {U_ROW}\ns_add_u32 {s(sT[3])}, {s(sT[3])}, {L_U + 480}\ns_mov_b32 m0, {s(sT[3])}")
    o.i(f"s_lshl_b32 {s(sU)}, {s(sCH)}, 12\ns_add_u32 {s(sT[6])}, {s(sU)}, {U_WS}")
    for q in range(4): o.vm(f"buffer_load_dwordx4 {v(vL16)}, {s(sWS,4)}, {s(sT[6])} offen offset:{1024*q} sc1 lds", "udma")
    o.i(f"s_lshl_b32 {s(sT[6])}, {s(sCBK)}, 4\ns_add_u32 {s(sT[6])}, {s(sT[6])}, {F1B}\nv_add_u32 {v(vt0)}, {s(sT[6])}, {v(vL)}\nv_add_u32 {v(vt1)}, {FS-16}, {v(vL)}\nv_cmp_gt_u32 vcc, 16, {v(vL)}")
    o.i(f"v_cndmask_b32 {v(vt0)}, {v(vt1)}, {v(vt0)}, vcc\ns_lshl_b32 {s(sT[6])}, {s(sCB)}, 2\ns_add_u32 {s(sT[6])}, {s(sT[6])}, {FW}\nv_and_b32 {v(vt1)}, 3, {v(vL)}\nv_add_u32 {v(vt1)}, {s(sT[6])}, {v(vt1)}")
    o.i(f"v_cmp_gt_u32 vcc, 48, {v(vL)}\nv_cndmask_b32 {v(vt0)}, {v(vt1)}, {v(vt0)}, vcc\nv_lshlrev_b32 {v(vPA)}, 7, {v(vt0)}")
    f2nd = [(vPoll, vPA, sWS, "0", 0)]
    VR.release(m1)
    accA = VR.get(16); accB = VR.get(16); fr = VR.get(128); xe = VR.get(8); st = VR.get(32); ue = VR.get(8); tm = VR.get(16)
    sXT, sHT = SR.get(), SR.get()
    o.i(f"s_add_u32 {s(sXT)}, {s(sU)}, {XT_WS}\ns_lshl_b32 {s(sHT)}, {s(sCH)}, 7\ns_add_u32 {s(sHT)}, {s(sHT)}, {HT_WS}")
    def slot(c): return ("A", c) if c < 8 else ("B", c - 8)
    def fA(c, M): return fr + (c % 2) * 64 + 8 * M
    def fB(c, b): return fr + (c % 2) * 64 + 8 * b + 4
    def reads(c):
        half, m = slot(c); n = 4 if half == "A" else 8; r = []
        if half == "A": order = [("B", 0), ("A", 0), ("B", 1), ("B", 2), ("B", 3), ("A", 1), ("A", 2), ("A", 3)]
        else: order = [("A", 0), ("B", 4), ("B", 5), ("B", 6), ("B", 7), ("A", 1), ("B", 3), ("A", 2), ("B", 2), ("A", 3), ("B", 1), ("A", 4), ("B", 0), ("A", 5), ("A", 6), ("A", 7)]
        for kind, q in order:
            if kind == "B": r.append(S().lg(f"ds_read_b128 {v(fB(c,q),4)}, {v(vBa)} offset:{L_U + 512*q - 64*m + 448}", ("f", c, "B", q)))
            else:
                r.append(S().lg(f"ds_read_b64 {v(fA(c,q),2)}, {v(vAa)} offset:{64*(8*q+m)}", ("f", c, "A", q)))
                r.append(S().lg(f"ds_read_b64 {v(fA(c,q)+2,2)}, {v(vAa)} offset:{64*(8*q+m)+8}", ("f", c, "A", q)))
        return r
    def mfmas(c):
        half, m = slot(c); lo, hi = (0, 4) if half == "A" else (4, 8); acc = accA if half == "A" else accB
        r = []; seen = set()
        for M in range(hi):
            bs = [jt - M for jt in range(lo, hi) if 0 <= jt - M]
            g0 = S().wlg([("f", c, "A", M)] + [("f", c, "B", b) for b in bs])
            for b in bs:
                d = v(acc + 4 * (M + b - lo), 4)
                cc = "0" if (m == 0 and M == 0) else d
                g = g0 if b == bs[0] else S()
                g.i(f"v_mfma_f32_16x16x32_bf16 {d}, {v(fA(c,M),4)}, {v(fB(c,b),4)}, {cc}")
                r.append(g)
        return r
    def epi_loads(half):
        r = []
        for q in range(4):
            jt = 4 * half + q
            r.append(S().vm(f"buffer_load_dwordx2 {v(xe+2*q,2)}, {v(vXo)}, {s(sWS,4)}, {s(sXT)} offen offset:{512*jt} sc1", ("el", half)))
        for q in range(4):
            jt = 4 * half + q
            g = S()
            if q % 2 == 0: g.i(f"s_mov_b32 {s(sT[4])}, {STATS + 2048*jt}")
            g.vm(f"buffer_load_dwordx4 {v(st+8*q,4)}, {v(vSo)}, {s(sWS,4)}, {s(sT[4])} offen offset:{2048*(q%2)} sc1", ("el", half))
            r.append(g)
            r.append(S().vm(f"buffer_load_dwordx4 {v(st+8*q+4,4)}, {v(vSo)}, {s(sWS,4)}, {s(sT[4])} offen offset:{2048*(q%2)+16} sc1", ("el", half)))
        return r
    def epilogue(half):
        e = S(); acc = accA if half == 0 else accB
        for q in range(4): e.lg(f"ds_read_b64 {v(ue+2*q,2)}, {v(vUe)} offset:{512*(4*half+q)}", ("ue", half))
        e.wvm(("el", half))
        for q in range(4):
            t = tm + 4 * q
            e.i(f"v_lshlrev_b32 {v(t)}, 16, {v(xe+2*q)}\nv_and_b32 {v(t+1)}, {s(sMask)}, {v(xe+2*q)}\nv_lshlrev_b32 {v(t+2)}, 16, {v(xe+2*q+1)}\nv_and_b32 {v(t+3)}, {s(sMask)}, {v(xe+2*q+1)}")
        for q in range(4):
            for h in range(2): e.i(f"v_pk_fma_f32 {v(st+8*q+2*h,2)}, {v(tm+4*q+2*h,2)}, {v(st+8*q+2*h,2)}, {v(st+8*q+4+2*h,2)}")
        e.wlg(("ue", half))
        for q in range(4):
            t = st + 8 * q + 4
            e.i(f"v_and_b32 {v(t)}, {s(sMask)}, {v(ue+2*q+1)}\nv_lshlrev_b32 {v(t+1)}, 16, {v(ue+2*q+1)}\nv_and_b32 {v(t+2)}, {s(sMask)}, {v(ue+2*q)}\nv_lshlrev_b32 {v(t+3)}, 16, {v(ue+2*q)}")
        for q in range(4):
            for h in range(2): e.i(f"v_pk_fma_f32 {v(acc+4*q+2*h,2)}, {v(st+8*q+4+2*h,2)}, {s(sD,2)}, {v(acc+4*q+2*h,2)}")
        for q in range(4):
            for h in range(2): e.i(f"v_pk_fma_f32 {v(tm+4*q+2*h,2)}, {v(st+8*q+2*h,2)}, {v(acc+4*q+2*h,2)}, {v(tm+4*q+2*h,2)}")
        for q in range(4):
            for h in range(2): e.i(f"v_cvt_pk_bf16_f32 {v(ue+2*q+h)}, {v(tm+4*q+2*h)}, {v(tm+4*q+2*h+1)}")
        for p in range(2):
            e.i(f"s_add_u32 {s(sT[4])}, {s(sHT)}, {(16*half + 8*p)*81920}")
            for h in range(2): e.i(f"v_permlane16_swap_b32 {v(ue+4*p+h)}, {v(ue+4*p+2+h)}")
            e.vm(f"buffer_store_dwordx4 {v(ue+4*p,4)}, {v(vHo)}, {s(sWS,4)}, {s(sT[4])} offen sc1", ("hst", half))
        return e
    o.wvm("udma"); o.wlg0()
    stamp(o, 5)
    for g in reads(0): o.add(g)
    wl = w_loads(0, 60); wi = 0
    p2, c2_, eA, fA_ = CFG["poll2_at"], CFG["chk2_at"], 8 + CFG["epiA_after"], 8 + CFG["epiA_after"] + CFG["f2a_after"]
    nB = 16 - max(c2_, 8); wA = CFG["wA"] * max(0, 8 - c2_); wtail = CFG.get("wtail", 9)
    for c in range(16):
        fill = reads(c + 1) if c < 15 else []
        extra = []
        if c == p2: poll_issue(o, f2nd, "f2nd")
        if c == c2_:
            poll_check(o, f2nd, "f2nd"); extra += epi_loads(0)
        if c == eA:
            stamp(o, 6); o.add(epilogue(0)); extra += epi_loads(1)
        if c == fA_:
            o.wvm(("hst", 0)); o.i(f"s_barrier\ns_add_u32 {s(sT[6])}, {s(sF2)}, {F2A*128}"); flag_store(o, s(sT[6]))
        if c == 15:
            f2_setup(o, 0); h_dma_setup(o, 0); poll_issue(o, f2_loads(0), "f2a")
        if c >= c2_ and c < 15:
            n = CFG["wA"] if c < 8 else -(-(60 - wtail - wi) // (15 - c))
            extra += wl[wi:wi + n]; wi += n
        mm = mfmas(c)
        body = weave(mm, fill, 0, min(len(mm), max(len(fill), 1)))
        if extra:
            idx = [k for k, op in enumerate(body) if op.text.startswith("v_mfma")]
            parts = []; prev = 0
            for k in idx[1:] + [len(body)]:
                kk = k
                while kk > 0 and kk <= len(body) and kk - 1 >= prev and body[kk - 1].kind == "wlg": kk -= 1
                parts.append(group(body[prev:kk])); prev = kk
            body = weave(parts, extra)
        o.add(body)
    stamp(o, 7)
    poll_check(o, f2_loads(0), "f2a")
    o.add(h_dma(0, 0)); o.add(h_dma(1, 0))
    o.add(epilogue(1))
    for g in (2, 3, 4): o.add(h_dma(g, 0))
    for g in wl[wi:]: o.add(g)
    o.i(f"v_mov_b32 {v(vFOc)}, {v(vFO)}\ns_add_u32 {s(sF2)}, {s(sF2)}, {F2B*128}")
    VR.release(m0)
    return o

def code_prefetch(o, tmp):
    o.i(f"s_getpc_b64 {s(sP[0],2)}"); o.label("L_pc")
    o.i(f"s_sub_u32 {s(sP[0])}, {s(sP[0])}, L_pc-{NAME}\ns_subb_u32 {s(sP[0]+1)}, {s(sP[0]+1)}, 0\nv_lshlrev_b32 {v(tmp)}, 4, v0")
    o.append(Op("@@CODEPF@@", "raw"))

def role_prep():
    o = S(); m0 = VR.mark(); sm0 = SR.mark()
    o.label("L_prep")
    vt0, vt1, vt2 = VR.get(), VR.get(), VR.get()
    pf = VR.get(4)
    o.i(f"s_cmp_lg_u32 {s(sY)}, 21\ns_cbranch_scc1 L_nopf")
    code_prefetch(o, vt0); CFG["_pf"] = (vt0, pf)
    o.label("L_nopf")
    o.i("s_cmp_lg_u32 s2, 160\ns_cbranch_scc1 L_noinit")
    o.i(f"v_lshlrev_b32 {v(vt0)}, 7, v0\nv_mov_b32 {v(vt1)}, 0")
    for q in range(NFLAG // 256):
        o.i(f"s_mov_b32 {s(sT[0])}, {q*32768}\nbuffer_store_dword {v(vt1)}, {v(vt0)}, {s(sWS,4)}, {s(sT[0])} offen sc1")
    o.i(f"s_waitcnt vmcnt(0)\ns_barrier\nbuffer_store_dword {v(vOne)}, {v(vFO)}, {s(sDBG,4)}, 0 offen sc1")
    o.label("L_noinit")
    vr, vc = VR.get(), VR.get()
    o.i(f"v_bfe_u32 {v(vr)}, {v(vL)}, 2, 2\nv_and_b32 {v(vc)}, 3, {v(vL)}")
    fr = VR.get(60); sI, sSo, sOut = SR.get(), SR.get(), SR.get()
    o.i(f"s_cmp_ge_u32 {s(sY)}, 28\ns_cbranch_scc1 L_dprep")
    head = o
    o = S(); m1 = VR.mark()
    sPC, sKQ = SR.get(), SR.get()
    o.i(f"s_lshl_b32 {s(sI)}, {s(sXc)}, 3\ns_add_u32 {s(sI)}, {s(sI)}, {s(sY)}\ns_sub_u32 {s(sI)}, {s(sI)}, 20\ns_lshr_b32 {s(sPC)}, {s(sI)}, 2\ns_and_b32 {s(sKQ)}, {s(sI)}, 3")
    o.i(f"s_bitcmp1_b32 {s(sW)}, 0\ns_cselect_b32 {s(sWG)}, {s(sWU)}, {s(sWG)}\ns_cselect_b32 {s(sWG+1)}, {s(sWU+1)}, {s(sWG+1)}")
    vo = VR.get(3, 1)
    o.i(f"s_lshr_b32 {s(sT[0])}, {s(sW)}, 1\ns_lshl_b32 {s(sT[0])}, {s(sT[0])}, 3\ns_movk_i32 {s(sT[1])}, 3072")
    for i in range(3):
        o.i(f"v_add_u32 {v(vt0)}, {64*i}, {v(vL)}\nv_mul_u32_u24 {v(vt1)}, 5462, {v(vt0)}\nv_lshrrev_b32 {v(vt1)}, 16, {v(vt1)}")
        o.i(f"v_mul_u32_u24 {v(vt2)}, 12, {v(vt1)}\nv_sub_u32 {v(vt0)}, {v(vt0)}, {v(vt2)}\nv_lshlrev_b32 {v(vt0)}, 4, {v(vt0)}")
        o.i(f"v_and_b32 {v(vt2)}, 8, {v(vt1)}\nv_add3_u32 {v(vt1)}, {v(vt1)}, {v(vt2)}, {s(sT[0])}\nv_mad_u32_u24 {v(vo+i)}, {v(vt1)}, {s(sT[1])}, {v(vt0)}")
    o.i(f"s_mul_i32 {s(sSo)}, {s(sKQ)}, {160*3072}\ns_mul_i32 {s(sT[0])}, {s(sPC)}, 192\ns_add_u32 {s(sSo)}, {s(sSo)}, {s(sT[0])}\ns_mul_i32 {s(sM0)}, {s(sW)}, 3088")
    for st_ in range(5):
        for i in range(3):
            o.i(f"s_add_u32 m0, {s(sM0)}, {st_*12352 + i*1024}\ns_nop 0")
            o.vm(f"buffer_load_dwordx4 {v(vo+i)}, {s(sWG,4)}, {s(sSo)} offen lds", "wd")
        o.i(f"s_add_u32 {s(sSo)}, {s(sSo)}, {32*3072}")
    va0, va2 = VR.get(), VR.get(); ones = VR.get(4); cs = VR.get(12)
    o.i(f"v_and_b32 {v(vt0)}, 1, {v(vG)}\nv_mul_u32_u24 {v(va0)}, 6176, {v(vt0)}\nv_lshrrev_b32 {v(vt0)}, 1, {v(vG)}\nv_lshl_add_u32 {v(vt0)}, {v(vt0)}, 3, {v(vr)}\nv_mul_u32_u24 {v(vt0)}, 192, {v(vt0)}")
    o.i(f"s_mul_i32 {s(sT[0])}, {s(sW)}, 48\nv_add3_u32 {v(va0)}, {v(va0)}, {v(vt0)}, {s(sT[0])}")
    o.i(f"v_lshrrev_b32 {v(vt0)}, 1, {v(vc)}\nv_mul_u32_u24 {v(vt0)}, 3088, {v(vt0)}\nv_and_b32 {v(vt1)}, 1, {v(vc)}\nv_lshl_add_u32 {v(vt0)}, {v(vt1)}, 3, {v(vt0)}\nv_add3_u32 {v(va2)}, {v(va0)}, {v(vt0)}, 32")
    o.i(f"v_lshl_add_u32 {v(va0)}, {v(vc)}, 3, {v(va0)}")
    for k in range(4): o.i(f"v_mov_b32 {v(ones+k)}, 0x3f803f80")
    o.i(f"s_lshl_b32 {s(sT[0])}, {s(sPC)}, 2\ns_add_u32 {s(sT[0])}, {s(sT[0])}, {s(sW)}\ns_lshl_b32 {s(sT[0])}, {s(sT[0])}, 2\ns_add_u32 {s(sT[0])}, {s(sT[0])}, {s(sKQ)}")
    o.i(f"s_mul_i32 {s(sOut)}, {s(sT[0])}, 15360\ns_add_u32 {s(sOut)}, {s(sOut)}, {WF_WS}\ns_mul_i32 {s(sT[2])}, {s(sT[0])}, 192\ns_add_u32 {s(sT[2])}, {s(sT[2])}, {CSUM}")
    o.wvm0(); o.i("s_barrier")
    stamp(o, 1)
    o.i(f"v_mov_b32 {v(vPA)}, 0"); poll_issue(o, go_loads(vPA), "go")
    def frag_out(q, i):
        q.wlg(("t", i))
        q.vm(f"buffer_store_dwordx4 {v(fr+4*i,4)}, {v(vL16)}, {s(sWS,4)}, {s(sOut)} offen offset:{1024*(i%4)} sc1", "wst")
        if i % 4 == 3: q.i(f"s_add_u32 {s(sOut)}, {s(sOut)}, 4096")
    for i in range(15):
        st_, tl = divmod(i, 3)
        for rd in range(2):
            o.lg(f"ds_read_b64_tr_b16 {v(fr+4*i+2*rd,2)}, {v(va2 if tl == 2 else va0)} offset:{st_*12352 + rd*768 + (3088 if tl == 1 else 0)}", ("t", i))
        if i >= 4: frag_out(o, i - 4)
    for i in range(11, 15): frag_out(o, i)
    for i in range(15):
        tl = i % 3
        o.i(f"v_mfma_f32_16x16x32_bf16 {v(cs+4*tl,4)}, {v(fr+4*i,4)}, {v(ones,4)}, {'0' if i < 3 else v(cs+4*tl,4)}")
    o.i(f"v_lshlrev_b32 {v(vt0)}, 4, {v(vG)}\nv_cmp_eq_u32 vcc, 0, {v(vJ)}\nv_cndmask_b32 {v(vt0)}, {v(vFOc)}, {v(vt0)}, vcc")
    for tl in range(3): o.vm(f"buffer_store_dwordx4 {v(cs+4*tl,4)}, {v(vt0)}, {s(sWS,4)}, {s(sT[2])} offen offset:{64*tl} sc1")
    poll_check(o, go_loads(vPA), "go")
    o.i(f"s_add_u32 {s(sI)}, {s(sI)}, {FW}\ns_lshl_b32 {s(sI)}, {s(sI)}, 7")
    o.wvm0(); o.i("s_barrier"); flag_store(o, s(sI))
    o.i("s_branch L_ptail")
    wprep = o; VR.release(m1)
    o = S(); o.label("L_dprep")
    o.i(f"s_lshl_b32 {s(sI)}, {s(sXc)}, 2\ns_add_u32 {s(sI)}, {s(sI)}, {s(sY)}\ns_sub_u32 {s(sI)}, {s(sI)}, 28")
    xr = VR.get(80); vo = VR.get(5, 1); acc = VR.get(8); res = VR.get(8); onesr = VR.get()
    o.i(f"s_lshl_b32 {s(sT[0])}, {s(sI)}, 2\ns_add_u32 {s(sT[0])}, {s(sT[0])}, {s(sW)}\ns_mul_i32 {s(sT[1])}, {s(sT[0])}, {16*1280}")
    o.i(f"v_mul_u32_u24 {v(vt0)}, 5120, {v(vG)}\nv_lshl_add_u32 {v(vt0)}, {v(vJ)}, 4, {v(vt0)}")
    for it in range(4):
        for q in range(5):
            o.vm(f"buffer_load_dwordx4 {v(xr+20*it+4*q,4)}, {v(vt0)}, {s(sX,4)}, {s(sT[1])} offen offset:{256*q}", ("xs", it))
        o.i(f"s_add_u32 {s(sT[1])}, {s(sT[1])}, 1280")
    o.i(f"s_movk_i32 {s(sT[2])}, 1280")
    for i in range(5):
        o.i(f"v_add_u32 {v(vt0)}, {64*i}, {v(vL)}\nv_mul_u32_u24 {v(vt1)}, 6554, {v(vt0)}\nv_lshrrev_b32 {v(vt1)}, 16, {v(vt1)}")
        o.i(f"v_mul_u32_u24 {v(vt2)}, 10, {v(vt1)}\nv_sub_u32 {v(vt0)}, {v(vt0)}, {v(vt2)}\nv_lshlrev_b32 {v(vt0)}, 4, {v(vt0)}")
        o.i(f"v_and_b32 {v(vt2)}, 4, {v(vt1)}\nv_lshlrev_b32 {v(vt2)}, 1, {v(vt2)}\nv_and_b32 {v(vo+i)}, 8, {v(vt1)}\nv_lshrrev_b32 {v(vo+i)}, 1, {v(vo+i)}\nv_and_b32 {v(vt1)}, 19, {v(vt1)}\nv_or3_b32 {v(vt1)}, {v(vt1)}, {v(vt2)}, {v(vo+i)}")
        o.i(f"v_mad_u32_u24 {v(vo+i)}, {v(vt1)}, {s(sT[2])}, {v(vt0)}")
    o.i(f"s_sub_u32 {s(sT[3])}, {s(sY)}, 28\ns_lshl_b32 {s(sT[3])}, {s(sT[3])}, 2\ns_add_u32 {s(sT[3])}, {s(sT[3])}, {s(sW)}\ns_mul_i32 {s(sSo)}, {s(sT[3])}, {96*1280}\ns_mul_i32 {s(sT[3])}, {s(sXc)}, 160\ns_add_u32 {s(sSo)}, {s(sSo)}, {s(sT[3])}")
    o.i(f"s_mul_i32 {s(sM0)}, {s(sW)}, 15360")
    wdd = S()
    for st_ in range(3):
        for i in range(5):
            wdd.i(f"s_add_u32 m0, {s(sM0)}, {st_*5120 + i*1024}\ns_nop 0")
            wdd.vm(f"buffer_load_dwordx4 {v(vo+i)}, {s(sWD,4)}, {s(sSo)} offen lds", "wd")
        wdd.i(f"s_add_u32 {s(sSo)}, {s(sSo)}, {32*1280}")
    o.i(f"v_mov_b32 {v(onesr)}, 0x3f803f80")
    for k in range(8): o.i(f"v_mov_b32 {v(acc+k)}, 0")
    for it in range(4):
        o.wvm(("xs", it))
        if it == 3:
            o.add(wdd); o.i(f"v_mov_b32 {v(vPA)}, 0"); poll_issue(o, go_loads(vPA), "go")
        for k in range(20):
            o.i(f"v_dot2c_f32_bf16 {v(acc+it)}, {v(xr+20*it+k)}, {v(onesr)}\nv_dot2c_f32_bf16 {v(acc+4+it)}, {v(xr+20*it+k)}, {v(xr+20*it+k)}")
    for sh in (8, 4, 2, 1):
        for k in range(8): o.i(f"v_add_f32_dpp {v(acc+k)}, {v(acc+k)}, {v(acc+k)} row_ror:{sh} row_mask:0xf bank_mask:0xf")
    for it in range(4):
        ln_finalize(o, acc + it, acc + 4 + it, res + 4 + it, res + it, vt0)
        o.i(f"v_rcp_f32 {v(res+it)}, {v(res+it)}\nv_mul_f32 {v(res+4+it)}, -{v(res+4+it)}, {v(res+it)}".replace("v_mul_f32", "v_mul_f32_e64"))
    o.i(f"v_lshlrev_b32 {v(vt0)}, 5, {v(vG)}\nv_cmp_eq_u32 vcc, 0, {v(vJ)}\nv_cndmask_b32 {v(vt0)}, {v(vFOc)}, {v(vt0)}, vcc\ns_lshl_b32 {s(sT[0])}, {s(sT[0])}, 7\ns_add_u32 {s(sT[0])}, {s(sT[0])}, {STATS}")
    for h in range(2): o.vm(f"buffer_store_dwordx4 {v(res+4*h,4)}, {v(vt0)}, {s(sWS,4)}, {s(sT[0])} offen offset:{16*h} sc1")
    poll_check(o, go_loads(vPA), "go")
    o.i(f"s_add_u32 {s(sT[0])}, {s(sI)}, {FS}\ns_lshl_b32 {s(sT[0])}, {s(sT[0])}, 7")
    o.wvm0(); o.i("s_barrier"); flag_store(o, s(sT[0]))
    stamp(o, 1)
    va0 = VR.get()
    o.i(f"v_and_b32 {v(vt0)}, 1, {v(vG)}\nv_lshl_add_u32 {v(vt0)}, {v(vt0)}, 2, {v(vr)}\nv_lshrrev_b32 {v(vt1)}, 1, {v(vG)}\nv_lshl_add_u32 {v(vt0)}, {v(vt1)}, 4, {v(vt0)}\nv_mul_u32_u24 {v(vt0)}, 160, {v(vt0)}\nv_lshl_add_u32 {v(vt0)}, {v(vc)}, 3, {v(vt0)}\nv_add_u32 {v(va0)}, {s(sM0)}, {v(vt0)}")
    o.i(f"s_mul_i32 {s(sOut)}, {s(sI)}, 61440\ns_add_u32 {s(sOut)}, {s(sOut)}, {s(sM0)}\ns_add_u32 {s(sOut)}, {s(sOut)}, {WDF_WS}")
    for i in range(15):
        st_, dl = divmod(i, 5)
        for rd in range(2):
            o.lg(f"ds_read_b64_tr_b16 {v(fr+4*i+2*rd,2)}, {v(va0)} offset:{st_*5120 + rd*1280 + dl*32}", ("t", i))
        if i >= 4: frag_out(o, i - 4)
    for i in range(11, 15): frag_out(o, i)
    o.i(f"s_add_u32 {s(sI)}, {s(sI)}, {FD}\ns_lshl_b32 {s(sI)}, {s(sI)}, 7")
    o.wvm0(); o.i("s_barrier"); flag_store(o, s(sI))
    dprep = o
    o = S(); o.label("L_ptail")
    stamp(o, 2)
    o.i(f"s_lshl_b32 {s(sT[5])}, {s(sCB)}, 9\ns_add_u32 {s(sT[5])}, {s(sT[5])}, {FW*128}\nv_lshlrev_b32 {v(vPA)}, 7, {v(vc)}")
    poll(o, [(vPoll, vPA, sWS, s(sT[5]), 0)])
    for g in w_loads(0, 60): o.add(g)
    o.wvm0()
    stamp(o, 5)
    f2_setup(o, 0); h_dma_setup(o, 0)
    poll(o, f2_loads(0))
    stamp(o, 7)
    for g in range(5): o.add(h_dma(g, 0))
    o.i(f"s_mov_b32 {s(sF2)}, 0")
    o.wvm0(); o.i("s_branch L_join")
    VR.release(m0); SR.release(sm0)
    return [head + wprep, dprep, o]

def gemms():
    o = S(); o.label("L_join")
    m0 = VR.mark()
    vt0, vt1, vt2 = VR.get(), VR.get(), VR.get()
    vH = VR.get(4, 1); vSTw = VR.get(); vSTr = VR.get(6, 1); vA = VR.get(3, 1)
    ones = VR.get(4); cs = VR.get(12)
    mg = VR.mark()
    acc = VR.get(48); sa = VR.get(8); hf = VR.get(32); csp = VR.get(36); kc = VR.get(24); tmp = VR.get(32); pk = VR.get(12)
    sAct, sF3, sRB2, sTH, sDB = SR.get(), SR.get(), SR.get(), SR.get(), SR.get()
    sM = sP[1:4]
    o.i(f"v_bfe_u32 {v(vt0)}, {v(vL)}, 2, 2\nv_lshl_add_u32 {v(vt1)}, {v(vG)}, 3, {v(vt0)}\nv_lshlrev_b32 {v(vt1)}, 7, {v(vt1)}\nv_and_b32 {v(vt2)}, 3, {v(vL)}\nv_lshl_add_u32 {v(vt1)}, {v(vt2)}, 3, {v(vt1)}\nv_add_u32 {v(vt1)}, {L_R1}, {v(vt1)}")
    o.i(f"v_lshrrev_b32 {v(vt0)}, 1, {v(vt0)}\nv_and_b32 {v(vt2)}, 1, {v(vG)}\nv_lshl_or_b32 {v(vt0)}, {v(vt2)}, 1, {v(vt0)}")
    for sg in range(4):
        o.i(f"s_add_u32 {s(sT[0])}, {s(sW)}, {sg}\ns_and_b32 {s(sT[0])}, {s(sT[0])}, 3\nv_xor_b32 {v(vt2)}, {s(sT[0])}, {v(vt0)}\nv_lshl_add_u32 {v(vH+sg)}, {v(vt2)}, 5, {v(vt1)}")
    for k in range(4): o.i(f"v_mov_b32 {v(ones+k)}, 0x3f803f80")
    late = S()
    late.i(f"v_lshlrev_b32 {v(vt1)}, 4, {v(vJ)}")
    for sg in range(4):
        late.i(f"s_add_u32 {s(sT[0])}, {s(sW)}, {sg}\ns_and_b32 {s(sT[0])}, {s(sT[0])}, 3\ns_lshl_b32 {s(sT[0])}, {s(sT[0])}, 8\nv_add_u32 {v(vSTr+sg)}, {s(sT[0])}, {v(vt1)}")
    late.i(f"v_cmp_gt_u32 vcc, 32, {v(vL)}\ns_nop 1\nv_cndmask_b32 {v(vSTr+4)}, {v(vSTr+1)}, {v(vSTr)}, vcc\nv_cndmask_b32 {v(vSTr+5)}, {v(vSTr+3)}, {v(vSTr+2)}, vcc")
    late.i(f"v_and_b32 {v(vt0)}, 1, {v(vG)}\nv_lshrrev_b32 {v(vt2)}, 1, {v(vG)}")
    for p in range(2):
        late.i(f"v_add3_u32 {v(vA+p)}, {v(vt0)}, {s(sW)}, {2*p}\nv_and_b32 {v(vA+p)}, 3, {v(vA+p)}\nv_lshl_add_u32 {v(vA+p)}, {v(vA+p)}, 8, {v(vt1)}\nv_lshl_add_u32 {v(vA+p)}, {v(vt2)}, 10, {v(vA+p)}")
    late.i(f"v_lshl_or_b32 {v(vA+2)}, {v(vt0)}, 1, {v(vt2)}\nv_add_u32 {v(vA+2)}, {s(sW)}, {v(vA+2)}\nv_and_b32 {v(vA+2)}, 3, {v(vA+2)}\nv_lshl_add_u32 {v(vA+2)}, {v(vA+2)}, 8, {v(vt1)}")
    late.i(f"s_mul_i32 {s(sAct)}, {s(sRB)}, 196608\ns_lshl_b32 {s(sT[0])}, {s(sCB)}, 2\ns_add_u32 {s(sT[0])}, {s(sT[0])}, {s(sW)}\ns_mul_i32 {s(sT[1])}, {s(sT[0])}, 3072\ns_add_u32 {s(sAct)}, {s(sAct)}, {s(sT[1])}\ns_add_u32 {s(sAct)}, {s(sAct)}, {ACT_WS}")
    late.i(f"s_lshl_b32 {s(sF3)}, {s(sRB)}, 4\ns_add_u32 {s(sF3)}, {s(sF3)}, {s(sCB)}\ns_add_u32 {s(sF3)}, {s(sF3)}, {F3A}\ns_lshl_b32 {s(sF3)}, {s(sF3)}, 7")
    late.i(f"v_and_b32 {v(vt0)}, 3, {v(vJ)}")
    for k in range(3): late.i(f"v_cmp_eq_u32 {s(sM[k],2)}, {k+1}, {v(vt0)}")
    late.i(f"s_mul_i32 {s(sT[1])}, {s(sT[0])}, 768\ns_add_u32 {s(sT[1])}, {s(sT[1])}, {CSUM}\nv_lshlrev_b32 {v(vt0)}, 4, {v(vG)}")
    for q in range(4):
        for tl in range(3):
            d = cs + 4 * tl if q == 0 else csp + 12 * (q - 1) + 4 * tl
            late.vm(f"buffer_load_dwordx4 {v(d,4)}, {v(vt0)}, {s(sWS,4)}, {s(sT[1])} offen offset:{192*q + 64*tl} sc1", "cs")
    nr = CFG["g2map"]; nd = 16 // nr; lr = nr.bit_length() - 1; nxr = 16 // nr; lx = nxr.bit_length() - 1
    late.i(f"s_and_b32 {s(sRB2)}, {s(sXc)}, {nxr-1}\ns_lshl_b32 {s(sRB2)}, {s(sRB2)}, {lr}\ns_and_b32 {s(sT[0])}, {s(sY)}, {nr-1}\ns_add_u32 {s(sRB2)}, {s(sRB2)}, {s(sT[0])}")
    late.i(f"s_bfe_u32 {s(sTH)}, {s(sY)}, {hex(0x10000 | lr)}\ns_lshr_b32 {s(sDB)}, {s(sXc)}, {lx}\ns_mul_i32 {s(sDB)}, {s(sDB)}, {nd}\ns_lshr_b32 {s(sT[0])}, {s(sY)}, {lr+1}\ns_add_u32 {s(sDB)}, {s(sDB)}, {s(sT[0])}")
    late_groups = [S([x]) for x in late]

    def hreads(half, st_):
        r = []
        for sg in range(4):
            for rd in range(2):
                g = S()
                if st_ == 16 and rd == 0: g.i(f"v_add_u32 {v(vH+sg)}, 0x10000, {v(vH+sg)}")
                g.lg(f"ds_read_b64_tr_b16 {v(hf+16*(st_%2)+4*sg+2*rd,2)}, {v(vH+sg)} offset:{(st_%16)*4096 + rd*512}", ("h", half, st_, sg))
                r.append(g)
        return r
    def g1_mfmas(half, st_):
        r = []
        for sg in range(4):
            h = v(hf + 16 * (st_ % 2) + 4 * sg, 4)
            for tl in range(3):
                g = S()
                if sg == 0 and tl == 0 and half == 0: g.wvm(("W", st_))
                if tl == 0 and sg % 2 == 0: g.wlg(("h", half, st_, sg + 1))
                d = v(acc + 12 * sg + 4 * tl, 4)
                g.i(f"v_mfma_f32_16x16x32_bf16 {d}, {a(12*st_+4*tl,4)}, {h}, {'0' if st_ == 0 else d}")
                r.append(g)
            if sg == 0:
                r.append(S().i(f"v_mfma_f32_16x16x32_bf16 {v(sa,4)}, {v(ones,4)}, {h}, {'0' if st_ == 0 else v(sa,4)}"))
                r.append(S().i(f"v_mfma_f32_16x16x32_bf16 {v(sa+4,4)}, {h}, {h}, {'0' if st_ == 0 else v(sa+4,4)}"))
        return r
    def g1_pass(half, events, extras):
        p = S()
        p.wvm(("H", half, 0)); p.i("s_barrier")
        for g in hreads(half, 0): p.add(g)
        for st_ in range(20):
            mm = g1_mfmas(half, st_)
            pre = S()
            if st_ % 4 == 3 and st_ < 19:
                pre.wvm([("H", half, st_ // 4 + 1)] + events.get(st_, ([], None))[0]); pre.i("s_barrier")
            if st_ in events and events[st_][1] is not None: pre.add(events[st_][1])
            mm[0] = group(mm[0], pre)
            fill = hreads(half, st_ + 1) if st_ < 19 else []
            ex = extras.get(st_, [])
            body = []
            for k, g in enumerate(mm):
                g = group(g)
                if k < len(fill): g.add(fill[k])
                body.append(g)
            p.add(weave(body, ex, 6 if len(ex) <= 16 else 0) if ex else group(*body))
        return p
    def gelu(items):
        e = S()
        T = lambda k: tmp + 4 * k
        for k, (g, u, q, d) in enumerate(items): e.i(f"v_pk_mul_f32 {v(T(k),2)}, {v(g,2)}, {v(g,2)}")
        for k, (g, u, q, d) in enumerate(items): e.i(f"v_pk_fma_f32 {v(T(k),2)}, {v(T(k),2)}, {v(q+2,2)}, {v(q,2)} op_sel:[0,0,1] op_sel_hi:[1,0,1]")
        for k, (g, u, q, d) in enumerate(items): e.i(f"v_pk_mul_f32 {v(T(k),2)}, {v(T(k),2)}, {v(g,2)}")
        for k, (g, u, q, d) in enumerate(items): e.i(f"v_exp_f32 {v(T(k))}, {v(T(k))}\nv_exp_f32 {v(T(k)+1)}, {v(T(k)+1)}\nv_pk_mul_f32 {v(T(k)+2,2)}, {v(g,2)}, {v(u,2)}")
        for k, (g, u, q, d) in enumerate(items): e.i(f"v_pk_fma_f32 {v(T(k),2)}, {v(T(k),2)}, {v(q+2,2)}, {v(q+2,2)} op_sel:[0,1,1] op_sel_hi:[1,1,1]")
        for k, (g, u, q, d) in enumerate(items): e.i(f"v_rcp_f32 {v(T(k))}, {v(T(k))}\nv_rcp_f32 {v(T(k)+1)}, {v(T(k)+1)}")
        for k, (g, u, q, d) in enumerate(items): e.i(f"v_pk_mul_f32 {v(T(k),2)}, {v(T(k),2)}, {v(T(k)+2,2)}")
        for k, (g, u, q, d) in enumerate(items): e.i(f"v_cvt_pk_bf16_f32 {v(d)}, {v(T(k))}, {v(T(k)+1)}")
        return e
    def g1_epilogue(half, mid):
        e = S(); stx = L_R1 + 4096 * half
        q = tmp
        e.i(f"v_cndmask_b32 {v(sa+4)}, {v(sa+4)}, {v(sa+5)}, {s(sM[0],2)}\nv_cndmask_b32 {v(sa+4)}, {v(sa+4)}, {v(sa+6)}, {s(sM[1],2)}\nv_cndmask_b32 {v(sa+4)}, {v(sa+4)}, {v(sa+7)}, {s(sM[2],2)}")
        ln_finalize(e, sa, sa + 4, q, q + 3, q + 4)
        e.i(f"v_rcp_f32 {v(q+4)}, {v(q+3)}\nv_mul_f32 {v(q+3)}, {v(q+3)}, {v(q+3)}\nv_mul_f32 {v(q+1)}, {hex(f2u(C0))}, {v(q+4)}\nv_mul_f32 {v(q+2)}, {v(q+4)}, {v(q+4)}")
        e.i(f"v_mul_f32 {v(q+4)}, {hex(f2u(C1))}, {v(q+4)}\nv_mul_f32 {v(q+2)}, {v(q+2)}, {v(q+4)}\nv_xor_b32 {v(q)}, 0x80000000, {v(q)}\nv_add_u32 {v(vSTw)}, {stx}, {v(vSTr)}")
        e.i("s_mov_b32 exec_lo, 0x00F0000F\ns_mov_b32 exec_hi, 0xF0000F00")
        e.lg(f"ds_write_b128 {v(vSTw)}, {v(q,4)}")
        e.i("s_mov_b64 exec, -1")
        if mid is not None: e.add(mid)
        for k in range(6): e.i(f"v_add_u32 {v(tmp+8+k)}, {stx}, {v(vSTr+k)}")
        e.wlg0(); e.i("s_barrier")
        for k in range(6): e.lg(f"ds_read_b128 {v(kc+4*k,4)}, {v(tmp+8+k)}", ("kc", half, k))
        if half == 0:
            e.wvm("cs")
            for qq in range(3):
                for k in range(6): e.i(f"v_pk_add_f32 {v(cs+2*k,2)}, {v(cs+2*k,2)}, {v(csp+12*qq+2*k,2)}")
        for sg in range(4):
            e.wlg(("kc", half, sg))
            for k in range(6):
                d = v(acc + 12 * sg + 2 * k, 2)
                e.i(f"v_pk_fma_f32 {d}, {v(cs+2*k,2)}, {v(kc+4*sg,2)}, {d} op_sel_hi:[1,0,1]")
        for p in range(2):
            for r in range(4): e.i(f"v_permlane32_swap_b32 {v(acc+24*p+8+r)}, {v(acc+24*p+20+r)}")
        e.wlg(("kc", half, 5))
        for p in range(3):
            if p < 2: items = [(acc + 12 * sg + 2 * h, acc + 12 * sg + 4 + 2 * h, kc + 4 * sg, pk + 4 * p + 2 * (sg % 2) + h) for sg in (2 * p, 2 * p + 1) for h in range(2)]
            else: items = [(acc + 24 * pp + 8 + 2 * h, acc + 24 * pp + 20 + 2 * h, kc + 16 + 4 * pp, pk + 8 + 2 * pp + h) for pp in range(2) for h in range(2)]
            e.add(gelu(items))
            for h in range(2): e.i(f"v_permlane16_swap_b32 {v(pk+4*p+h)}, {v(pk+4*p+2+h)}")
            e.vm(f"buffer_store_dwordx4 {v(pk+4*p,4)}, {v(vA+p)}, {s(sWS,4)}, {s(sAct)} offen offset:{2048 if p == 2 else 0} sc1", ("ast", half))
        return e

    stamp(o, 8)
    ev = S(); flag_store(ev, s(sF2), vFOc)
    pre19 = S(); f2_setup(pre19, 1); h_dma_setup(pre19, 1); poll_issue(pre19, f2_loads(1), "f2b")
    nl = len(late_groups); ex = {}
    for k, st_ in enumerate((4, 5, 6, 8, 9, 10, 12, 13)): ex[st_] = late_groups[k * nl // 8:(k + 1) * nl // 8]
    o.add(g1_pass(0, {3: ([("hst", 1)], ev), 18: ([], pre19)}, ex))
    stamp(o, 9)
    mid = S(); poll_check(mid, f2_loads(1), "f2b")
    for g in range(5): mid.add(h_dma(g, 1))
    for sg in range(4): mid.i(f"v_add_u32 {v(vH+sg)}, {(L_R2 - L_R1 - 0x10000) & 0xffffffff}, {v(vH+sg)}")
    o.add(g1_epilogue(0, mid))
    stamp(o, 10)
    ev = S(); flag_store(ev, s(sF3))
    ev.i(f"s_add_u32 {s(sF3)}, {s(sF3)}, {(F3B-F3A)*128}\ns_add_u32 {s(sAct)}, {s(sAct)}, {16*196608}")
    ev0 = S()
    ev0.i(f"s_lshl_b32 {s(sT[0])}, {s(sDB)}, 2\ns_add_u32 {s(sT[0])}, {s(sT[0])}, {s(sW)}\ns_mul_i32 {s(sWoff)}, {s(sT[0])}, 61440\ns_add_u32 {s(sWoff)}, {s(sWoff)}, {WDF_WS}")
    ev0.i(f"s_add_u32 {s(sT[5])}, {s(sT[0])}, {FD}\ns_lshl_b32 {s(sT[5])}, {s(sT[5])}, 7\nv_mov_b32 {v(vPA)}, 0")
    fd = [(vPoll, vPA, sWS, s(sT[5]), 0)]
    poll_issue(ev0, fd, "fd")
    poll_check(ev, fd, "fd")
    wd = w_loads(0, 60, "D", 5); nb = CFG["wd_in_b"]; ex = {}; wi = 0
    for st_ in range(4, 19):
        n = min(-(-(nb - wi) // (19 - st_)), 3 * st_ - wi); ex[st_] = wd[wi:wi + n]; wi += n
    o.add(g1_pass(1, {0: ([], ev0), 3: ([("ast", 0)], ev)}, ex))
    stamp(o, 11)
    o.add(g1_epilogue(1, None))
    VR.release(mg)
    ac2 = [VR.get(40), VR.get(40)]; af = VR.get(96); rt = VR.get(32)
    vAo, vRw, vRr, vRr2, vOo, vOo2 = [vH, vH + 1, vH + 2, vH + 3, vSTr, vSTr + 1]; vRes = [vSTr + 2, vSTr + 3]
    sA2, sRes, sOo = SR.get(), SR.get(), SR.get()
    QS = 512 + 16 * CFG.get("reda", 3); TS = 10 * QS; WS_ = 2 * TS
    o.i(f"s_lshl_b32 {s(sT[5])}, {s(sRB2)}, 2\ns_add_u32 {s(sT[5])}, {s(sT[5])}, {s(sW)}\ns_lshl_b32 {s(sT[5])}, {s(sT[5])}, 9\ns_add_u32 {s(sT[5])}, {s(sT[5])}, {F3A*128}\ns_add_u32 {s(sT[6])}, {s(sT[5])}, {(F3B-F3A)*128}")
    o.i(f"v_and_b32 {v(vPA)}, 3, {v(vL)}\nv_lshlrev_b32 {v(vPA)}, 7, {v(vPA)}")
    f3 = [[(vPoll, vPA, sWS, s(sT[5]), 0)], [(vPoll, vPA, sWS, s(sT[6]), 0)]]
    poll_issue(o, f3[0], "f3a")
    o.i(f"v_lshlrev_b32 {v(vAo)}, 10, {v(vG)}\nv_lshl_add_u32 {v(vAo)}, {v(vJ)}, 4, {v(vAo)}")
    o.i(f"s_mul_i32 {s(sA2)}, {s(sRB2)}, 196608\ns_mul_i32 {s(sT[0])}, {s(sW)}, 49152\ns_add_u32 {s(sA2)}, {s(sA2)}, {s(sT[0])}\ns_lshl_b32 {s(sT[0])}, {s(sTH)}, 9\ns_add_u32 {s(sA2)}, {s(sA2)}, {s(sT[0])}\ns_add_u32 {s(sA2)}, {s(sA2)}, {ACT_WS}")
    o.i(f"s_lshr_b32 {s(sT[0])}, {s(sW)}, 1\ns_lshl_b32 {s(sT[1])}, {s(sTH)}, 1\ns_xor_b32 {s(sT[0])}, {s(sT[0])}, {s(sT[1])}\nv_and_b32 {v(vt0)}, 2, {v(vG)}\nv_xor_b32 {v(vt0)}, {s(sT[0])}, {v(vt0)}")
    o.i(f"v_lshlrev_b32 {v(vt1)}, 9, {v(vG)}\nv_lshl_add_u32 {v(vt1)}, {v(vJ)}, 1, {v(vt1)}\nv_lshl_add_u32 {v(vRes[0])}, {v(vt0)}, 5, {v(vt1)}\nv_xor_b32 {v(vRes[1])}, 32, {v(vRes[0])}")
    o.i(f"s_mul_i32 {s(sRes)}, {s(sRB2)}, 81920\ns_mul_i32 {s(sT[0])}, {s(sDB)}, 10240\ns_add_u32 {s(sRes)}, {s(sRes)}, {s(sT[0])}\ns_lshl_b32 {s(sT[0])}, {s(sW)}, 7\ns_add_u32 {s(sRes)}, {s(sRes)}, {s(sT[0])}\ns_add_u32 {s(sRes)}, {s(sRes)}, {HT_WS}")
    for k in range(0, 80, 2): o.i(f"v_mov_b64 {v(ac2[0]+k,2)}, 0")
    def res_loads(q, r, count):
        for half in range(2):
            for dl in range(5):
                if dl % 2 == 0: q.i(f"s_add_u32 {s(sT[1])}, {s(sRes)}, {half*16*81920 + dl*2048}")
                for t2 in range(2):
                    txt = f"buffer_load_short_d16_hi {v(ac2[half]+20*t2+4*dl+r)}, {v(vRes[t2])}, {s(sWS,4)}, {s(sT[1])} offen offset:{2048*(dl%2)} sc1"
                    if count: q.vm(txt, "res")
                    else: q.i(txt)
    for r in range(1, 4):
        o.i(f"s_cmp_eq_u32 {s(sW)}, {r}\ns_cbranch_scc1 L_res{r}")
        slow.label(f"L_res{r}"); res_loads(slow, r, False); slow.i("s_branch L_resd")
    res_loads(o, 0, True); o.label("L_resd")
    o.wvm(("ast", 1)); o.i("s_barrier"); flag_store(o, s(sF3))
    stamp(o, 12)
    def act_loads(half):
        r = []
        for st_ in range(12):
            g = S()
            for t2 in range(2): g.vm(f"buffer_load_dwordx4 {v(af+8*st_+4*t2,4)}, {v(vAo)}, {s(sWS,4)}, {s(sA2)} offen offset:{256*t2} sc1", ("a", half, st_))
            g.i(f"s_add_u32 {s(sA2)}, {s(sA2)}, {4096 if st_ < 11 else 16*196608 - 11*4096}")
            r.append(g)
        return r
    poll_check(o, f3[0], "f3a")
    al = act_loads(0)
    for st_ in range(12):
        while wi < 5 * (st_ + 1): o.add(wd[wi]); wi += 1
        o.add(al[st_])
    o.i(f"s_mul_i32 {s(sT[0])}, {s(sW)}, {WS_}\nv_lshrrev_b32 {v(vt0)}, 1, {v(vG)}\nv_mul_u32_u24 {v(vRw)}, {QS}, {v(vt0)}\nv_and_b32 {v(vt0)}, 1, {v(vG)}\nv_lshl_add_u32 {v(vRw)}, {v(vt0)}, 8, {v(vRw)}\nv_lshl_add_u32 {v(vRw)}, {v(vJ)}, 4, {v(vRw)}\nv_add_u32 {v(vRw)}, {s(sT[0])}, {v(vRw)}")
    o.i(f"s_lshr_b32 {s(sT[0])}, {s(sW)}, 1\ns_mul_i32 {s(sT[0])}, {s(sT[0])}, {TS}\ns_and_b32 {s(sT[1])}, {s(sW)}, 1\ns_lshl_b32 {s(sT[1])}, {s(sT[1])}, 7\ns_add_u32 {s(sT[0])}, {s(sT[0])}, {s(sT[1])}\ns_movk_i32 {s(sT[1])}, 1280")
    for add, rr, oo in ((0, vRr, vOo), (64, vRr2, vOo2)):
        src = vL if add == 0 else vJ
        o.i(f"v_add_u32 {v(vt0)}, {add}, {v(src)}\nv_mul_u32_u24 {v(vt1)}, 6554, {v(vt0)}\nv_lshrrev_b32 {v(vt1)}, 16, {v(vt1)}\nv_mul_u32_u24 {v(vt2)}, 10, {v(vt1)}\nv_sub_u32 {v(vt0)}, {v(vt0)}, {v(vt2)}")
        o.i(f"v_mul_u32_u24 {v(rr)}, {QS}, {v(vt0)}\nv_lshl_add_u32 {v(rr)}, {v(vt1)}, 4, {v(rr)}\nv_add_u32 {v(rr)}, {s(sT[0])}, {v(rr)}")
        o.i(f"v_lshlrev_b32 {v(vt0)}, 4, {v(vt0)}\nv_mad_u32_u24 {v(oo)}, {v(vt1)}, {s(sT[1])}, {v(vt0)}")
    o.i(f"s_lshl_b32 {s(sOo)}, {s(sRB2)}, 2\ns_add_u32 {s(sOo)}, {s(sOo)}, {s(sW)}\ns_lshl_b32 {s(sOo)}, {s(sOo)}, 1\ns_add_u32 {s(sOo)}, {s(sOo)}, {s(sTH)}\ns_mul_i32 {s(sOo)}, {s(sOo)}, {8*1280}\ns_mul_i32 {s(sT[0])}, {s(sDB)}, 160\ns_add_u32 {s(sOo)}, {s(sOo)}, {s(sT[0])}")
    def g2_pass(half, at):
        p = S()
        for st_ in range(12):
            if st_ in at: p.add(at[st_])
            p.wvm([("a", half, st_), ("D", st_), "res"])
            for t2 in range(2):
                for dl in range(5):
                    d = v(ac2[half] + 20 * t2 + 4 * dl, 4)
                    p.i(f"v_mfma_f32_16x16x32_bf16 {d}, {a(20*st_+4*dl,4)}, {v(af+8*st_+4*t2,4)}, {d}")
        return p
    def reduce_out(half, sc):
        e = S(); base = half * 4 * WS_
        assert base + 3 * WS_ + 256 < 65536 * 2
        for t2 in range(2):
            for dl in range(5):
                e.lg(f"ds_write_b128 {v(vRw)}, {v(ac2[half]+20*t2+4*dl,4)} offset:{t2*TS + dl*2*QS}")
        e.wlg0(); e.i("s_barrier")
        for ps, (rr, oo) in enumerate(((vRr, vOo), (vRr2, vOo2))):
            if ps == 1: e.i("s_mov_b64 exec, 0xffff")
            for w_ in range(4):
                for h in range(2): e.lg(f"ds_read_b128 {v(rt+8*w_+4*h,4)}, {v(rr)} offset:{w_*WS_ + 256*h}", ("r", half, ps, w_))
            for w_ in range(1, 4):
                e.wlg(("r", half, ps, w_))
                for k in range(4): e.i(f"v_pk_add_f32 {v(rt+2*k,2)}, {v(rt+2*k,2)}, {v(rt+8*w_+2*k,2)}")
            d = ac2[half] + 4 * ps
            for k in range(4): e.i(f"v_cvt_pk_bf16_f32 {v(d+k)}, {v(rt+2*k)}, {v(rt+2*k+1)}")
            e.vm(f"buffer_store_dwordx4 {v(d,4)}, {v(oo)}, {s(sOUT,4)}, {s(sOo)} offen{sc}")
        e.i("s_mov_b64 exec, -1")
        if half == 0:
            e.i(f"s_add_u32 {s(sOo)}, {s(sOo)}, {1024*1280}")
            for r in (vRw, vRr, vRr2): e.i(f"v_add_u32 {v(r)}, {4*WS_}, {v(r)}")
        return e
    pi = S(); poll_issue(pi, f3[1], "f3b")
    o.add(g2_pass(0, {10: pi}))
    stamp(o, 13)
    if CFG.get("redA_first", 1): o.add(reduce_out(0, CFG["out_sc_a"]))
    poll_check(o, f3[1], "f3b")
    for g in act_loads(1): o.add(g)
    if not CFG.get("redA_first", 1): o.add(reduce_out(0, CFG["out_sc_a"]))
    stamp(o, 14)
    o.add(g2_pass(1, {}))
    o.add(reduce_out(1, CFG["out_sc_b"]))
    if DIAG:
        o.wvm0(); stamp(o, 15)
        o.i(f"s_lshl_b32 {s(sT[0])}, s2, 10\ns_add_u32 {s(sT[0])}, {s(sT[0])}, {DIAGO}\nv_lshlrev_b32 {v(vt0)}, 2, v0")
        o.i(f"buffer_store_dword {v(vStamps)}, {v(vt0)}, {s(sWS,4)}, {s(sT[0])} offen")
    o.label("L_end"); o.i("s_endpgm")
    VR.release(m0)
    return o

def build():
    pro = prologue()
    sm = SR.mark(); conv = role_conv(); SR.release(sm)
    preps = role_prep()
    gm = gemms()
    lines = resolve(S(pro + conv + gm))
    for p in preps: lines += resolve(p)
    lines += resolve(slow)
    lines, added = pad_hazards([l if l != "@@CODEPF@@" else "; @@CODEPF@@" for l in lines], verbose=CFG.get("verbose", 0))
    npf = CFG.get("npf", 9); tmp, pf = CFG["_pf"]
    pfc = []
    for k in range(npf):
        pfc.append(f"global_load_dwordx4 {v(pf,4)}, {v(tmp)}, {s(sP[0],2)}")
        if k < npf - 1: pfc.append(f"v_add_u32 {v(tmp)}, 4096, {v(tmp)}")
    k = lines.index("; @@CODEPF@@"); lines[k:k + 1] = pfc
    hdr = open("cdna_kernels/" + NAME[:-7] + ".s.ref").read().split("\n")
    hdr = [l for l in hdr[:hdr.index('.amdgcn_target "amdgcn-amd-amdhsa--gfx950"')] if "@launch" not in l]
    txt = "\n".join(hdr) + "\n; @launch grid=(256,1,1) block=(256,1,1) lds=163840\n"
    txt += f'.amdgcn_target "amdgcn-amd-amdhsa--gfx950"\n.text\n.globl {NAME}\n.p2align 8\n.type {NAME},@function\n{NAME}:\n'
    txt += "\n".join(l if l.endswith(":") else "    " + l for l in lines) + "\n"
    txt += f"L_codeend:\n.fill ({npf*4096} - (L_codeend - {NAME})) / 4, 4, 0xbf800000\n"
    txt += f""".section .rodata,"a"
.p2align 6
.amdhsa_kernel {NAME}
  .amdhsa_next_free_vgpr 512
  .amdhsa_next_free_sgpr 102
  .amdhsa_accum_offset 256
  .amdhsa_group_segment_fixed_size 0
  .amdhsa_kernarg_size 104
  .amdhsa_user_sgpr_count 2
  .amdhsa_user_sgpr_kernarg_segment_ptr 1
  .amdhsa_system_sgpr_workgroup_id_x 1
.end_amdhsa_kernel
"""
    sys.stderr.write(f"lines={len(lines)} nop_states_added={added} vmax={VR.max} smax={SR.max}\n")
    return txt

if __name__ == "__main__":
    open(sys.argv[1], "w").write(build())
```

```python
import sys, os, struct, math
sys.path.insert(0, os.path.dirname(os.path.abspath(__file__)))
from asmlib import *

NAME = "sequential_preLN__ssm_conv_h3__geglu_ffn__prompt_kernel"
CFG = dict(diag=0, g1map=(8, 4), g2map=4, wA=2, wd_in_b=36, out_sc_a=" sc1", out_sc_b="", epiA_after=0,
           poll2_at=3, chk2_at=5, f2a_after=2, spin=200000)
for kv in sys.argv[2:]:
    k, val = kv.split("=", 1); CFG[k] = eval(val)
DIAG = CFG["diag"]

FLAGS = 0
F1A, F1B, F2A, F2B, F3A, F3B, FW, FS, FD = 0, 160, 320, 480, 640, 896, 1152, 1216, 1248
NFLAG = 1280
EPOCH = 0x3ff00
STATS = 0x40000; CSUM = 0x48000; DIAGO = 0x60000
U_WS = 0x100000; XT_WS = 0x380000; HT_WS = 0x600000; WF_WS = 0x880000; WDF_WS = 0xC40000; ACT_WS = 0xE20000
WS_END = ACT_WS + 32 * 196608
OOB = 0x80000000
L_U = 0; U_ROW = 4576; L_HC = 18304; HC_COPY = 4160; HC_CH = 16640
L_SHU = 98304; L_SHX = 114688
L_R1 = 81920; L_R2 = 0
def f2u(x): return struct.unpack("<I", struct.pack("<f", x))[0]
C0 = -2.0 * math.log2(math.e) * math.sqrt(2.0 / math.pi); C1 = C0 * 0.044715

sX, sK, sV, sSH, sHK, sWG, sWU, sWD, sOUT, sDBG, sWS = 4, 8, 12, 16, 20, 24, 28, 32, 36, 40, 44
sDp = 48
SR = Regs("s", 50, 100)
sW = SR.get(); sXc = SR.get(); sY = SR.get(); sMask = SR.get(); sSpin = SR.get()
sRB = SR.get(); sCB = SR.get(); sWoff = SR.get(); sHoff = SR.get(); sM0 = SR.get(); sF2 = SR.get()
sT = [SR.get() for _ in range(8)]
sP = [SR.get(2) for _ in range(4)]
sN = SR.get(2)
sStamp = SR.get(2) if DIAG else None
VR = Regs("v", 1, 256)
vL = VR.get(); vL16 = VR.get(); vFO = VR.get(); vFOc = VR.get(); vJ = VR.get(); vG = VR.get(); vPA = VR.get(); vN = VR.get(2)
vPoll = VR.get(2); vPollB = VR.get(2); vPollC = VR.get(2); vStamps = VR.get() if DIAG else None
slow = S()
_lab = [0]
def newlab(p): _lab[0] += 1; return f"L_{p}{_lab[0]}"

def stamp(o, k):
    if not DIAG: return
    o.i(f"s_memrealtime {s(sStamp,2)}"); o.wlg0(); o.i(f"v_writelane_b32 {v(vStamps)}, {s(sStamp)}, {k}")

def poll_issue(o, loads, tag):
    for d, ad, srd, so, imm in loads:
        o.vm(f"buffer_load_dwordx2 {v(d,2)}, {v(ad)}, {s(srd,4)}, {so} offen offset:{imm} sc1", tag)
def poll_check(o, loads, tag):
    back = newlab("ok"); sl = newlab("spin")
    def chk(q):
        for k, (d, *_) in enumerate(loads):
            if k == 0: q.i(f"v_cmp_ne_u64 vcc, {v(vN,2)}, {v(d,2)}")
            else: q.i(f"v_cmp_ne_u64 {s(sP[0],2)}, {v(vN,2)}, {v(d,2)}\ns_or_b64 vcc, vcc, {s(sP[0],2)}")
    o.wvm(tag); chk(o); o.i(f"s_cbranch_vccnz {sl}"); o.label(back)
    slow.label(sl); slow.i(f"s_mov_b32 {s(sSpin)}, {CFG['spin']}")
    lp = newlab("lp"); slow.label(lp)
    for d, ad, srd, so, imm in loads:
        slow.i(f"buffer_load_dwordx2 {v(d,2)}, {v(ad)}, {s(srd,4)}, {so} offen offset:{imm} sc1")
    slow.i("s_waitcnt vmcnt(0)"); chk(slow)
    slow.i(f"s_cbranch_vccz {back}\ns_sub_u32 {s(sSpin)}, {s(sSpin)}, 1\ns_cmp_lg_u32 {s(sSpin)}, 0\ns_cbranch_scc1 {lp}\ns_branch {back}")
def poll(o, loads):
    t = newlab("pt"); poll_issue(o, loads, t); poll_check(o, loads, t)
def flag_store(o, soff, vfo=None):
    o.vm(f"buffer_store_dwordx2 {v(vN,2)}, {v(vFO if vfo is None else vfo)}, {s(sWS,4)}, {soff} offen sc1")
def nonce(o):
    o.i(f"s_add_u32 {s(sN)}, {s(sN)}, 0x7f4a7c15\ns_addc_u32 {s(sN+1)}, {s(sN+1)}, 0x9e3779b9\nv_mov_b32 {v(vN)}, {s(sN)}\nv_mov_b32 {v(vN+1)}, {s(sN+1)}")
def bf16r(o, d, x):
    o.i(f"v_cvt_pk_bf16_f32 {v(d)}, {v(x)}, {v(x)}\nv_lshlrev_b32 {v(d)}, 16, {v(d)}")
def ln_finalize(o, vsum, vsq, vmean, vsd, t):
    o.i(f"v_mul_f32 {v(vmean)}, {hex(f2u(1/640))}, {v(vsum)}")
    o.i(f"v_mul_f32 {v(t)}, {hex(f2u(1/640))}, {v(vsq)}")
    o.i(f"v_fma_f32 {v(t)}, -{v(vmean)}, {v(vmean)}, {v(t)}")
    o.i(f"v_max_f32 {v(t)}, 0, {v(t)}")
    bf16r(o, vmean, vmean); bf16r(o, t, t)
    o.i(f"v_add_f32 {v(t)}, {hex(f2u(1e-5))}, {v(t)}")
    bf16r(o, t, t)
    o.i(f"v_sqrt_f32 {v(t)}, {v(t)}")
    bf16r(o, vsd, t)

def prologue():
    o = S()
    o.i("s_cmp_ge_u32 s2, 256\ns_cbranch_scc1 L_end")
    for srd, off in ((sK, 8), (sV, 16), (sX, 0), (sSH, 24), (sHK, 32), (sWS, 96), (sWG, 56), (sWU, 64), (sWD, 72), (sOUT, 80), (sDp, 40)):
        o.i(f"s_load_dwordx2 {s(srd,2)}, s[0:1], {off}")
    if DIAG: o.i(f"s_memrealtime {s(sStamp,2)}")
    o.i(f"v_lshrrev_b32 {v(vPoll)}, 6, v0\nv_and_b32 {v(vL)}, 63, v0")
    o.i(f"v_readfirstlane_b32 {s(sW)}, {v(vPoll)}")
    o.i(f"s_and_b32 {s(sXc)}, s2, 7\ns_lshr_b32 {s(sY)}, s2, 3\ns_mov_b32 {s(sMask)}, 0xffff0000")
    for srd, n in ((sK, 2621440), (sV, 2621440), (sX, 2621440), (sSH, 5120), (sHK, 2621440), (sWS, WS_END),
                   (sWG, 1966080), (sWU, 1966080), (sWD, 1966080), (sOUT, 2621440)):
        o.i(f"s_mov_b32 {s(srd+2)}, {n}\ns_mov_b32 {s(srd+3)}, 0x00020000")
    o.i(f"v_lshlrev_b32 {v(vL16)}, 4, {v(vL)}\nv_and_b32 {v(vJ)}, 15, {v(vL)}\nv_lshrrev_b32 {v(vG)}, 4, {v(vL)}")
    o.i(f"v_bfrev_b32 {v(vFOc)}, 1\nv_cmp_ne_u32 vcc, 0, v0\nv_cndmask_b32 {v(vFO)}, 0, {v(vFOc)}, vcc")
    R, C = CFG["g1map"]; lr = R.bit_length() - 1; nxr = 16 // R; lx = nxr.bit_length() - 1
    o.i(f"s_and_b32 {s(sRB)}, {s(sXc)}, {nxr-1}\ns_lshl_b32 {s(sRB)}, {s(sRB)}, {lr}\ns_and_b32 {s(sT[0])}, {s(sY)}, {R-1}\ns_add_u32 {s(sRB)}, {s(sRB)}, {s(sT[0])}")
    o.i(f"s_lshr_b32 {s(sCB)}, {s(sXc)}, {lx}\ns_mul_i32 {s(sCB)}, {s(sCB)}, {C}\ns_lshr_b32 {s(sT[0])}, {s(sY)}, {lr}\ns_add_u32 {s(sCB)}, {s(sCB)}, {s(sT[0])}")
    o.i(f"s_lshl_b32 {s(sWoff)}, {s(sCB)}, 2\ns_add_u32 {s(sWoff)}, {s(sWoff)}, {s(sW)}\ns_mul_i32 {s(sWoff)}, {s(sWoff)}, 61440\ns_add_u32 {s(sWoff)}, {s(sWoff)}, {WF_WS}")
    o.wlg0()
    if DIAG: o.i(f"v_mov_b32 {v(vStamps)}, 0\nv_writelane_b32 {v(vStamps)}, {s(sStamp)}, 0")
    o.i(f"s_load_dwordx2 {s(sN,2)}, {s(sWS,2)}, {EPOCH}")
    o.i(f"s_cmp_ge_u32 {s(sY)}, 20\ns_cbranch_scc1 L_prep")
    return o

def w_loads(i0, i1, tagp="W", per=3):
    r = []
    for i in range(i0, i1):
        g = S()
        g.vm(f"buffer_load_dwordx4 {a(4*i,4)}, {v(vL16)}, {s(sWS,4)}, {s(sWoff)} offen offset:{1024*(i%4)} sc1", (tagp, i // per))
        if i % 4 == 3: g.i(f"s_add_u32 {s(sWoff)}, {s(sWoff)}, 4096")
        r.append(g)
    return r
def h_dma_setup(o, half):
    o.i(f"s_add_u32 {s(sT[0])}, {s(sW)}, 1\ns_and_b32 {s(sT[0])}, {s(sT[0])}, 3\ns_lshl_b32 {s(sT[0])}, {s(sT[0])}, 12")
    o.i(f"s_mul_i32 {s(sHoff)}, {s(sRB)}, 81920\ns_add_u32 {s(sHoff)}, {s(sHoff)}, {s(sT[0])}\ns_add_u32 {s(sHoff)}, {s(sHoff)}, {HT_WS + half*16*81920}")
    o.i(f"s_add_u32 {s(sM0)}, {s(sT[0])}, {L_R1 if half == 0 else L_R2}")
def h_dma(gam, half):
    g = S()
    g.i(f"s_mov_b32 m0, {s(sM0)}\ns_add_u32 {s(sM0)}, {s(sM0)}, 16384")
    for q in range(4):
        g.vm(f"buffer_load_dwordx4 {v(vL16)}, {s(sWS,4)}, {s(sHoff)} offen offset:{1024*q} sc1 lds", ("H", half, gam))
    g.i(f"s_add_u32 {s(sHoff)}, {s(sHoff)}, 16384")
    return g
def f2_loads(half):
    base = (F2A if half == 0 else F2B) * 128
    return [(vPoll, vPA, sWS, s(sT[5]), 0), (vPollB, vPA, sWS, s(sT[6]), 0), (vPollC, vPA, sWS, s(sT[7]), 0)]
def f2_setup(o, half):
    base = (F2A if half == 0 else F2B) * 128
    o.i(f"v_lshlrev_b32 {v(vPA)}, 7, {v(vL)}")
    o.i(f"s_mov_b32 {s(sT[5])}, {base}\ns_mov_b32 {s(sT[6])}, {base + 64*128}\ns_mov_b32 {s(sT[7])}, {base + 96*128}")

def role_conv():
    o = S(); m0 = VR.mark()
    sCI, sCBK, sTBK, sCH, sU, sD = SR.get(), SR.get(), SR.get(), SR.get(), SR.get(), SR.get(2)
    o.i(f"s_mul_i32 {s(sCI)}, {s(sXc)}, 20\ns_add_u32 {s(sCI)}, {s(sCI)}, {s(sY)}\ns_lshr_b32 {s(sCBK)}, {s(sCI)}, 4\ns_and_b32 {s(sTBK)}, {s(sCI)}, 15")
    vAa, vBa, vUe, vXo, vSo, vHo = [VR.get() for _ in range(6)]
    m1 = VR.mark()
    vcgl, vtcl, vOff, vOffH, vt0, vt1 = [VR.get() for _ in range(6)]
    kr = VR.get(22); vr_ = VR.get(16); xr = VR.get(16); shr = VR.get(8); wt = VR.get(16)
    o.i(f"v_and_b32 {v(vcgl)}, 7, {v(vL)}\nv_lshrrev_b32 {v(vtcl)}, 3, {v(vL)}")
    o.i(f"s_and_b32 {s(sT[0])}, {s(sW)}, 1\ns_lshl_b32 {s(sT[1])}, {s(sTBK)}, 1\ns_add_u32 {s(sT[0])}, {s(sT[0])}, {s(sT[1])}")
    o.i(f"s_lshr_b32 {s(sT[1])}, {s(sW)}, 1\ns_lshl_b32 {s(sT[2])}, {s(sCBK)}, 1\ns_add_u32 {s(sT[1])}, {s(sT[1])}, {s(sT[2])}")
    o.i(f"s_mul_i32 {s(sT[2])}, {s(sT[0])}, {64*1280}\ns_lshl_b32 {s(sT[3])}, {s(sT[1])}, 6\ns_add_u32 {s(sT[2])}, {s(sT[2])}, {s(sT[3])}")
    o.i(f"v_mul_u32_u24 {v(vOff)}, {8*1280}, {v(vtcl)}\nv_lshl_add_u32 {v(vOff)}, {v(vcgl)}, 3, {v(vOff)}\nv_add_u32 {v(vOff)}, {s(sT[2])}, {v(vOff)}")
    o.i(f"v_subrev_u32 {v(vOffH)}, 3840, {v(vOff)}\nv_cmp_gt_u32 vcc, 3840, {v(vOff)}\ns_movk_i32 {s(sT[4])}, 5120\nv_cndmask_b32 {v(vOffH)}, {v(vOffH)}, {v(vFOc)}, vcc")
    for r in range(8):
        so = "0" if r < 4 else s(sT[4])
        o.vm(f"buffer_load_dwordx2 {v(kr+6+2*r,2)}, {v(vOff)}, {s(sK,4)}, {so} offen offset:{1280*(r%4)}", ("k", r))
        if r < 3: o.vm(f"buffer_load_dwordx2 {v(kr+2*r,2)}, {v(vOffH)}, {s(sK,4)}, 0 offen offset:{1280*r}", "kh")
    o.i(f"s_lshl_b32 {s(sT[3])}, {s(sT[1])}, 8\nv_lshlrev_b32 {v(vt0)}, 5, {v(vcgl)}")
    o.vm(f"buffer_load_dwordx4 {v(shr,4)}, {v(vt0)}, {s(sSH,4)}, {s(sT[3])} offen", "sh")
    o.vm(f"buffer_load_dwordx4 {v(shr+4,4)}, {v(vt0)}, {s(sSH,4)}, {s(sT[3])} offen offset:16", "sh")
    for r in range(8):
        so = "0" if r < 4 else s(sT[4])
        o.vm(f"buffer_load_dwordx2 {v(vr_+2*r,2)}, {v(vOff)}, {s(sV,4)}, {so} offen offset:{1280*(r%4)}", ("v", r))
    hd = VR.get(16); hm = VR.get(8); vM0, vM1 = VR.get(), VR.get()
    o.i(f"s_lshl_b32 {s(sCH)}, {s(sCI)}, 2\ns_add_u32 {s(sCH)}, {s(sCH)}, {s(sW)}\ns_lshl_b32 {s(sT[5])}, {s(sCH)}, 12")
    o.i(f"s_lshr_b32 {s(sT[6])}, {s(sCH)}, 1\ns_lshl_b32 {s(sT[6])}, {s(sT[6])}, 2\ns_load_dword {s(sD)}, {s(sDp,2)}, {s(sT[6])}")
    o.i(f"v_add_u32 {v(vM1)}, 1016, {v(vL16)}\nv_subrev_u32 {v(vM0)}, 8, {v(vL16)}\nv_cmp_eq_u32 vcc, 0, {v(vL)}\nv_cndmask_b32 {v(vM0)}, {v(vM0)}, {v(vFOc)}, vcc")
    second = S()
    for r in range(8):
        so = "0" if r < 4 else s(sT[4])
        second.vm(f"buffer_load_dwordx2 {v(xr+2*r,2)}, {v(vOff)}, {s(sX,4)}, {so} offen offset:{1280*(r%4)}", "x")
    for it in range(4):
        second.vm(f"buffer_load_dwordx4 {v(hd+4*it,4)}, {v(vL16)}, {s(sHK,4)}, {s(sT[5])} offen offset:{1024*it}", "hk")
        second.vm(f"buffer_load_dwordx2 {v(hm+2*it,2)}, {v(vM0 if it == 0 else vM1)}, {s(sHK,4)}, {s(sT[5])} offen offset:{1024*(it-1) if it else 0}", "hk")
    if CFG.get("second_early", 0): o.add(second)
    vSW, vSR, vSt = VR.get(), VR.get(4, 1), VR.get()
    o.i(f"s_lshl_b32 {s(sT[2])}, {s(sW)}, 12\ns_add_u32 {s(sT[2])}, {s(sT[2])}, {L_SHU}")
    o.i(f"v_xor_b32 {v(vt0)}, {v(vtcl)}, {v(vcgl)}\nv_lshlrev_b32 {v(vt0)}, 4, {v(vt0)}\nv_lshl_add_u32 {v(vSW)}, {v(vcgl)}, 9, {v(vt0)}\nv_add_u32 {v(vSW)}, {s(sT[2])}, {v(vSW)}")
    o.i(f"v_lshrrev_b32 {v(vt0)}, 5, {v(vL)}\nv_xor_b32 {v(vt0)}, {v(vt0)}, {v(vcgl)}\nv_lshlrev_b32 {v(vt0)}, 4, {v(vt0)}\nv_lshl_add_u32 {v(vSR)}, {v(vtcl)}, 7, {v(vt0)}\nv_add_u32 {v(vSR)}, {s(sT[2])}, {v(vSR)}")
    for i in range(1, 4): o.i(f"v_xor_b32 {v(vSR+i)}, {32*i}, {v(vSR)}")
    o.i(f"v_lshlrev_b32 {v(vSt)}, 12, {v(vtcl)}\nv_lshl_add_u32 {v(vSt)}, {v(vcgl)}, 4, {v(vSt)}")
    o.i(f"s_lshl_b32 {s(sU)}, {s(sT[1])}, 17\ns_lshl_b32 {s(sT[3])}, {s(sT[0])}, 7\ns_add_u32 {s(sU)}, {s(sU)}, {s(sT[3])}")
    o.i(f"s_mul_i32 {s(sT[2])}, {s(sW)}, {HC_CH}\ns_add_u32 {s(sT[2])}, {s(sT[2])}, {L_HC + 56}")
    o.i(f"v_and_b32 {v(vt0)}, 3, {v(vJ)}\nv_sub_u32 {v(vt0)}, 3, {v(vt0)}\nv_mul_u32_u24 {v(vAa)}, {HC_COPY}, {v(vt0)}\nv_lshrrev_b32 {v(vt0)}, 2, {v(vJ)}")
    o.i(f"v_lshl_add_u32 {v(vAa)}, {v(vt0)}, 3, {v(vAa)}\nv_lshlrev_b32 {v(vt0)}, 4, {v(vG)}\nv_sub_u32 {v(vAa)}, {v(vAa)}, {v(vt0)}\nv_add_u32 {v(vAa)}, {s(sT[2])}, {v(vAa)}")
    o.i(f"s_mul_i32 {s(sT[3])}, {s(sW)}, {U_ROW}\nv_lshl_add_u32 {v(vBa)}, {v(vJ)}, 1, {v(vG)}\nv_lshlrev_b32 {v(vBa)}, 4, {v(vBa)}\nv_add_u32 {v(vBa)}, {s(sT[3])}, {v(vBa)}")
    o.i(f"v_lshrrev_b32 {v(vt0)}, 1, {v(vG)}\nv_lshl_add_u32 {v(vUe)}, {v(vJ)}, 1, {v(vt0)}\nv_lshlrev_b32 {v(vUe)}, 4, {v(vUe)}\nv_and_b32 {v(vt1)}, 1, {v(vG)}\nv_lshlrev_b32 {v(vt1)}, 3, {v(vt1)}\nv_sub_u32 {v(vUe)}, {v(vUe)}, {v(vt1)}")
    o.i(f"s_add_u32 {s(sT[6])}, {s(sT[3])}, {L_U + 488}\nv_add_u32 {v(vUe)}, {s(sT[6])}, {v(vUe)}")
    o.i(f"v_lshl_add_u32 {v(vSo)}, {v(vJ)}, 2, {v(vG)}\nv_lshlrev_b32 {v(vXo)}, 3, {v(vSo)}\nv_lshlrev_b32 {v(vSo)}, 5, {v(vSo)}")
    o.i(f"s_bfe_u32 {s(sT[6])}, {s(sCH)}, 0x10001\ns_bfe_u32 {s(sT[7])}, {s(sCH)}, 0x10003\ns_lshl_b32 {s(sT[7])}, {s(sT[7])}, 1\ns_or_b32 {s(sT[6])}, {s(sT[6])}, {s(sT[7])}")
    o.i(f"v_and_b32 {v(vt0)}, 2, {v(vG)}\nv_bfe_u32 {v(vt1)}, {v(vJ)}, 1, 1\nv_or_b32 {v(vt0)}, {v(vt0)}, {v(vt1)}\nv_xor_b32 {v(vt0)}, {s(sT[6])}, {v(vt0)}\nv_lshlrev_b32 {v(vt0)}, 5, {v(vt0)}")
    o.i(f"v_and_b32 {v(vt1)}, 1, {v(vJ)}\nv_lshl_add_u32 {v(vt0)}, {v(vt1)}, 4, {v(vt0)}\nv_and_b32 {v(vt1)}, 1, {v(vG)}\nv_lshlrev_b32 {v(vt1)}, 2, {v(vt1)}\nv_lshrrev_b32 {v(vHo)}, 2, {v(vJ)}\nv_add_u32 {v(vHo)}, {v(vHo)}, {v(vt1)}")
    o.i(f"s_mov_b32 {s(sT[7])}, 81920\nv_mad_u32_u24 {v(vHo)}, {v(vHo)}, {s(sT[7])}, {v(vt0)}")
    zq = VR.get(4); vHW = VR.get()
    for k in range(4): o.i(f"v_mov_b32 {v(zq+k)}, 0")
    o.i(f"v_add_u32 {v(vt0)}, {s(sT[3])}, {v(vL16)}\nv_subrev_u32 {v(vt1)}, 30, {v(vL)}\nv_lshrrev_b32 {v(vHW)}, 1, {v(vt1)}\nv_mul_u32_u24 {v(vHW)}, {HC_COPY}, {v(vHW)}\nv_and_b32 {v(vt1)}, 1, {v(vt1)}\nv_lshl_add_u32 {v(vHW)}, {v(vt1)}, 4, {v(vHW)}")
    o.i(f"s_sub_u32 {s(sT[2])}, {s(sT[2])}, 56\nv_add_u32 {v(vHW)}, {s(sT[2])}, {v(vHW)}\nv_cmp_gt_u32 vcc, 30, {v(vL)}\nv_cndmask_b32 {v(vt0)}, {v(vHW)}, {v(vt0)}, vcc")
    o.i(f"s_mov_b32 exec_hi, 0x3f")
    o.lg(f"ds_write_b128 {v(vt0)}, {v(zq,4)}")
    o.i(f"s_mov_b32 exec_hi, -1\nv_add_u32 {v(vHW)}, {s(sT[2])}, {v(vL16)}")
    o.wlg0()
    o.i(f"s_bitcmp1_b32 {s(sCH)}, 0\ns_cselect_b32 {s(sT[6])}, 0, 16\ns_lshl_b32 {s(sD)}, {s(sD)}, {s(sT[6])}\ns_and_b32 {s(sD)}, {s(sD)}, {s(sMask)}\ns_mov_b32 {s(sD+1)}, {s(sD)}")
    o.i(f"s_lshl_b32 {s(sF2)}, {s(sCI)}, 7")
    nonce(o)
    kf = VR.get(44); uf = VR.get(32); vf = VR.get(4); up = VR.get(16)
    o.wvm("sh")
    for p in range(2):
        for m in range(4):
            for h in range(2):
                src = shr + 2 * (2 * p + h) + (m >> 1); d = wt + (p * 4 + m) * 2 + h
                o.i(f"v_lshlrev_b32 {v(d)}, 16, {v(src)}" if m % 2 == 0 else f"v_and_b32 {v(d)}, {s(sMask)}, {v(src)}")
    stamp(o, 1)
    if not CFG.get("second_early", 0): o.add(second)
    for r in range(11):
        for p in range(2):
            o.i(f"v_lshlrev_b32 {v(kf+4*r+2*p)}, 16, {v(kr+2*r+p)}\nv_and_b32 {v(kf+4*r+2*p+1)}, {s(sMask)}, {v(kr+2*r+p)}")
    for m in range(4):
        for t in range(8):
            for p in range(2):
                d = v(uf + 4 * t + 2 * p, 2); kk = v(kf + 4 * (t + 3 - m) + 2 * p, 2); w_ = v(wt + (p * 4 + m) * 2, 2)
                o.i(f"v_pk_mul_f32 {d}, {kk}, {w_}" if m == 0 else f"v_pk_fma_f32 {d}, {kk}, {w_}, {d}")
    o.wvm(("v", 7))
    for t in range(8):
        for p in range(2):
            o.i(f"v_lshlrev_b32 {v(kf+4*t+2*p)}, 16, {v(vr_+2*t+p)}\nv_and_b32 {v(kf+4*t+2*p+1)}, {s(sMask)}, {v(vr_+2*t+p)}")
    for t in range(8):
        for p in range(2):
            o.i(f"v_pk_mul_f32 {v(uf+4*t+2*p,2)}, {v(uf+4*t+2*p,2)}, {v(kf+4*t+2*p,2)}")
    for c in range(4):
        for q in range(4):
            o.i(f"v_cvt_pk_bf16_f32 {v(up+4*c+q)}, {v(uf+4*(7-2*q)+c)}, {v(uf+4*(6-2*q)+c)}")
        o.lg(f"ds_write_b128 {v(vSW)}, {v(up+4*c,4)} offset:{128*c}")
    def shuffle_out(base_off, wsbase, tag):
        for i in range(4): o.lg(f"ds_read_b128 {v(uf+4*i,4)}, {v(vSR+i)} offset:{1024*i + base_off}", (tag, i))
        for i in range(4):
            o.i(f"s_add_u32 {s(sT[6])}, {s(sU)}, {wsbase + 32768*i}")
            o.wlg((tag, i))
            o.vm(f"buffer_store_dwordx4 {v(uf+4*i,4)}, {v(vSt)}, {s(sWS,4)}, {s(sT[6])} offen sc1", tag + "st")
    shuffle_out(0, U_WS, "u")
    stamp(o, 2)
    o.wvm("x")
    o.i(f"s_mov_b32 {s(sT[2])}, 0x05040100\ns_mov_b32 {s(sT[3])}, 0x07060302")
    for c in range(4):
        for q in range(4):
            o.i(f"v_perm_b32 {v(up+4*c+q)}, {v(xr+2*(2*q+1)+(c>>1))}, {v(xr+2*(2*q)+(c>>1))}, {s(sT[2] if c % 2 == 0 else sT[3])}")
        o.lg(f"ds_write_b128 {v(vSW)}, {v(up+4*c,4)} offset:{128*c + L_SHX - L_SHU}")
    c1 = kf; c2 = kf + 4; c3 = kf + 8
    def copies(it):
        d = [hm + 2 * it, hm + 2 * it + 1] + [hd + 4 * it + k for k in range(4)]
        base = (it % 2) * 12
        for k in range(4): o.i(f"v_alignbit_b32 {v(c1+base+k)}, {v(d[k+2])}, {v(d[k+1])}, 16")
        for k in range(4): o.i(f"v_mov_b32 {v(c2+base+k)}, {v(d[k+1])}")
        for k in range(4): o.i(f"v_alignbit_b32 {v(c3+base+k)}, {v(d[k+1])}, {v(d[k])}, 16")
        for c, r in enumerate((hd + 4 * it, c1 + base, c2 + base, c3 + base)):
            o.lg(f"ds_write_b128 {v(vHW)}, {v(r,4)} offset:{c*HC_COPY + 32 + 1024*it}", ("hc", it))
    o.wvm("hk")
    copies(0); copies(1)
    o.wvm("ust"); o.i("s_barrier")
    flag_store(o, s(sF2))
    stamp(o, 3)
    shuffle_out(L_SHX - L_SHU, XT_WS, "x")
    copies(2); copies(3)
    o.i(f"v_lshlrev_b32 {v(vPA)}, 7, {v(vJ)}\ns_lshl_b32 {s(sT[5])}, {s(sCBK)}, 11")
    f1 = [(vPoll, vPA, sWS, s(sT[5]), 0)]
    poll_issue(o, f1, "f1a")
    o.wvm("xst"); o.i(f"s_barrier\ns_add_u32 {s(sT[6])}, {s(sF2)}, {F1B*128}")
    flag_store(o, s(sT[6]))
    poll_check(o, f1, "f1a")
    stamp(o, 4)
    o.i(f"s_mul_i32 {s(sT[3])}, {s(sW)}, {U_ROW}\ns_add_u32 {s(sT[3])}, {s(sT[3])}, {L_U + 480}\ns_mov_b32 m0, {s(sT[3])}")
    o.i(f"s_lshl_b32 {s(sU)}, {s(sCH)}, 12\ns_add_u32 {s(sT[6])}, {s(sU)}, {U_WS}")
    for q in range(4): o.vm(f"buffer_load_dwordx4 {v(vL16)}, {s(sWS,4)}, {s(sT[6])} offen offset:{1024*q} sc1 lds", "udma")
    o.i(f"s_lshl_b32 {s(sT[6])}, {s(sCBK)}, 4\ns_add_u32 {s(sT[6])}, {s(sT[6])}, {F1B}\nv_add_u32 {v(vt0)}, {s(sT[6])}, {v(vL)}\nv_add_u32 {v(vt1)}, {FS-16}, {v(vL)}\nv_cmp_gt_u32 vcc, 16, {v(vL)}")
    o.i(f"v_cndmask_b32 {v(vt0)}, {v(vt1)}, {v(vt0)}, vcc\ns_lshl_b32 {s(sT[6])}, {s(sCB)}, 2\ns_add_u32 {s(sT[6])}, {s(sT[6])}, {FW}\nv_and_b32 {v(vt1)}, 3, {v(vL)}\nv_add_u32 {v(vt1)}, {s(sT[6])}, {v(vt1)}")
    o.i(f"v_cmp_gt_u32 vcc, 48, {v(vL)}\nv_cndmask_b32 {v(vt0)}, {v(vt1)}, {v(vt0)}, vcc\nv_lshlrev_b32 {v(vPA)}, 7, {v(vt0)}")
    f2nd = [(vPoll, vPA, sWS, "0", 0)]
    VR.release(m1)
    accA = VR.get(16); accB = VR.get(16); fr = VR.get(128); xe = VR.get(8); st = VR.get(32); ue = VR.get(8); tm = VR.get(16)
    sXT, sHT = SR.get(), SR.get()
    o.i(f"s_add_u32 {s(sXT)}, {s(sU)}, {XT_WS}\ns_lshl_b32 {s(sHT)}, {s(sCH)}, 7\ns_add_u32 {s(sHT)}, {s(sHT)}, {HT_WS}")
    def slot(c): return ("A", c) if c < 8 else ("B", c - 8)
    def fA(c, M): return fr + (c % 2) * 64 + 8 * M
    def fB(c, b): return fr + (c % 2) * 64 + 8 * b + 4
    def reads(c):
        half, m = slot(c); n = 4 if half == "A" else 8; r = []
        if half == "A": order = [("B", 0), ("A", 0), ("B", 1), ("B", 2), ("B", 3), ("A", 1), ("A", 2), ("A", 3)]
        else: order = [("A", 0), ("B", 4), ("B", 5), ("B", 6), ("B", 7), ("A", 1), ("B", 3), ("A", 2), ("B", 2), ("A", 3), ("B", 1), ("A", 4), ("B", 0), ("A", 5), ("A", 6), ("A", 7)]
        for kind, q in order:
            if kind == "B": r.append(S().lg(f"ds_read_b128 {v(fB(c,q),4)}, {v(vBa)} offset:{L_U + 512*q - 64*m + 448}", ("f", c, "B", q)))
            else:
                r.append(S().lg(f"ds_read_b64 {v(fA(c,q),2)}, {v(vAa)} offset:{64*(8*q+m)}", ("f", c, "A", q)))
                r.append(S().lg(f"ds_read_b64 {v(fA(c,q)+2,2)}, {v(vAa)} offset:{64*(8*q+m)+8}", ("f", c, "A", q)))
        return r
    def mfmas(c):
        half, m = slot(c); lo, hi = (0, 4) if half == "A" else (4, 8); acc = accA if half == "A" else accB
        r = []; seen = set()
        for M in range(hi):
            bs = [jt - M for jt in range(lo, hi) if 0 <= jt - M]
            g0 = S().wlg([("f", c, "A", M)] + [("f", c, "B", b) for b in bs])
            for b in bs:
                d = v(acc + 4 * (M + b - lo), 4)
                cc = "0" if (m == 0 and M == 0) else d
                g = g0 if b == bs[0] else S()
                g.i(f"v_mfma_f32_16x16x32_bf16 {d}, {v(fA(c,M),4)}, {v(fB(c,b),4)}, {cc}")
                r.append(g)
        return r
    def epi_loads(half):
        r = []
        for q in range(4):
            jt = 4 * half + q
            r.append(S().vm(f"buffer_load_dwordx2 {v(xe+2*q,2)}, {v(vXo)}, {s(sWS,4)}, {s(sXT)} offen offset:{512*jt} sc1", ("el", half)))
        for q in range(4):
            jt = 4 * half + q
            g = S()
            if q % 2 == 0: g.i(f"s_mov_b32 {s(sT[4])}, {STATS + 2048*jt}")
            g.vm(f"buffer_load_dwordx4 {v(st+8*q,4)}, {v(vSo)}, {s(sWS,4)}, {s(sT[4])} offen offset:{2048*(q%2)} sc1", ("el", half))
            r.append(g)
            r.append(S().vm(f"buffer_load_dwordx4 {v(st+8*q+4,4)}, {v(vSo)}, {s(sWS,4)}, {s(sT[4])} offen offset:{2048*(q%2)+16} sc1", ("el", half)))
        return r
    def epilogue(half):
        e = S(); acc = accA if half == 0 else accB
        for q in range(4): e.lg(f"ds_read_b64 {v(ue+2*q,2)}, {v(vUe)} offset:{512*(4*half+q)}", ("ue", half))
        e.wvm(("el", half))
        for q in range(4):
            t = tm + 4 * q
            e.i(f"v_lshlrev_b32 {v(t)}, 16, {v(xe+2*q)}\nv_and_b32 {v(t+1)}, {s(sMask)}, {v(xe+2*q)}\nv_lshlrev_b32 {v(t+2)}, 16, {v(xe+2*q+1)}\nv_and_b32 {v(t+3)}, {s(sMask)}, {v(xe+2*q+1)}")
        for q in range(4):
            for h in range(2): e.i(f"v_pk_fma_f32 {v(st+8*q+2*h,2)}, {v(tm+4*q+2*h,2)}, {v(st+8*q+2*h,2)}, {v(st+8*q+4+2*h,2)}")
        e.wlg(("ue", half))
        for q in range(4):
            t = st + 8 * q + 4
            e.i(f"v_and_b32 {v(t)}, {s(sMask)}, {v(ue+2*q+1)}\nv_lshlrev_b32 {v(t+1)}, 16, {v(ue+2*q+1)}\nv_and_b32 {v(t+2)}, {s(sMask)}, {v(ue+2*q)}\nv_lshlrev_b32 {v(t+3)}, 16, {v(ue+2*q)}")
        for q in range(4):
            for h in range(2): e.i(f"v_pk_fma_f32 {v(acc+4*q+2*h,2)}, {v(st+8*q+4+2*h,2)}, {s(sD,2)}, {v(acc+4*q+2*h,2)}")
        for q in range(4):
            for h in range(2): e.i(f"v_pk_fma_f32 {v(tm+4*q+2*h,2)}, {v(st+8*q+2*h,2)}, {v(acc+4*q+2*h,2)}, {v(tm+4*q+2*h,2)}")
        for q in range(4):
            for h in range(2): e.i(f"v_cvt_pk_bf16_f32 {v(ue+2*q+h)}, {v(tm+4*q+2*h)}, {v(tm+4*q+2*h+1)}")
        for p in range(2):
            e.i(f"s_add_u32 {s(sT[4])}, {s(sHT)}, {(16*half + 8*p)*81920}")
            for h in range(2): e.i(f"v_permlane16_swap_b32 {v(ue+4*p+h)}, {v(ue+4*p+2+h)}")
            e.vm(f"buffer_store_dwordx4 {v(ue+4*p,4)}, {v(vHo)}, {s(sWS,4)}, {s(sT[4])} offen sc1", ("hst", half))
        return e
    o.wvm("udma"); o.wlg0()
    stamp(o, 5)
    for g in reads(0): o.add(g)
    wl = w_loads(0, 60); wi = 0
    p2, c2_, eA, fA_ = CFG["poll2_at"], CFG["chk2_at"], 8 + CFG["epiA_after"], 8 + CFG["epiA_after"] + CFG["f2a_after"]
    nB = 16 - max(c2_, 8); wA = CFG["wA"] * max(0, 8 - c2_); wtail = CFG.get("wtail", 9)
    for c in range(16):
        fill = reads(c + 1) if c < 15 else []
        extra = []
        if c == p2: poll_issue(o, f2nd, "f2nd")
        if c == c2_:
            poll_check(o, f2nd, "f2nd"); extra += epi_loads(0)
        if c == eA:
            stamp(o, 6); o.add(epilogue(0)); extra += epi_loads(1)
        if c == fA_:
            o.wvm(("hst", 0)); o.i(f"s_barrier\ns_add_u32 {s(sT[6])}, {s(sF2)}, {F2A*128}"); flag_store(o, s(sT[6]))
        if c == 15:
            f2_setup(o, 0); h_dma_setup(o, 0); poll_issue(o, f2_loads(0), "f2a")
        if c >= c2_ and c < 15:
            n = CFG["wA"] if c < 8 else -(-(60 - wtail - wi) // (15 - c))
            extra += wl[wi:wi + n]; wi += n
        mm = mfmas(c)
        body = weave(mm, fill, 0, min(len(mm), max(len(fill), 1)))
        if extra:
            idx = [k for k, op in enumerate(body) if op.text.startswith("v_mfma")]
            parts = []; prev = 0
            for k in idx[1:] + [len(body)]:
                kk = k
                while kk > 0 and kk <= len(body) and kk - 1 >= prev and body[kk - 1].kind == "wlg": kk -= 1
                parts.append(group(body[prev:kk])); prev = kk
            body = weave(parts, extra)
        o.add(body)
    stamp(o, 7)
    poll_check(o, f2_loads(0), "f2a")
    o.add(h_dma(0, 0)); o.add(h_dma(1, 0))
    o.add(epilogue(1))
    for g in (2, 3, 4): o.add(h_dma(g, 0))
    for g in wl[wi:]: o.add(g)
    o.i(f"v_mov_b32 {v(vFOc)}, {v(vFO)}\ns_add_u32 {s(sF2)}, {s(sF2)}, {F2B*128}")
    VR.release(m0)
    return o

def code_prefetch(o, tmp):
    o.i(f"s_getpc_b64 {s(sP[0],2)}"); o.label("L_pc")
    o.i(f"s_sub_u32 {s(sP[0])}, {s(sP[0])}, L_pc-{NAME}\ns_subb_u32 {s(sP[0]+1)}, {s(sP[0]+1)}, 0\nv_lshlrev_b32 {v(tmp)}, 4, v0")
    o.append(Op("@@CODEPF@@", "raw"))

def role_prep():
    o = S(); m0 = VR.mark(); sm0 = SR.mark()
    o.label("L_prep")
    vt0, vt1, vt2 = VR.get(), VR.get(), VR.get()
    pf = VR.get(4)
    o.i(f"s_cmp_lg_u32 {s(sY)}, 21\ns_cbranch_scc1 L_nopf")
    code_prefetch(o, vt0); CFG["_pf"] = (vt0, pf)
    o.label("L_nopf")
    vr, vc = VR.get(), VR.get()
    o.i(f"v_bfe_u32 {v(vr)}, {v(vL)}, 2, 2\nv_and_b32 {v(vc)}, 3, {v(vL)}")
    fr = VR.get(60); sI, sSo, sOut = SR.get(), SR.get(), SR.get()
    o.i(f"s_cmp_ge_u32 {s(sY)}, 28\ns_cbranch_scc1 L_dprep")
    head = o
    o = S(); m1 = VR.mark()
    sPC, sKQ = SR.get(), SR.get()
    o.i(f"s_lshl_b32 {s(sI)}, {s(sXc)}, 3\ns_add_u32 {s(sI)}, {s(sI)}, {s(sY)}\ns_sub_u32 {s(sI)}, {s(sI)}, 20\ns_lshr_b32 {s(sPC)}, {s(sI)}, 2\ns_and_b32 {s(sKQ)}, {s(sI)}, 3")
    o.i(f"s_bitcmp1_b32 {s(sW)}, 0\ns_cselect_b32 {s(sWG)}, {s(sWU)}, {s(sWG)}\ns_cselect_b32 {s(sWG+1)}, {s(sWU+1)}, {s(sWG+1)}")
    vo = VR.get(3, 1)
    o.i(f"s_lshr_b32 {s(sT[0])}, {s(sW)}, 1\ns_lshl_b32 {s(sT[0])}, {s(sT[0])}, 3\ns_movk_i32 {s(sT[1])}, 3072")
    for i in range(3):
        o.i(f"v_add_u32 {v(vt0)}, {64*i}, {v(vL)}\nv_mul_u32_u24 {v(vt1)}, 5462, {v(vt0)}\nv_lshrrev_b32 {v(vt1)}, 16, {v(vt1)}")
        o.i(f"v_mul_u32_u24 {v(vt2)}, 12, {v(vt1)}\nv_sub_u32 {v(vt0)}, {v(vt0)}, {v(vt2)}\nv_lshlrev_b32 {v(vt0)}, 4, {v(vt0)}")
        o.i(f"v_and_b32 {v(vt2)}, 8, {v(vt1)}\nv_add3_u32 {v(vt1)}, {v(vt1)}, {v(vt2)}, {s(sT[0])}\nv_mad_u32_u24 {v(vo+i)}, {v(vt1)}, {s(sT[1])}, {v(vt0)}")
    o.i(f"s_mul_i32 {s(sSo)}, {s(sKQ)}, {160*3072}\ns_mul_i32 {s(sT[0])}, {s(sPC)}, 192\ns_add_u32 {s(sSo)}, {s(sSo)}, {s(sT[0])}\ns_mul_i32 {s(sM0)}, {s(sW)}, 3088")
    for st_ in range(5):
        for i in range(3):
            o.i(f"s_add_u32 m0, {s(sM0)}, {st_*12352 + i*1024}\ns_nop 0")
            o.vm(f"buffer_load_dwordx4 {v(vo+i)}, {s(sWG,4)}, {s(sSo)} offen lds", "wd")
        o.i(f"s_add_u32 {s(sSo)}, {s(sSo)}, {32*3072}")
    va0, va2 = VR.get(), VR.get(); ones = VR.get(4); cs = VR.get(12)
    o.i(f"v_and_b32 {v(vt0)}, 1, {v(vG)}\nv_mul_u32_u24 {v(va0)}, 6176, {v(vt0)}\nv_lshrrev_b32 {v(vt0)}, 1, {v(vG)}\nv_lshl_add_u32 {v(vt0)}, {v(vt0)}, 3, {v(vr)}\nv_mul_u32_u24 {v(vt0)}, 192, {v(vt0)}")
    o.i(f"s_mul_i32 {s(sT[0])}, {s(sW)}, 48\nv_add3_u32 {v(va0)}, {v(va0)}, {v(vt0)}, {s(sT[0])}")
    o.i(f"v_lshrrev_b32 {v(vt0)}, 1, {v(vc)}\nv_mul_u32_u24 {v(vt0)}, 3088, {v(vt0)}\nv_and_b32 {v(vt1)}, 1, {v(vc)}\nv_lshl_add_u32 {v(vt0)}, {v(vt1)}, 3, {v(vt0)}\nv_add3_u32 {v(va2)}, {v(va0)}, {v(vt0)}, 32")
    o.i(f"v_lshl_add_u32 {v(va0)}, {v(vc)}, 3, {v(va0)}")
    for k in range(4): o.i(f"v_mov_b32 {v(ones+k)}, 0x3f803f80")
    o.i(f"s_lshl_b32 {s(sT[0])}, {s(sPC)}, 2\ns_add_u32 {s(sT[0])}, {s(sT[0])}, {s(sW)}\ns_lshl_b32 {s(sT[0])}, {s(sT[0])}, 2\ns_add_u32 {s(sT[0])}, {s(sT[0])}, {s(sKQ)}")
    o.i(f"s_mul_i32 {s(sOut)}, {s(sT[0])}, 15360\ns_add_u32 {s(sOut)}, {s(sOut)}, {WF_WS}\ns_mul_i32 {s(sT[2])}, {s(sT[0])}, 192\ns_add_u32 {s(sT[2])}, {s(sT[2])}, {CSUM}")
    o.wlg0(); nonce(o)
    o.wvm0(); o.i("s_barrier")
    stamp(o, 1)
    def frag_out(q, i):
        q.wlg(("t", i))
        q.vm(f"buffer_store_dwordx4 {v(fr+4*i,4)}, {v(vL16)}, {s(sWS,4)}, {s(sOut)} offen offset:{1024*(i%4)} sc1", "wst")
        if i % 4 == 3: q.i(f"s_add_u32 {s(sOut)}, {s(sOut)}, 4096")
    for i in range(15):
        st_, tl = divmod(i, 3)
        for rd in range(2):
            o.lg(f"ds_read_b64_tr_b16 {v(fr+4*i+2*rd,2)}, {v(va2 if tl == 2 else va0)} offset:{st_*12352 + rd*768 + (3088 if tl == 1 else 0)}", ("t", i))
        if i >= 4: frag_out(o, i - 4)
    for i in range(11, 15): frag_out(o, i)
    for i in range(15):
        tl = i % 3
        o.i(f"v_mfma_f32_16x16x32_bf16 {v(cs+4*tl,4)}, {v(fr+4*i,4)}, {v(ones,4)}, {'0' if i < 3 else v(cs+4*tl,4)}")
    o.i(f"v_lshlrev_b32 {v(vt0)}, 4, {v(vG)}\nv_cmp_eq_u32 vcc, 0, {v(vJ)}\nv_cndmask_b32 {v(vt0)}, {v(vFOc)}, {v(vt0)}, vcc")
    for tl in range(3): o.vm(f"buffer_store_dwordx4 {v(cs+4*tl,4)}, {v(vt0)}, {s(sWS,4)}, {s(sT[2])} offen offset:{64*tl} sc1")
    o.i(f"s_add_u32 {s(sI)}, {s(sI)}, {FW}\ns_lshl_b32 {s(sI)}, {s(sI)}, 7")
    o.wvm0(); o.i("s_barrier"); flag_store(o, s(sI))
    o.i("s_branch L_ptail")
    wprep = o; VR.release(m1)
    o = S(); o.label("L_dprep")
    o.i(f"s_lshl_b32 {s(sI)}, {s(sXc)}, 2\ns_add_u32 {s(sI)}, {s(sI)}, {s(sY)}\ns_sub_u32 {s(sI)}, {s(sI)}, 28")
    xr = VR.get(80); vo = VR.get(5, 1); acc = VR.get(8); res = VR.get(8); onesr = VR.get()
    o.i(f"s_lshl_b32 {s(sT[0])}, {s(sI)}, 2\ns_add_u32 {s(sT[0])}, {s(sT[0])}, {s(sW)}\ns_mul_i32 {s(sT[1])}, {s(sT[0])}, {16*1280}")
    o.i(f"v_mul_u32_u24 {v(vt0)}, 5120, {v(vG)}\nv_lshl_add_u32 {v(vt0)}, {v(vJ)}, 4, {v(vt0)}")
    for it in range(4):
        for q in range(5):
            o.vm(f"buffer_load_dwordx4 {v(xr+20*it+4*q,4)}, {v(vt0)}, {s(sX,4)}, {s(sT[1])} offen offset:{256*q}", ("xs", it))
        o.i(f"s_add_u32 {s(sT[1])}, {s(sT[1])}, 1280")
    o.i(f"s_movk_i32 {s(sT[2])}, 1280")
    for i in range(5):
        o.i(f"v_add_u32 {v(vt0)}, {64*i}, {v(vL)}\nv_mul_u32_u24 {v(vt1)}, 6554, {v(vt0)}\nv_lshrrev_b32 {v(vt1)}, 16, {v(vt1)}")
        o.i(f"v_mul_u32_u24 {v(vt2)}, 10, {v(vt1)}\nv_sub_u32 {v(vt0)}, {v(vt0)}, {v(vt2)}\nv_lshlrev_b32 {v(vt0)}, 4, {v(vt0)}")
        o.i(f"v_and_b32 {v(vt2)}, 4, {v(vt1)}\nv_lshlrev_b32 {v(vt2)}, 1, {v(vt2)}\nv_and_b32 {v(vo+i)}, 8, {v(vt1)}\nv_lshrrev_b32 {v(vo+i)}, 1, {v(vo+i)}\nv_and_b32 {v(vt1)}, 19, {v(vt1)}\nv_or3_b32 {v(vt1)}, {v(vt1)}, {v(vt2)}, {v(vo+i)}")
        o.i(f"v_mad_u32_u24 {v(vo+i)}, {v(vt1)}, {s(sT[2])}, {v(vt0)}")
    o.i(f"s_sub_u32 {s(sT[3])}, {s(sY)}, 28\ns_lshl_b32 {s(sT[3])}, {s(sT[3])}, 2\ns_add_u32 {s(sT[3])}, {s(sT[3])}, {s(sW)}\ns_mul_i32 {s(sSo)}, {s(sT[3])}, {96*1280}\ns_mul_i32 {s(sT[3])}, {s(sXc)}, 160\ns_add_u32 {s(sSo)}, {s(sSo)}, {s(sT[3])}")
    o.i(f"s_mul_i32 {s(sM0)}, {s(sW)}, 15360")
    wdd = S()
    for st_ in range(3):
        for i in range(5):
            wdd.i(f"s_add_u32 m0, {s(sM0)}, {st_*5120 + i*1024}\ns_nop 0")
            wdd.vm(f"buffer_load_dwordx4 {v(vo+i)}, {s(sWD,4)}, {s(sSo)} offen lds", "wd")
        wdd.i(f"s_add_u32 {s(sSo)}, {s(sSo)}, {32*1280}")
    o.wlg0(); nonce(o)
    o.i(f"v_mov_b32 {v(onesr)}, 0x3f803f80")
    for k in range(8): o.i(f"v_mov_b32 {v(acc+k)}, 0")
    for it in range(4):
        o.wvm(("xs", it))
        if it == 3:
            o.add(wdd)
        for k in range(20):
            o.i(f"v_dot2c_f32_bf16 {v(acc+it)}, {v(xr+20*it+k)}, {v(onesr)}\nv_dot2c_f32_bf16 {v(acc+4+it)}, {v(xr+20*it+k)}, {v(xr+20*it+k)}")
    for sh in (8, 4, 2, 1):
        for k in range(8): o.i(f"v_add_f32_dpp {v(acc+k)}, {v(acc+k)}, {v(acc+k)} row_ror:{sh} row_mask:0xf bank_mask:0xf")
    for it in range(4):
        ln_finalize(o, acc + it, acc + 4 + it, res + 4 + it, res + it, vt0)
        o.i(f"v_rcp_f32 {v(res+it)}, {v(res+it)}\nv_mul_f32 {v(res+4+it)}, -{v(res+4+it)}, {v(res+it)}".replace("v_mul_f32", "v_mul_f32_e64"))
    o.i(f"v_lshlrev_b32 {v(vt0)}, 5, {v(vG)}\nv_cmp_eq_u32 vcc, 0, {v(vJ)}\nv_cndmask_b32 {v(vt0)}, {v(vFOc)}, {v(vt0)}, vcc\ns_lshl_b32 {s(sT[0])}, {s(sT[0])}, 7\ns_add_u32 {s(sT[0])}, {s(sT[0])}, {STATS}")
    for h in range(2): o.vm(f"buffer_store_dwordx4 {v(res+4*h,4)}, {v(vt0)}, {s(sWS,4)}, {s(sT[0])} offen offset:{16*h} sc1", "sst")
    o.i(f"s_add_u32 {s(sT[0])}, {s(sI)}, {FS}\ns_lshl_b32 {s(sT[0])}, {s(sT[0])}, 7")
    o.wvm0(); o.i("s_barrier"); flag_store(o, s(sT[0]))
    stamp(o, 1)
    va0 = VR.get()
    o.i(f"v_and_b32 {v(vt0)}, 1, {v(vG)}\nv_lshl_add_u32 {v(vt0)}, {v(vt0)}, 2, {v(vr)}\nv_lshrrev_b32 {v(vt1)}, 1, {v(vG)}\nv_lshl_add_u32 {v(vt0)}, {v(vt1)}, 4, {v(vt0)}\nv_mul_u32_u24 {v(vt0)}, 160, {v(vt0)}\nv_lshl_add_u32 {v(vt0)}, {v(vc)}, 3, {v(vt0)}\nv_add_u32 {v(va0)}, {s(sM0)}, {v(vt0)}")
    o.i(f"s_mul_i32 {s(sOut)}, {s(sI)}, 61440\ns_add_u32 {s(sOut)}, {s(sOut)}, {s(sM0)}\ns_add_u32 {s(sOut)}, {s(sOut)}, {WDF_WS}")
    for i in range(15):
        st_, dl = divmod(i, 5)
        for rd in range(2):
            o.lg(f"ds_read_b64_tr_b16 {v(fr+4*i+2*rd,2)}, {v(va0)} offset:{st_*5120 + rd*1280 + dl*32}", ("t", i))
        if i >= 4: frag_out(o, i - 4)
    for i in range(11, 15): frag_out(o, i)
    o.i(f"s_add_u32 {s(sI)}, {s(sI)}, {FD}\ns_lshl_b32 {s(sI)}, {s(sI)}, 7")
    o.wvm0(); o.i("s_barrier"); flag_store(o, s(sI))
    dprep = o
    o = S(); o.label("L_ptail")
    stamp(o, 2)
    o.i(f"s_lshl_b32 {s(sT[5])}, {s(sCB)}, 9\ns_add_u32 {s(sT[5])}, {s(sT[5])}, {FW*128}\nv_lshlrev_b32 {v(vPA)}, 7, {v(vc)}")
    poll(o, [(vPoll, vPA, sWS, s(sT[5]), 0)])
    for g in w_loads(0, 60): o.add(g)
    o.wvm0()
    stamp(o, 5)
    f2_setup(o, 0); h_dma_setup(o, 0)
    poll(o, f2_loads(0))
    stamp(o, 7)
    for g in range(5): o.add(h_dma(g, 0))
    o.i(f"s_mov_b32 {s(sF2)}, 0")
    o.wvm0(); o.i("s_branch L_join")
    VR.release(m0); SR.release(sm0)
    return [head + wprep, dprep, o]

def gemms():
    o = S(); o.label("L_join")
    m0 = VR.mark()
    vt0, vt1, vt2 = VR.get(), VR.get(), VR.get()
    vH = VR.get(4, 1); vSTw = VR.get(); vSTr = VR.get(6, 1); vA = VR.get(3, 1)
    mg = VR.mark()
    ones = VR.get(4); cs = VR.get(12)
    acc = VR.get(48); sa = VR.get(8); hf = VR.get(32); csp = VR.get(36); kc = VR.get(24); tmp = VR.get(32); pk = VR.get(12)
    sAct, sF3, sRB2, sTH, sDB = SR.get(), SR.get(), SR.get(), SR.get(), SR.get()
    sM = sP[1:4]
    o.i(f"v_bfe_u32 {v(vt0)}, {v(vL)}, 2, 2\nv_lshl_add_u32 {v(vt1)}, {v(vG)}, 3, {v(vt0)}\nv_lshlrev_b32 {v(vt1)}, 7, {v(vt1)}\nv_and_b32 {v(vt2)}, 3, {v(vL)}\nv_lshl_add_u32 {v(vt1)}, {v(vt2)}, 3, {v(vt1)}\nv_add_u32 {v(vt1)}, {L_R1}, {v(vt1)}")
    o.i(f"v_lshrrev_b32 {v(vt0)}, 1, {v(vt0)}\nv_and_b32 {v(vt2)}, 1, {v(vG)}\nv_lshl_or_b32 {v(vt0)}, {v(vt2)}, 1, {v(vt0)}")
    for sg in range(4):
        o.i(f"s_add_u32 {s(sT[0])}, {s(sW)}, {sg}\ns_and_b32 {s(sT[0])}, {s(sT[0])}, 3\nv_xor_b32 {v(vt2)}, {s(sT[0])}, {v(vt0)}\nv_lshl_add_u32 {v(vH+sg)}, {v(vt2)}, 5, {v(vt1)}")
    for k in range(4): o.i(f"v_mov_b32 {v(ones+k)}, 0x3f803f80")
    late = S()
    late.i(f"v_lshlrev_b32 {v(vt1)}, 4, {v(vJ)}")
    for sg in range(4):
        late.i(f"s_add_u32 {s(sT[0])}, {s(sW)}, {sg}\ns_and_b32 {s(sT[0])}, {s(sT[0])}, 3\ns_lshl_b32 {s(sT[0])}, {s(sT[0])}, 8\nv_add_u32 {v(vSTr+sg)}, {s(sT[0])}, {v(vt1)}")
    late.i(f"v_cmp_gt_u32 vcc, 32, {v(vL)}\ns_nop 1\nv_cndmask_b32 {v(vSTr+4)}, {v(vSTr+1)}, {v(vSTr)}, vcc\nv_cndmask_b32 {v(vSTr+5)}, {v(vSTr+3)}, {v(vSTr+2)}, vcc")
    late.i(f"v_and_b32 {v(vt0)}, 1, {v(vG)}\nv_lshrrev_b32 {v(vt2)}, 1, {v(vG)}")
    for p in range(2):
        late.i(f"v_add3_u32 {v(vA+p)}, {v(vt0)}, {s(sW)}, {2*p}\nv_and_b32 {v(vA+p)}, 3, {v(vA+p)}\nv_lshl_add_u32 {v(vA+p)}, {v(vA+p)}, 8, {v(vt1)}\nv_lshl_add_u32 {v(vA+p)}, {v(vt2)}, 10, {v(vA+p)}")
    late.i(f"v_lshl_or_b32 {v(vA+2)}, {v(vt0)}, 1, {v(vt2)}\nv_add_u32 {v(vA+2)}, {s(sW)}, {v(vA+2)}\nv_and_b32 {v(vA+2)}, 3, {v(vA+2)}\nv_lshl_add_u32 {v(vA+2)}, {v(vA+2)}, 8, {v(vt1)}")
    late.i(f"s_mul_i32 {s(sAct)}, {s(sRB)}, 196608\ns_lshl_b32 {s(sT[0])}, {s(sCB)}, 2\ns_add_u32 {s(sT[0])}, {s(sT[0])}, {s(sW)}\ns_mul_i32 {s(sT[1])}, {s(sT[0])}, 3072\ns_add_u32 {s(sAct)}, {s(sAct)}, {s(sT[1])}\ns_add_u32 {s(sAct)}, {s(sAct)}, {ACT_WS}")
    late.i(f"s_lshl_b32 {s(sF3)}, {s(sRB)}, 4\ns_add_u32 {s(sF3)}, {s(sF3)}, {s(sCB)}\ns_add_u32 {s(sF3)}, {s(sF3)}, {F3A}\ns_lshl_b32 {s(sF3)}, {s(sF3)}, 7")
    late.i(f"v_and_b32 {v(vt0)}, 3, {v(vJ)}")
    for k in range(3): late.i(f"v_cmp_eq_u32 {s(sM[k],2)}, {k+1}, {v(vt0)}")
    late.i(f"s_mul_i32 {s(sT[1])}, {s(sT[0])}, 768\ns_add_u32 {s(sT[1])}, {s(sT[1])}, {CSUM}\nv_lshlrev_b32 {v(vt0)}, 4, {v(vG)}")
    for q in range(4):
        for tl in range(3):
            d = cs + 4 * tl if q == 0 else csp + 12 * (q - 1) + 4 * tl
            late.vm(f"buffer_load_dwordx4 {v(d,4)}, {v(vt0)}, {s(sWS,4)}, {s(sT[1])} offen offset:{192*q + 64*tl} sc1", "cs")
    nr = CFG["g2map"]; nd = 16 // nr; lr = nr.bit_length() - 1; nxr = 16 // nr; lx = nxr.bit_length() - 1
    late.i(f"s_and_b32 {s(sRB2)}, {s(sXc)}, {nxr-1}\ns_lshl_b32 {s(sRB2)}, {s(sRB2)}, {lr}\ns_and_b32 {s(sT[0])}, {s(sY)}, {nr-1}\ns_add_u32 {s(sRB2)}, {s(sRB2)}, {s(sT[0])}")
    late.i(f"s_bfe_u32 {s(sTH)}, {s(sY)}, {hex(0x10000 | lr)}\ns_lshr_b32 {s(sDB)}, {s(sXc)}, {lx}\ns_mul_i32 {s(sDB)}, {s(sDB)}, {nd}\ns_lshr_b32 {s(sT[0])}, {s(sY)}, {lr+1}\ns_add_u32 {s(sDB)}, {s(sDB)}, {s(sT[0])}")
    late_groups = [S([x]) for x in late]

    def hreads(half, st_):
        r = []
        for sg in range(4):
            for rd in range(2):
                g = S()
                if st_ == 16 and rd == 0: g.i(f"v_add_u32 {v(vH+sg)}, 0x10000, {v(vH+sg)}")
                g.lg(f"ds_read_b64_tr_b16 {v(hf+16*(st_%2)+4*sg+2*rd,2)}, {v(vH+sg)} offset:{(st_%16)*4096 + rd*512}", ("h", half, st_, sg))
                r.append(g)
        return r
    def g1_mfmas(half, st_):
        r = []
        for sg in range(4):
            h = v(hf + 16 * (st_ % 2) + 4 * sg, 4)
            for tl in range(3):
                g = S()
                if sg == 0 and tl == 0 and half == 0: g.wvm(("W", st_))
                if tl == 0 and sg % 2 == 0: g.wlg(("h", half, st_, sg + 1))
                d = v(acc + 12 * sg + 4 * tl, 4)
                g.i(f"v_mfma_f32_16x16x32_bf16 {d}, {a(12*st_+4*tl,4)}, {h}, {'0' if st_ == 0 else d}")
                r.append(g)
            if sg == 0:
                r.append(S().i(f"v_mfma_f32_16x16x32_bf16 {v(sa,4)}, {v(ones,4)}, {h}, {'0' if st_ == 0 else v(sa,4)}"))
                r.append(S().i(f"v_mfma_f32_16x16x32_bf16 {v(sa+4,4)}, {h}, {h}, {'0' if st_ == 0 else v(sa+4,4)}"))
        return r
    def g1_pass(half, events, extras):
        p = S()
        p.wvm(("H", half, 0)); p.i("s_barrier")
        for g in hreads(half, 0): p.add(g)
        for st_ in range(20):
            mm = g1_mfmas(half, st_)
            pre = S()
            if st_ % 4 == 3 and st_ < 19:
                pre.wvm([("H", half, st_ // 4 + 1)] + events.get(st_, ([], None))[0]); pre.i("s_barrier")
            if st_ in events and events[st_][1] is not None: pre.add(events[st_][1])
            mm[0] = group(mm[0], pre)
            fill = hreads(half, st_ + 1) if st_ < 19 else []
            ex = extras.get(st_, [])
            body = []
            for k, g in enumerate(mm):
                g = group(g)
                if k < len(fill): g.add(fill[k])
                body.append(g)
            p.add(weave(body, ex, 6 if len(ex) <= 16 else 0) if ex else group(*body))
        return p
    def gelu(items):
        e = S()
        T = lambda k: tmp + 4 * k
        for k, (g, u, q, d) in enumerate(items): e.i(f"v_pk_mul_f32 {v(T(k),2)}, {v(g,2)}, {v(g,2)}")
        for k, (g, u, q, d) in enumerate(items): e.i(f"v_pk_fma_f32 {v(T(k),2)}, {v(T(k),2)}, {v(q+2,2)}, {v(q,2)} op_sel:[0,0,1] op_sel_hi:[1,0,1]")
        for k, (g, u, q, d) in enumerate(items): e.i(f"v_pk_mul_f32 {v(T(k),2)}, {v(T(k),2)}, {v(g,2)}")
        for k, (g, u, q, d) in enumerate(items): e.i(f"v_exp_f32 {v(T(k))}, {v(T(k))}\nv_exp_f32 {v(T(k)+1)}, {v(T(k)+1)}\nv_pk_mul_f32 {v(T(k)+2,2)}, {v(g,2)}, {v(u,2)}")
        for k, (g, u, q, d) in enumerate(items): e.i(f"v_pk_fma_f32 {v(T(k),2)}, {v(T(k),2)}, {v(q+2,2)}, {v(q+2,2)} op_sel:[0,1,1] op_sel_hi:[1,1,1]")
        for k, (g, u, q, d) in enumerate(items): e.i(f"v_rcp_f32 {v(T(k))}, {v(T(k))}\nv_rcp_f32 {v(T(k)+1)}, {v(T(k)+1)}")
        for k, (g, u, q, d) in enumerate(items): e.i(f"v_pk_mul_f32 {v(T(k),2)}, {v(T(k),2)}, {v(T(k)+2,2)}")
        for k, (g, u, q, d) in enumerate(items): e.i(f"v_cvt_pk_bf16_f32 {v(d)}, {v(T(k))}, {v(T(k)+1)}")
        return e
    def g1_epilogue(half, mid):
        e = S(); stx = L_R1 + 4096 * half
        q = tmp
        e.i(f"v_cndmask_b32 {v(sa+4)}, {v(sa+4)}, {v(sa+5)}, {s(sM[0],2)}\nv_cndmask_b32 {v(sa+4)}, {v(sa+4)}, {v(sa+6)}, {s(sM[1],2)}\nv_cndmask_b32 {v(sa+4)}, {v(sa+4)}, {v(sa+7)}, {s(sM[2],2)}")
        ln_finalize(e, sa, sa + 4, q, q + 3, q + 4)
        e.i(f"v_rcp_f32 {v(q+4)}, {v(q+3)}\nv_mul_f32 {v(q+3)}, {v(q+3)}, {v(q+3)}\nv_mul_f32 {v(q+1)}, {hex(f2u(C0))}, {v(q+4)}\nv_mul_f32 {v(q+2)}, {v(q+4)}, {v(q+4)}")
        e.i(f"v_mul_f32 {v(q+4)}, {hex(f2u(C1))}, {v(q+4)}\nv_mul_f32 {v(q+2)}, {v(q+2)}, {v(q+4)}\nv_xor_b32 {v(q)}, 0x80000000, {v(q)}\nv_add_u32 {v(vSTw)}, {stx}, {v(vSTr)}")
        e.i("s_mov_b32 exec_lo, 0x00F0000F\ns_mov_b32 exec_hi, 0xF0000F00")
        e.lg(f"ds_write_b128 {v(vSTw)}, {v(q,4)}")
        e.i("s_mov_b64 exec, -1")
        if mid is not None: e.add(mid)
        for k in range(6): e.i(f"v_add_u32 {v(tmp+8+k)}, {stx}, {v(vSTr+k)}")
        e.wlg0(); e.i("s_barrier")
        for k in range(6): e.lg(f"ds_read_b128 {v(kc+4*k,4)}, {v(tmp+8+k)}", ("kc", half, k))
        if half == 0:
            e.wvm("cs")
            for qq in range(3):
                for k in range(6): e.i(f"v_pk_add_f32 {v(cs+2*k,2)}, {v(cs+2*k,2)}, {v(csp+12*qq+2*k,2)}")
        for sg in range(4):
            e.wlg(("kc", half, sg))
            for k in range(6):
                d = v(acc + 12 * sg + 2 * k, 2)
                e.i(f"v_pk_fma_f32 {d}, {v(cs+2*k,2)}, {v(kc+4*sg,2)}, {d} op_sel_hi:[1,0,1]")
        for p in range(2):
            for r in range(4): e.i(f"v_permlane32_swap_b32 {v(acc+24*p+8+r)}, {v(acc+24*p+20+r)}")
        e.wlg(("kc", half, 5))
        for p in range(3):
            if p < 2: items = [(acc + 12 * sg + 2 * h, acc + 12 * sg + 4 + 2 * h, kc + 4 * sg, pk + 4 * p + 2 * (sg % 2) + h) for sg in (2 * p, 2 * p + 1) for h in range(2)]
            else: items = [(acc + 24 * pp + 8 + 2 * h, acc + 24 * pp + 20 + 2 * h, kc + 16 + 4 * pp, pk + 8 + 2 * pp + h) for pp in range(2) for h in range(2)]
            e.add(gelu(items))
            for h in range(2): e.i(f"v_permlane16_swap_b32 {v(pk+4*p+h)}, {v(pk+4*p+2+h)}")
            e.vm(f"buffer_store_dwordx4 {v(pk+4*p,4)}, {v(vA+p)}, {s(sWS,4)}, {s(sAct)} offen offset:{2048 if p == 2 else 0} sc1", ("ast", half))
        return e

    stamp(o, 8)
    ev = S(); flag_store(ev, s(sF2), vFOc)
    pre19 = S(); f2_setup(pre19, 1); h_dma_setup(pre19, 1); poll_issue(pre19, f2_loads(1), "f2b")
    nl = len(late_groups); ex = {}
    for k, st_ in enumerate((4, 5, 6, 8, 9, 10, 12, 13)): ex[st_] = late_groups[k * nl // 8:(k + 1) * nl // 8]
    o.add(g1_pass(0, {3: ([("hst", 1)], ev), 18: ([], pre19)}, ex))
    stamp(o, 9)
    mid = S(); poll_check(mid, f2_loads(1), "f2b")
    for g in range(5): mid.add(h_dma(g, 1))
    for sg in range(4): mid.i(f"v_add_u32 {v(vH+sg)}, {(L_R2 - L_R1 - 0x10000) & 0xffffffff}, {v(vH+sg)}")
    o.add(g1_epilogue(0, mid))
    stamp(o, 10)
    ev = S(); flag_store(ev, s(sF3))
    ev.i(f"s_add_u32 {s(sF3)}, {s(sF3)}, {(F3B-F3A)*128}\ns_add_u32 {s(sAct)}, {s(sAct)}, {16*196608}")
    ev0 = S()
    ev0.i(f"s_lshl_b32 {s(sT[0])}, {s(sDB)}, 2\ns_add_u32 {s(sT[0])}, {s(sT[0])}, {s(sW)}\ns_mul_i32 {s(sWoff)}, {s(sT[0])}, 61440\ns_add_u32 {s(sWoff)}, {s(sWoff)}, {WDF_WS}")
    ev0.i(f"s_add_u32 {s(sT[5])}, {s(sT[0])}, {FD}\ns_lshl_b32 {s(sT[5])}, {s(sT[5])}, 7\nv_mov_b32 {v(vPA)}, 0")
    fd = [(vPoll, vPA, sWS, s(sT[5]), 0)]
    poll_issue(ev0, fd, "fd")
    poll_check(ev, fd, "fd")
    wd = w_loads(0, 60, "D", 5); nb = CFG["wd_in_b"]; ex = {}; wi = 0
    for st_ in range(4, 19):
        n = min(-(-(nb - wi) // (19 - st_)), 3 * st_ - wi); ex[st_] = wd[wi:wi + n]; wi += n
    o.add(g1_pass(1, {0: ([], ev0), 3: ([("ast", 0)], ev)}, ex))
    stamp(o, 11)
    o.add(g1_epilogue(1, None))
    VR.release(mg)
    ac2 = [VR.get(40), VR.get(40)]; af = VR.get(96); rt = VR.get(32)
    vAo, vRw, vRr, vRr2, vOo, vOo2 = [vH, vH + 1, vH + 2, vH + 3, vSTr, vSTr + 1]; vRes = [vSTr + 2, vSTr + 3]
    sA2, sRes, sOo = SR.get(), SR.get(), SR.get()
    QS = 512 + 16 * CFG.get("reda", 3); TS = 10 * QS; WS_ = 2 * TS
    o.i(f"s_lshl_b32 {s(sT[5])}, {s(sRB2)}, 2\ns_add_u32 {s(sT[5])}, {s(sT[5])}, {s(sW)}\ns_lshl_b32 {s(sT[5])}, {s(sT[5])}, 9\ns_add_u32 {s(sT[5])}, {s(sT[5])}, {F3A*128}\ns_add_u32 {s(sT[6])}, {s(sT[5])}, {(F3B-F3A)*128}")
    o.i(f"v_and_b32 {v(vPA)}, 3, {v(vL)}\nv_lshlrev_b32 {v(vPA)}, 7, {v(vPA)}")
    f3 = [[(vPoll, vPA, sWS, s(sT[5]), 0)], [(vPoll, vPA, sWS, s(sT[6]), 0)]]
    poll_issue(o, f3[0], "f3a")
    o.i(f"v_lshlrev_b32 {v(vAo)}, 10, {v(vG)}\nv_lshl_add_u32 {v(vAo)}, {v(vJ)}, 4, {v(vAo)}")
    o.i(f"s_mul_i32 {s(sA2)}, {s(sRB2)}, 196608\ns_mul_i32 {s(sT[0])}, {s(sW)}, 49152\ns_add_u32 {s(sA2)}, {s(sA2)}, {s(sT[0])}\ns_lshl_b32 {s(sT[0])}, {s(sTH)}, 9\ns_add_u32 {s(sA2)}, {s(sA2)}, {s(sT[0])}\ns_add_u32 {s(sA2)}, {s(sA2)}, {ACT_WS}")
    o.i(f"s_lshr_b32 {s(sT[0])}, {s(sW)}, 1\ns_lshl_b32 {s(sT[1])}, {s(sTH)}, 1\ns_xor_b32 {s(sT[0])}, {s(sT[0])}, {s(sT[1])}\nv_and_b32 {v(vt0)}, 2, {v(vG)}\nv_xor_b32 {v(vt0)}, {s(sT[0])}, {v(vt0)}")
    o.i(f"v_lshlrev_b32 {v(vt1)}, 9, {v(vG)}\nv_lshl_add_u32 {v(vt1)}, {v(vJ)}, 1, {v(vt1)}\nv_lshl_add_u32 {v(vRes[0])}, {v(vt0)}, 5, {v(vt1)}\nv_xor_b32 {v(vRes[1])}, 32, {v(vRes[0])}")
    o.i(f"s_mul_i32 {s(sRes)}, {s(sRB2)}, 81920\ns_mul_i32 {s(sT[0])}, {s(sDB)}, 10240\ns_add_u32 {s(sRes)}, {s(sRes)}, {s(sT[0])}\ns_lshl_b32 {s(sT[0])}, {s(sW)}, 7\ns_add_u32 {s(sRes)}, {s(sRes)}, {s(sT[0])}\ns_add_u32 {s(sRes)}, {s(sRes)}, {HT_WS}")
    for k in range(0, 80, 2): o.i(f"v_mov_b64 {v(ac2[0]+k,2)}, 0")
    def res_loads(q, r, count):
        for half in range(2):
            for dl in range(5):
                if dl % 2 == 0: q.i(f"s_add_u32 {s(sT[1])}, {s(sRes)}, {half*16*81920 + dl*2048}")
                for t2 in range(2):
                    txt = f"buffer_load_short_d16_hi {v(ac2[half]+20*t2+4*dl+r)}, {v(vRes[t2])}, {s(sWS,4)}, {s(sT[1])} offen offset:{2048*(dl%2)} sc1"
                    if count: q.vm(txt, "res")
                    else: q.i(txt)
    for r in range(1, 4):
        o.i(f"s_cmp_eq_u32 {s(sW)}, {r}\ns_cbranch_scc1 L_res{r}")
        slow.label(f"L_res{r}"); res_loads(slow, r, False); slow.i("s_branch L_resd")
    res_loads(o, 0, True); o.label("L_resd")
    o.wvm(("ast", 1)); o.i("s_barrier"); flag_store(o, s(sF3))
    stamp(o, 12)
    def act_loads(half):
        r = []
        for st_ in range(12):
            g = S()
            for t2 in range(2): g.vm(f"buffer_load_dwordx4 {v(af+8*st_+4*t2,4)}, {v(vAo)}, {s(sWS,4)}, {s(sA2)} offen offset:{256*t2} sc1", ("a", half, st_))
            g.i(f"s_add_u32 {s(sA2)}, {s(sA2)}, {4096 if st_ < 11 else 16*196608 - 11*4096}")
            r.append(g)
        return r
    poll_check(o, f3[0], "f3a")
    al = act_loads(0)
    for st_ in range(12):
        while wi < 5 * (st_ + 1): o.add(wd[wi]); wi += 1
        o.add(al[st_])
    o.i(f"s_mul_i32 {s(sT[0])}, {s(sW)}, {WS_}\nv_lshrrev_b32 {v(vt0)}, 1, {v(vG)}\nv_mul_u32_u24 {v(vRw)}, {QS}, {v(vt0)}\nv_and_b32 {v(vt0)}, 1, {v(vG)}\nv_lshl_add_u32 {v(vRw)}, {v(vt0)}, 8, {v(vRw)}\nv_lshl_add_u32 {v(vRw)}, {v(vJ)}, 4, {v(vRw)}\nv_add_u32 {v(vRw)}, {s(sT[0])}, {v(vRw)}")
    o.i(f"s_lshr_b32 {s(sT[0])}, {s(sW)}, 1\ns_mul_i32 {s(sT[0])}, {s(sT[0])}, {TS}\ns_and_b32 {s(sT[1])}, {s(sW)}, 1\ns_lshl_b32 {s(sT[1])}, {s(sT[1])}, 7\ns_add_u32 {s(sT[0])}, {s(sT[0])}, {s(sT[1])}\ns_movk_i32 {s(sT[1])}, 1280")
    for add, rr, oo in ((0, vRr, vOo), (64, vRr2, vOo2)):
        src = vL if add == 0 else vJ
        o.i(f"v_add_u32 {v(vt0)}, {add}, {v(src)}\nv_mul_u32_u24 {v(vt1)}, 6554, {v(vt0)}\nv_lshrrev_b32 {v(vt1)}, 16, {v(vt1)}\nv_mul_u32_u24 {v(vt2)}, 10, {v(vt1)}\nv_sub_u32 {v(vt0)}, {v(vt0)}, {v(vt2)}")
        o.i(f"v_mul_u32_u24 {v(rr)}, {QS}, {v(vt0)}\nv_lshl_add_u32 {v(rr)}, {v(vt1)}, 4, {v(rr)}\nv_add_u32 {v(rr)}, {s(sT[0])}, {v(rr)}")
        o.i(f"v_lshlrev_b32 {v(vt0)}, 4, {v(vt0)}\nv_mad_u32_u24 {v(oo)}, {v(vt1)}, {s(sT[1])}, {v(vt0)}")
    o.i(f"s_lshl_b32 {s(sOo)}, {s(sRB2)}, 2\ns_add_u32 {s(sOo)}, {s(sOo)}, {s(sW)}\ns_lshl_b32 {s(sOo)}, {s(sOo)}, 1\ns_add_u32 {s(sOo)}, {s(sOo)}, {s(sTH)}\ns_mul_i32 {s(sOo)}, {s(sOo)}, {8*1280}\ns_mul_i32 {s(sT[0])}, {s(sDB)}, 160\ns_add_u32 {s(sOo)}, {s(sOo)}, {s(sT[0])}")
    def g2_pass(half, at):
        p = S()
        for st_ in range(12):
            if st_ in at: p.add(at[st_])
            p.wvm([("a", half, st_), ("D", st_), "res"])
            for t2 in range(2):
                for dl in range(5):
                    d = v(ac2[half] + 20 * t2 + 4 * dl, 4)
                    p.i(f"v_mfma_f32_16x16x32_bf16 {d}, {a(20*st_+4*dl,4)}, {v(af+8*st_+4*t2,4)}, {d}")
        return p
    def reduce_out(half, sc):
        e = S(); base = half * 4 * WS_
        assert base + 3 * WS_ + 256 < 65536 * 2
        for t2 in range(2):
            for dl in range(5):
                e.lg(f"ds_write_b128 {v(vRw)}, {v(ac2[half]+20*t2+4*dl,4)} offset:{t2*TS + dl*2*QS}")
        e.wlg0(); e.i("s_barrier")
        for ps, (rr, oo) in enumerate(((vRr, vOo), (vRr2, vOo2))):
            if ps == 1: e.i("s_mov_b64 exec, 0xffff")
            for w_ in range(4):
                for h in range(2): e.lg(f"ds_read_b128 {v(rt+8*w_+4*h,4)}, {v(rr)} offset:{w_*WS_ + 256*h}", ("r", half, ps, w_))
            for w_ in range(1, 4):
                e.wlg(("r", half, ps, w_))
                for k in range(4): e.i(f"v_pk_add_f32 {v(rt+2*k,2)}, {v(rt+2*k,2)}, {v(rt+8*w_+2*k,2)}")
            d = ac2[half] + 4 * ps
            for k in range(4): e.i(f"v_cvt_pk_bf16_f32 {v(d+k)}, {v(rt+2*k)}, {v(rt+2*k+1)}")
            e.vm(f"buffer_store_dwordx4 {v(d,4)}, {v(oo)}, {s(sOUT,4)}, {s(sOo)} offen{sc}")
        e.i("s_mov_b64 exec, -1")
        if half == 0:
            e.i(f"s_add_u32 {s(sOo)}, {s(sOo)}, {1024*1280}")
            for r in (vRw, vRr, vRr2): e.i(f"v_add_u32 {v(r)}, {4*WS_}, {v(r)}")
        return e
    pi = S(); poll_issue(pi, f3[1], "f3b")
    o.add(g2_pass(0, {10: pi}))
    stamp(o, 13)
    if CFG.get("redA_first", 1): o.add(reduce_out(0, CFG["out_sc_a"]))
    poll_check(o, f3[1], "f3b")
    for g in act_loads(1): o.add(g)
    if not CFG.get("redA_first", 1): o.add(reduce_out(0, CFG["out_sc_a"]))
    stamp(o, 14)
    o.add(g2_pass(1, {}))
    o.add(reduce_out(1, CFG["out_sc_b"]))
    o.i(f"s_cmp_lg_u32 s2, 0\ns_cbranch_scc1 L_noep\ns_mov_b32 {s(sT[0])}, {EPOCH}")
    flag_store(o, s(sT[0])); o.label("L_noep")
    if DIAG:
        o.wvm0(); stamp(o, 15)
        o.i(f"s_lshl_b32 {s(sT[0])}, s2, 10\ns_add_u32 {s(sT[0])}, {s(sT[0])}, {DIAGO}\nv_lshlrev_b32 {v(vt0)}, 2, v0")
        o.i(f"buffer_store_dword {v(vStamps)}, {v(vt0)}, {s(sWS,4)}, {s(sT[0])} offen")
        if CFG.get("tdiag"):
            k1, k0, lo, hi = CFG["tdiag"]
            o.i(f"s_cmp_lt_u32 {s(sY)}, {lo}\ns_cbranch_scc1 L_end\ns_cmp_ge_u32 {s(sY)}, {hi}\ns_cbranch_scc1 L_end")
            o.i(f"v_readlane_b32 {s(sT[0])}, {v(vStamps)}, {k1}\nv_readlane_b32 {s(sT[1])}, {v(vStamps)}, {k0}\ns_sub_u32 {s(sT[0])}, {s(sT[0])}, {s(sT[1])}\ns_min_u32 {s(sT[0])}, {s(sT[0])}, 10000\ns_mul_i32 {s(sT[0])}, {s(sT[0])}, 10\ns_mov_b32 {s(sT[2])}, {s(sStamp)}")
            o.label("L_td")
            o.i(f"s_memrealtime {s(sStamp,2)}\ns_waitcnt lgkmcnt(0)\ns_sub_u32 {s(sT[1])}, {s(sStamp)}, {s(sT[2])}\ns_cmp_lt_u32 {s(sT[1])}, {s(sT[0])}\ns_cbranch_scc1 L_td")
    o.label("L_end"); o.i("s_endpgm")
    VR.release(m0)
    return o

def build():
    pro = prologue()
    sm = SR.mark(); conv = role_conv(); SR.release(sm)
    preps = role_prep()
    gm = gemms()
    lines = resolve(S(pro + conv + gm))
    for p in preps: lines += resolve(p)
    lines += resolve(slow)
    lines, added = pad_hazards([l if l != "@@CODEPF@@" else "; @@CODEPF@@" for l in lines], verbose=CFG.get("verbose", 0))
    npf = CFG.get("npf", 9); tmp, pf = CFG["_pf"]
    pfc = []
    for k in range(npf):
        pfc.append(f"global_load_dwordx4 {v(pf,4)}, {v(tmp)}, {s(sP[0],2)}")
        if k < npf - 1: pfc.append(f"v_add_u32 {v(tmp)}, 4096, {v(tmp)}")
    k = lines.index("; @@CODEPF@@"); lines[k:k + 1] = pfc
    hdr = open("cdna_kernels/" + NAME[:-7] + ".s.ref").read().split("\n")
    hdr = [l for l in hdr[:hdr.index('.amdgcn_target "amdgcn-amd-amdhsa--gfx950"')] if "@launch" not in l]
    txt = "\n".join(hdr) + "\n; @launch grid=(256,1,1) block=(256,1,1) lds=163840\n"
    txt += f'.amdgcn_target "amdgcn-amd-amdhsa--gfx950"\n.text\n.globl {NAME}\n.p2align 8\n.type {NAME},@function\n{NAME}:\n'
    txt += "\n".join(l if l.endswith(":") else "    " + l for l in lines) + "\n"
    txt += f"L_codeend:\n.fill ({npf*4096} - (L_codeend - {NAME})) / 4, 4, 0xbf800000\n"
    txt += f""".section .rodata,"a"
.p2align 6
.amdhsa_kernel {NAME}
  .amdhsa_next_free_vgpr 512
  .amdhsa_next_free_sgpr 102
  .amdhsa_accum_offset 256
  .amdhsa_group_segment_fixed_size 0
  .amdhsa_kernarg_size 104
  .amdhsa_user_sgpr_count 2
  .amdhsa_user_sgpr_kernarg_segment_ptr 1
  .amdhsa_system_sgpr_workgroup_id_x 1
.end_amdhsa_kernel
"""
    sys.stderr.write(f"lines={len(lines)} nop_states_added={added} vmax={VR.max} smax={SR.max}\n")
    return txt

if __name__ == "__main__":
    open(sys.argv[1], "w").write(build())
```

```python
import re

class Op:
    __slots__ = ("text", "kind", "tag")
    def __init__(self, text, kind="x", tag=None):
        self.text = text; self.kind = kind; self.tag = tag
    def __repr__(self): return f"Op({self.kind},{self.text},{self.tag})"

class S(list):
    def i(self, text):
        for t in text.strip().split("\n"):
            t = t.strip()
            if t: self.append(Op(t))
        return self
    def vm(self, text, tag=None): self.append(Op(text, "vm", tag)); return self
    def lg(self, text, tag=None): self.append(Op(text, "lg", tag)); return self
    def wvm(self, tag): self.append(Op("", "wvm", tag)); return self
    def wlg(self, tag): self.append(Op("", "wlg", tag)); return self
    def wvm0(self): self.append(Op("s_waitcnt vmcnt(0)", "wvm0")); return self
    def wlg0(self): self.append(Op("s_waitcnt lgkmcnt(0)", "wlg0")); return self
    def label(self, name): self.append(Op(name + ":", "label")); return self
    def cmt(self, text): self.append(Op("; " + text, "cmt")); return self
    def add(self, other): self.extend(other); return self

def group(*ops):
    g = S()
    for o in ops:
        if isinstance(o, list): g.extend(o)
        else: g.append(o)
    return g

def weave(main, fill, start=0, end=None, per=None):
    n = len(main)
    if end is None: end = n
    out = S(); j = 0; m = len(fill); span = end - start
    for k, x in enumerate(main):
        out.extend(x if isinstance(x, list) else [x])
        if start <= k < end:
            tgt = m if k == end - 1 else ((k - start + 1) * m + span - 1) // span if per is None else min(m, (k - start + 1) * per)
            while j < tgt:
                f = fill[j]; out.extend(f if isinstance(f, list) else [f]); j += 1
    assert j == m
    return out

def resolve(ops, vm_state=None):
    vm = list(vm_state or []); lg = []
    vm_done = 0; lg_done = 0
    out = []
    for o in ops:
        if o.kind == "vm": vm.append(o.tag); out.append(o.text)
        elif o.kind == "lg": lg.append(o.tag); out.append(o.text)
        elif o.kind == "wvm0": vm_done = len(vm); out.append(o.text)
        elif o.kind == "wlg0": lg_done = len(lg); out.append(o.text)
        elif o.kind in ("wvm", "wlg"):
            q = vm if o.kind == "wvm" else lg
            tags = o.tag if isinstance(o.tag, list) else [o.tag]
            idx = -1
            for tg in tags:
                cand = [k for k, t in enumerate(q) if t == tg]
                assert cand, f"wait on unknown tag {tg}"
                idx = max(idx, cand[-1])
            done = vm_done if o.kind == "wvm" else lg_done
            if idx < done: continue
            n = len(q) - 1 - idx
            mx = 63 if o.kind == "wvm" else 15
            n = min(n, mx)
            if o.kind == "wvm": vm_done = len(q) - n; out.append(f"s_waitcnt vmcnt({n})")
            else: lg_done = len(q) - n; out.append(f"s_waitcnt lgkmcnt({n})")
        else: out.append(o.text)
    res = []
    for t in out:
        if res and t.startswith("s_waitcnt") and res[-1].startswith("s_waitcnt"):
            a = dict(re.findall(r"(\w+cnt)\((\d+)\)", res[-1])); b = dict(re.findall(r"(\w+cnt)\((\d+)\)", t))
            for k, v in b.items(): a[k] = str(min(int(v), int(a.get(k, 99))))
            res[-1] = "s_waitcnt " + " ".join(f"{k}({v})" for k, v in a.items())
        else: res.append(t)
    return res

_REG = re.compile(r"\b([vas])(\d+)\b|\b([vas])\[(\d+):(\d+)\]|\b(vcc|exec|m0)\b")
def regs(s):
    r = set()
    for m in _REG.finditer(s):
        if m.group(1): r.add((m.group(1), int(m.group(2))))
        elif m.group(3): r.update((m.group(3), k) for k in range(int(m.group(4)), int(m.group(5)) + 1))
        else: r.add((m.group(6), 0))
    return r
TRANS = ("v_exp_", "v_log_", "v_rcp_", "v_rsq_", "v_sqrt_", "v_sin_", "v_cos_")
class I:
    def __init__(self, t):
        self.t = t
        p = t.split(None, 1); self.op = p[0]; rest = p[1] if len(p) > 1 else ""
        self.args = [a.strip() for a in rest.split(",")]
        op = self.op
        self.mfma = op.startswith("v_mfma"); self.valu = op.startswith("v_") and not self.mfma
        self.vmem = op.startswith(("buffer_", "global_")); self.ds = op.startswith("ds_")
        self.salu = op.startswith("s_")
        self.trans = op.startswith(TRANS); self.dot = op.startswith("v_dot")
        self.dpp = "_dpp" in op or "row_" in t or "quad_perm" in t
        self.perm = op.startswith("v_permlane"); self.rdlane = op.startswith(("v_readlane", "v_readfirstlane"))
        self.ldsdma = self.vmem and (t.rstrip().endswith(" lds") or " lds " in t or "load_lds" in op)
        self.passes = 0
        a = self.args; w = set(); r = set()
        if self.mfma:
            self.passes = 4 if "16x16x32" in op else 8
            w = regs(a[0]); self.A = regs(a[1]); self.B = regs(a[2]); self.C = regs(a[3]); r = self.A | self.B | self.C
        elif self.valu:
            w = regs(a[0]); r = set().union(*[regs(x) for x in a[1:]]) if len(a) > 1 else set()
            if self.perm or op.startswith("v_swap"): w |= regs(a[1]); r |= regs(a[0])
            if op.startswith(("v_fmac", "v_dot2c", "v_writelane", "v_pk_fmac")) or self.dpp: r |= regs(a[0])
            if op.startswith(("v_add_co", "v_sub_co", "v_addc_co")): w |= regs(a[1])
            if op.startswith("v_cmpx"): w.add(("exec", 0))
        elif self.vmem:
            if "load" in op and not self.ldsdma:
                w = regs(a[0]); r = set().union(*[regs(x) for x in a[1:]])
            else:
                r = set().union(*[regs(x) for x in a])
                if "atomic" in op and "sc0" in t: w = regs(a[0])
            self.wide_store = ("store" in op and ("x3" in op or "x4" in op))
            self.data = (regs(a[0]) if op.startswith("buffer") else regs(a[1])) if "store" in op else set()
        elif self.ds:
            if op.startswith(("ds_read", "ds_bpermute", "ds_permute", "ds_swizzle")):
                w = regs(a[0]); r = set().union(*[regs(x) for x in a[1:]])
            else: r = set().union(*[regs(x) for x in a])
        elif self.salu:
            if op.startswith(("s_cmp", "s_cbranch", "s_branch", "s_waitcnt", "s_barrier", "s_nop", "s_endpgm", "s_setprio", "s_bitcmp")): r = set().union(*[regs(x) for x in a])
            else:
                w = regs(a[0]); r = set().union(*[regs(x) for x in a[1:]]) if len(a) > 1 else set()
                if "saveexec" in op: w.add(("exec", 0))
        self.w = w; self.r = r
        self.states = (int(a[0], 0) + 1) if op == "s_nop" else 1

def need(p, c):
    n = 0
    vec = lambda s: {x for x in s if x[0] in "va" and len(x[0]) == 1}
    sc = lambda s: {x for x in s if x[0] == "s" or x[0] == "vcc"}
    if p.valu:
        pw = vec(p.w)
        if c.mfma and pw & c.r: n = max(n, 3 if p.dot else 2)
        if c.perm and pw & c.r: n = max(n, 2)
        if c.valu and c.dpp and pw & c.r: n = max(n, 2)
        if c.rdlane and pw & c.r: n = max(n, 1)
        if p.trans and c.valu and not c.trans and pw & c.r: n = max(n, 1)
        if p.trans and (c.vmem or c.ds) and pw & c.r: n = max(n, 1)
        if p.dot and pw & (c.r | c.w):
            if not (c.dot and c.op == p.op and not (pw & (regs(c.args[1]) | regs(c.args[2])))): n = max(n, 3)
        ps = sc(p.w)
        if ps:
            if c.vmem and ps & c.r: n = max(n, 5)
            if c.valu and ps & c.r: n = max(n, 4 if c.rdlane else 2)
        if ("exec", 0) in p.w and (c.mfma or c.perm or c.rdlane): n = max(n, 4)
        if ("exec", 0) in p.w and c.dpp: n = max(n, 5)
    if p.mfma:
        big = {4: 8, 8: 12}[p.passes]
        if c.mfma:
            if p.w & (c.A | c.B): n = max(n, big)
            if p.w & c.C and not (p.w == c.C and p.passes == c.passes): n = max(n, big - 2)
            if p.w & c.w and not (p.w & c.C): n = max(n, big - 2)
        elif c.valu or c.vmem or c.ds:
            if p.w & (c.r | c.w): n = max(n, big)
            if c.valu and p.C & c.w: n = max(n, {4: 3, 8: 7}[p.passes])
    if p.salu and ("m0", 0) in p.w and c.ldsdma: n = max(n, 1)
    if p.vmem and getattr(p, "wide_store", False) and p.data & c.w: n = max(n, 2 if c.valu else 1)
    return n

def pad_hazards(lines, verbose=False):
    out = []; hist = []
    added = 0
    for t in lines:
        s = t.strip()
        if not s or s.startswith(";") or s.startswith(".") or s.endswith(":"):
            out.append(t); continue
        c = I(s.split(";")[0].strip())
        dist = 0; req = 0
        for p in reversed(hist):
            k = need(p, c)
            if k > dist: req = max(req, k - dist)
            dist += p.states
            if dist >= 20: break
        if req:
            out.append(f"s_nop {req - 1}"); hist.append(I(f"s_nop {req - 1}")); added += req
            if verbose: print(f"pad {req} before: {s}")
        out.append(t); hist.append(c)
        if c.op in ("s_branch", "s_endpgm"): hist = []
        hist = hist[-24:]
    return out, added

class Regs:
    def __init__(self, prefix, lo, hi): self.p = prefix; self.n = lo; self.hi = hi; self.max = lo
    def get(self, cnt=1, align=None):
        if align is None: align = 1 if cnt == 1 else (2 if self.p != "s" or cnt == 2 else 4)
        self.n = (self.n + align - 1) // align * align
        r = self.n; self.n += cnt
        assert self.n <= self.hi, f"out of {self.p} regs"
        self.max = max(self.max, self.n)
        return r
    def mark(self): return self.n
    def release(self, m): self.n = m
def v(r, n=1): return f"v{r}" if n == 1 else f"v[{r}:{r+n-1}]"
def a(r, n=1): return f"a{r}" if n == 1 else f"a[{r}:{r+n-1}]"
def s(r, n=1): return f"s{r}" if n == 1 else f"s[{r}:{r+n-1}]"

def cost(g):
    c = 0
    for o in (g if isinstance(g, list) else [g]):
        t = o.text
        if o.kind in ("wvm", "wlg", "label", "cmt"): continue
        if t.startswith("v_mfma"): c += 16
        elif t.startswith(TRANS): c += 8
        elif o.kind == "lg": c += 1
        else: c += 4
    return c
def singles(stream):
    out = []; pend = S()
    for o in stream:
        pend.append(o)
        if o.kind in ("wvm", "wlg", "cmt"): continue
        out.append(pend); pend = S()
    if pend: out.append(pend)
    return out
def spread(main, fill, lo=0.0, hi=1.0):
    tot = sum(cost(g) for g in main); m = len(fill)
    out = []; t = 0; j = 0
    for g in main:
        out.append(g); t += cost(g)
        while j < m and t >= tot * (lo + (hi - lo) * j / max(m, 1)):
            out.append(fill[j]); j += 1
    out.extend(fill[j:])
    return out
def flat(groups):
    o = S()
    for g in groups: o.extend(g if isinstance(g, list) else [g])
    return o

def ahead(main, loads, hi):
    out = spread(main, loads, 0.0, hi)
    ids = {id(g): k for k, g in enumerate(loads)}
    tagof = lambda g: [o.tag for o in g if o.kind == "vm"]
    res = []; done = set()
    for g in out:
        if id(g) in ids:
            if id(g) not in done: res.append(g); done.add(id(g))
            continue
        waits = [t for o in g if o.kind == "wvm" for t in (o.tag if isinstance(o.tag, list) else [o.tag])]
        last = max([k for k, l in enumerate(loads) if id(l) not in done and set(tagof(l)) & set(waits)], default=-1)
        for l in loads[:last + 1]:
            if id(l) not in done: res.append(l); done.add(id(l))
        res.append(g)
    return res
```

```python
import sys, os, struct, math
sys.path.insert(0, os.path.dirname(os.path.abspath(__file__)))
from asmlib import *

NAME = "sequential_preLN__ssm_conv_h3__geglu_ffn__prompt_kernel"
CFG = dict(diag=0, g1map=(8, 4), g2map=2, out_sc=(" sc1", " sc1", " sc1", ""), spin=200000,
           pw=-1, cw=0, px=0, cx=2, epiA=8, f2a=10, wconv=(2, 2, 0, 0, 1, 2, 2, 2, 4, 5, 5, 5, 5, 5, 5, 0),
           sg_ld=12, sg_chk=16, wd_in_b=36, u0_early=8, wd_gb=3, f3b_at=30, npf=9, hwhen=1, pb_at=10, cb_at=12, hb_a=2)
for kv in sys.argv[2:]:
    k, val = kv.split("=", 1); CFG[k] = eval(val)
DIAG = CFG["diag"]
LF = CFG.get("lf", 7); FSP = 1 << LF

F1A, F2A, F2B, F3A, F3B, FW, FX, FD = 0, 160, 320, 480, 736, 992, 1056, 1152
EPOCH = 0x3ff00
STATS = 0x40000; CSUM = 0x48000; DIAGO = 0x60000; SG_WS = 0xA0000
U_WS = 0x100000; XT_WS = 0x380000; HT_WS = 0x600000; WF_WS = 0x880000; WDF_WS = 0xC40000; ACT_WS = 0xE20000
WS_END = ACT_WS + 32 * 196608
L_U = 0; U_ROW = 4576; L_HC = 18304; HC_COPY = 4160; HC_CH = 16640
L_SHU = 98304; L_XT = 131072; L_ST = 147456
L_R1 = 81920; L_R2 = 0
def f2u(x): return struct.unpack("<I", struct.pack("<f", x))[0]
C0 = -2.0 * math.log2(math.e) * math.sqrt(2.0 / math.pi); C1 = C0 * 0.044715

sX, sK, sV, sSH, sHK, sWG, sWU, sWD, sOUT, sWS = 4, 8, 12, 16, 20, 24, 28, 32, 36, 40
sDp = 44
SR = Regs("s", 46, 102)
sW = SR.get(); sXc = SR.get(); sY = SR.get(); sMask = SR.get(); sSpin = SR.get()
sRB = SR.get(); sCB = SR.get(); sRot = SR.get(); sWoff = SR.get(); sWend = SR.get(); sWt = SR.get()
sHoff = SR.get(); sHend = SR.get(); sM0 = SR.get(); sF2 = SR.get()
sT = [SR.get() for _ in range(8)]
sP = [SR.get(2) for _ in range(4)]
sN = SR.get(2)
sStamp = SR.get(2) if DIAG else None
sStampC = SR.get(2) if DIAG else None
VR = Regs("v", 1, 256)
vL = VR.get(); vL16 = VR.get(); vFO = VR.get(); vFOc = VR.get(); vJ = VR.get(); vG = VR.get(); vPA = VR.get(); vN = VR.get(2)
vPoll = VR.get(2); vPollB = VR.get(2); vPollC = VR.get(2); vStamps = VR.get() if DIAG else None
slow = S()
_lab = [0]
def newlab(p): _lab[0] += 1; return f"L_{p}{_lab[0]}"

def stamp(o, k):
    if not DIAG or k in CFG.get("nostamp", ()): return
    o.i(f"s_memrealtime {s(sStamp,2)}\ns_memtime {s(sStampC,2)}"); o.wlg0(); o.i(f"v_writelane_b32 {v(vStamps)}, {s(sStamp)}, {k}\nv_writelane_b32 {v(vStamps)}, {s(sStampC)}, {32+k}")

def spin_check(o, tag, load_txts, chk, nap=0):
    back = newlab("ok"); sl = newlab("spin"); lp = newlab("lp")
    o.wvm(tag); chk(o); o.i(f"s_cbranch_vccnz {sl}"); o.label(back)
    out = newlab("out")
    slow.label(sl); slow.i(f"s_mov_b32 {s(sSpin)}, {CFG['spin']}"); slow.label(lp)
    slow.i("s_mov_b64 exec, vcc")
    if nap: slow.i(f"s_sleep {nap}")
    for t in load_txts: slow.i(t)
    slow.i("s_waitcnt vmcnt(0)"); chk(slow)
    slow.i(f"s_cbranch_vccz {out}\ns_sub_u32 {s(sSpin)}, {s(sSpin)}, 1\ns_cmp_lg_u32 {s(sSpin)}, 0\ns_cbranch_scc1 {lp}")
    slow.label(out); slow.i(f"s_mov_b64 exec, -1\ns_branch {back}")
def poll_txt(loads): return [f"buffer_load_dwordx2 {v(d,2)}, {v(ad)}, {s(sWS,4)}, {so} offen sc1" for d, ad, so in loads]
def poll_issue(o, loads, tag):
    for t in poll_txt(loads): o.vm(t, tag)
def poll_check(o, loads, tag, nap=None):
    def chk(q):
        for k, (d, *_) in enumerate(loads):
            if k == 0: q.i(f"v_cmp_ne_u64 vcc, {v(vN,2)}, {v(d,2)}")
            else: q.i(f"v_cmp_ne_u64 {s(sP[0],2)}, {v(vN,2)}, {v(d,2)}\ns_or_b64 vcc, vcc, {s(sP[0],2)}")
    spin_check(o, tag, poll_txt(loads), chk, CFG.get("nap", 0) if nap is None else nap)
def poll(o, loads, nap=None):
    t = newlab("pt"); poll_issue(o, loads, t); poll_check(o, loads, t, nap)
def flag_store(o, soff, vfo=None):
    o.vm(f"buffer_store_dwordx2 {v(vN,2)}, {v(vFO if vfo is None else vfo)}, {s(sWS,4)}, {soff} offen sc1")
def nonce(o):
    o.i(f"s_add_u32 {s(sN)}, {s(sN)}, 0x7f4a7c15\ns_addc_u32 {s(sN+1)}, {s(sN+1)}, 0x9e3779b9\nv_mov_b32 {v(vN)}, {s(sN)}\nv_mov_b32 {v(vN+1)}, {s(sN+1)}")
def bf16r(o, d, x):
    o.i(f"v_cvt_pk_bf16_f32 {v(d)}, {v(x)}, {v(x)}\nv_lshlrev_b32 {v(d)}, 16, {v(d)}")
def ln_finalize(o, vsum, vsq, vmean, vsd, t):
    o.i(f"v_mul_f32 {v(vmean)}, {hex(f2u(1/640))}, {v(vsum)}")
    o.i(f"v_mul_f32 {v(t)}, {hex(f2u(1/640))}, {v(vsq)}")
    o.i(f"v_fma_f32 {v(t)}, -{v(vmean)}, {v(vmean)}, {v(t)}")
    o.i(f"v_max_f32 {v(t)}, 0, {v(t)}")
    bf16r(o, vmean, vmean); bf16r(o, t, t)
    o.i(f"v_add_f32 {v(t)}, {hex(f2u(1e-5))}, {v(t)}")
    bf16r(o, t, t)
    o.i(f"v_sqrt_f32 {v(t)}, {v(t)}")
    bf16r(o, vsd, t)
def srd(o, *ps):
    for r, n in ps: o.i(f"s_mov_b32 {s(r+2)}, {n}\ns_mov_b32 {s(r+3)}, 0x00020000")

def prologue():
    o = S()
    for r, off in ((sK, 8), (sV, 16), (sX, 0), (sSH, 24), (sHK, 32), (sWS, 96), (sWG, 56), (sWU, 64), (sWD, 72), (sOUT, 80), (sDp, 40)):
        o.i(f"s_load_dwordx2 {s(r,2)}, s[0:1], {off}")
    if DIAG: o.i(f"s_memrealtime {s(sStamp,2)}\ns_memtime {s(sStampC,2)}")
    o.i("s_cmp_ge_u32 s2, 256\ns_cbranch_scc1 L_end")
    o.i(f"v_lshrrev_b32 {v(vPoll)}, 6, v0\nv_and_b32 {v(vL)}, 63, v0")
    o.i(f"v_readfirstlane_b32 {s(sW)}, {v(vPoll)}")
    o.i(f"s_and_b32 {s(sXc)}, s2, 7\ns_lshr_b32 {s(sY)}, s2, 3\nv_bfrev_b32 {v(vFOc)}, 1\nv_lshlrev_b32 {v(vL16)}, 4, {v(vL)}")
    o.i(f"v_and_b32 {v(vJ)}, 15, {v(vL)}\nv_lshrrev_b32 {v(vG)}, 4, {v(vL)}")
    o.i(f"s_cmp_ge_u32 {s(sY)}, 20\ns_cbranch_scc1 L_prep")
    return o
def kernarg_ready(o):
    o.wlg0()
    if DIAG: o.i(f"v_mov_b32 {v(vStamps)}, 0\nv_writelane_b32 {v(vStamps)}, {s(sStamp)}, 0\nv_writelane_b32 {v(vStamps)}, {s(sStampC)}, 32")
def common_setup(o):
    if CFG.get("wsbase", 0): o.i(f"s_add_u32 {s(sWS)}, {s(sWS)}, {CFG['wsbase'] << 20}\ns_addc_u32 {s(sWS+1)}, {s(sWS+1)}, 0")
    o.i(f"s_load_dwordx2 {s(sN,2)}, {s(sWS,2)}, {EPOCH}")
    srd(o, (sWS, WS_END), (sOUT, 2621440))
    o.i(f"s_mov_b32 {s(sMask)}, 0xffff0000\nv_cmp_ne_u32 vcc, 0, v0")
    R, C = CFG["g1map"]; lr = R.bit_length() - 1; nxr = 16 // R; lx = nxr.bit_length() - 1
    o.i(f"s_and_b32 {s(sRB)}, {s(sXc)}, {nxr-1}\ns_lshl_b32 {s(sRB)}, {s(sRB)}, {lr}\ns_and_b32 {s(sWt)}, {s(sY)}, {R-1}\ns_add_u32 {s(sRB)}, {s(sRB)}, {s(sWt)}")
    o.i(f"v_cndmask_b32 {v(vFO)}, 0, {v(vFOc)}, vcc")
    o.i(f"s_lshr_b32 {s(sCB)}, {s(sXc)}, {lx}\ns_mul_i32 {s(sCB)}, {s(sCB)}, {C}\ns_lshr_b32 {s(sWt)}, {s(sY)}, {lr}\ns_add_u32 {s(sCB)}, {s(sCB)}, {s(sWt)}")
    o.i(f"s_lshr_b32 {s(sRot)}, {s(sCB)}, 2")
    o.i(f"s_lshl_b32 {s(sWoff)}, {s(sCB)}, 2\ns_add_u32 {s(sWoff)}, {s(sWoff)}, {s(sW)}\ns_mul_i32 {s(sWoff)}, {s(sWoff)}, 61440\ns_add_u32 {s(sWend)}, {s(sWoff)}, {WF_WS + 61440}")
    o.i(f"s_mul_i32 {s(sWt)}, {s(sRot)}, 15360\ns_add_u32 {s(sWoff)}, {s(sWoff)}, {s(sWt)}\ns_add_u32 {s(sWoff)}, {s(sWoff)}, {WF_WS}")

def w_loads(tagp="W", per=3, wrap=True):
    r = []
    for i in range(60):
        g = S()
        m = 3 if wrap else 4
        g.vm(f"buffer_load_dwordx4 {a(4*i,4)}, {v(vL16)}, {s(sWS,4)}, {s(sWoff)} offen offset:{1024*(i%m)} sc1", (tagp, i // per))
        if i % m == m - 1 and i < 59: g.i(f"s_add_u32 {s(sWoff)}, {s(sWoff)}, {1024*m}")
        if wrap and i % 15 == 14 and i < 59: g.i(f"s_cmp_eq_u32 {s(sWoff)}, {s(sWend)}\ns_cselect_b32 {s(sWt)}, 61440, 0\ns_sub_u32 {s(sWoff)}, {s(sWoff)}, {s(sWt)}")
        r.append(g)
    return r
NW0 = sum(CFG["wconv"])
def h_dma_setup(o, half):
    o.i(f"s_add_u32 {s(sM0)}, {s(sW)}, 1\ns_and_b32 {s(sM0)}, {s(sM0)}, 3\ns_lshl_b32 {s(sM0)}, {s(sM0)}, 12")
    o.i(f"s_mul_i32 {s(sHoff)}, {s(sRB)}, 81920\ns_add_u32 {s(sHend)}, {s(sHoff)}, {HT_WS + half*16*81920 + 81920}\ns_add_u32 {s(sHoff)}, {s(sHoff)}, {s(sM0)}")
    o.i(f"s_mul_i32 {s(sWt)}, {s(sRot)}, 20480\ns_add_u32 {s(sHoff)}, {s(sHoff)}, {s(sWt)}\ns_add_u32 {s(sHoff)}, {s(sHoff)}, {HT_WS + half*16*81920}")
    if (L_R1 if half == 0 else L_R2): o.i(f"s_add_u32 {s(sM0)}, {s(sM0)}, {L_R1 if half == 0 else L_R2}")
def h_dma(gam, half):
    r = []
    for q in range(4):
        g = S()
        if q == 0: g.i(f"s_mov_b32 m0, {s(sM0)}\ns_add_u32 {s(sM0)}, {s(sM0)}, 16384")
        g.vm(f"buffer_load_dwordx4 {v(vL16)}, {s(sWS,4)}, {s(sHoff)} offen offset:{1024*q} sc1 lds", ("H", half, gam))
        if q == 3 and gam < 4: g.i(f"s_add_u32 {s(sHoff)}, {s(sHoff)}, 16384\ns_cmp_ge_u32 {s(sHoff)}, {s(sHend)}\ns_cselect_b32 {s(sWt)}, 81920, 0\ns_sub_u32 {s(sHoff)}, {s(sHoff)}, {s(sWt)}")
        r.append(g)
    return r
def f2_loads(): return [(vPoll, vPA, s(sT[5])), (vPollB, vPA, s(sT[6])), (vPollC, vPA, s(sT[7]))]
def f2_setup(o, half):
    base = (F2A if half == 0 else F2B) * FSP
    o.i(f"v_lshlrev_b32 {v(vPA)}, {LF}, {v(vL)}")
    o.i(f"s_mov_b32 {s(sT[5])}, {base}\ns_mov_b32 {s(sT[6])}, {base + 64*FSP}\ns_mov_b32 {s(sT[7])}, {base + 96*FSP}")
def gaps(mm, fill, extra):
    n = len(mm); slots = [group(g) for g in mm]; load = [0] * n
    for k, f in enumerate(fill):
        j = k if len(fill) <= n else k * n // len(fill)
        slots[j].add(f); load[j] += 1
    if extra:
        free = [j for j in range(n) if load[j] == 0]
        if len(extra) <= len(free): pos = [free[k * len(free) // len(extra)] for k in range(len(extra))]
        else: pos = [min(n - 1, (2 * k + 1) * n // (2 * len(extra))) for k in range(len(extra))]
        for p, e in zip(pos, extra): slots[p].add(e)
    return slots

def role_conv():
    o = S(); m0 = VR.mark()
    sCI, sCBK, sCH, sU, sD = SR.get(), SR.get(), SR.get(), SR.get(), SR.get(2)
    vAa, vBa, vUe, vXo, vSo, vHo, vPW = [VR.get() for _ in range(7)]
    m1 = VR.mark()
    vcgl, vtcl, vOff, vOffH, vt0, vt1 = [VR.get() for _ in range(6)]
    kr = VR.get(22); vr_ = VR.get(16); shr = VR.get(8); wt = VR.get(16)
    o.i(f"s_mul_i32 {s(sCI)}, {s(sXc)}, 20\ns_add_u32 {s(sCI)}, {s(sCI)}, {s(sY)}\ns_lshr_b32 {s(sCBK)}, {s(sCI)}, 4\ns_and_b32 {s(sT[1])}, {s(sCI)}, 15")
    o.i(f"v_and_b32 {v(vcgl)}, 7, {v(vL)}\nv_lshrrev_b32 {v(vtcl)}, 3, {v(vL)}")
    o.i(f"s_and_b32 {s(sT[0])}, {s(sW)}, 1\ns_lshl1_add_u32 {s(sT[0])}, {s(sT[1])}, {s(sT[0])}")
    o.i(f"s_lshr_b32 {s(sT[1])}, {s(sW)}, 1\ns_lshl1_add_u32 {s(sT[1])}, {s(sCBK)}, {s(sT[1])}")
    o.i(f"s_mul_i32 {s(sT[2])}, {s(sT[0])}, {64*1280}\ns_lshl_b32 {s(sT[3])}, {s(sT[1])}, 6\ns_add_u32 {s(sT[2])}, {s(sT[2])}, {s(sT[3])}")
    o.i(f"v_mul_u32_u24 {v(vOff)}, {8*1280}, {v(vtcl)}\nv_lshl_add_u32 {v(vOff)}, {v(vcgl)}, 3, {v(vOff)}\nv_add_u32 {v(vOff)}, {s(sT[2])}, {v(vOff)}")
    o.i(f"v_subrev_u32 {v(vOffH)}, 3840, {v(vOff)}\nv_cmp_gt_u32 vcc, 3840, {v(vOff)}\ns_movk_i32 {s(sT[4])}, 5120")
    srd(o, (sK, 2621440), (sV, 2621440), (sSH, 5120))
    o.i(f"v_cndmask_b32 {v(vOffH)}, {v(vOffH)}, {v(vFOc)}, vcc\ns_lshl_b32 {s(sT[3])}, {s(sT[1])}, 8\nv_lshlrev_b32 {v(vt0)}, 5, {v(vcgl)}")
    kernarg_ready(o)
    stamp(o, 16)
    for r in range(8):
        so = "0" if r < 4 else s(sT[4])
        o.vm(f"buffer_load_dwordx2 {v(kr+6+2*r,2)}, {v(vOff)}, {s(sK,4)}, {so} offen offset:{1280*(r%4)}", ("k", r))
    for r in range(3): o.vm(f"buffer_load_dwordx2 {v(kr+2*r,2)}, {v(vOffH)}, {s(sK,4)}, 0 offen offset:{1280*r}", "kh")
    o.vm(f"buffer_load_dwordx4 {v(shr,4)}, {v(vt0)}, {s(sSH,4)}, {s(sT[3])} offen", "sh")
    o.vm(f"buffer_load_dwordx4 {v(shr+4,4)}, {v(vt0)}, {s(sSH,4)}, {s(sT[3])} offen offset:16", "sh")
    for r in range(8):
        so = "0" if r < 4 else s(sT[4])
        o.vm(f"buffer_load_dwordx2 {v(vr_+2*r,2)}, {v(vOff)}, {s(sV,4)}, {so} offen offset:{1280*(r%4)}", ("v", r))
    stamp(o, 17)
    hd = VR.get(16); hm = VR.get(8); vM0, vM1 = VR.get(), VR.get()
    srd(o, (sHK, 2621440))
    o.i(f"s_lshl2_add_u32 {s(sCH)}, {s(sCI)}, {s(sW)}\ns_lshl_b32 {s(sT[5])}, {s(sCH)}, 12")
    o.i(f"s_lshr_b32 {s(sT[6])}, {s(sCH)}, 1\ns_lshl_b32 {s(sT[6])}, {s(sT[6])}, 2\ns_load_dword {s(sD)}, {s(sDp,2)}, {s(sT[6])}")
    o.i(f"v_cmp_eq_u32 vcc, 0, {v(vL)}\nv_add_u32 {v(vM1)}, 1016, {v(vL16)}\nv_subrev_u32 {v(vM0)}, 8, {v(vL16)}\nv_cndmask_b32 {v(vM0)}, {v(vM0)}, {v(vFOc)}, vcc")
    sech = S()
    for it in range(4):
        sech.vm(f"buffer_load_dwordx4 {v(hd+4*it,4)}, {v(vL16)}, {s(sHK,4)}, {s(sT[5])} offen offset:{1024*it}", "hk")
        sech.vm(f"buffer_load_dwordx2 {v(hm+2*it,2)}, {v(vM0 if it == 0 else vM1)}, {s(sHK,4)}, {s(sT[5])} offen offset:{1024*(it-1) if it else 0}", "hk")
    hw = CFG["hwhen"]
    if hw == 0: o.add(sech)
    common_setup(o)
    vSW, vSR, vSt = VR.get(), VR.get(4, 1), VR.get()
    o.i(f"s_lshl_b32 {s(sT[2])}, {s(sW)}, 12\ns_add_u32 {s(sT[2])}, {s(sT[2])}, {L_SHU}")
    o.i(f"v_xor_b32 {v(vt0)}, {v(vtcl)}, {v(vcgl)}\nv_lshlrev_b32 {v(vt0)}, 4, {v(vt0)}\nv_lshl_add_u32 {v(vSW)}, {v(vcgl)}, 9, {v(vt0)}\nv_add_u32 {v(vSW)}, {s(sT[2])}, {v(vSW)}")
    o.i(f"v_lshrrev_b32 {v(vt0)}, 5, {v(vL)}\nv_xor_b32 {v(vt0)}, {v(vt0)}, {v(vcgl)}\nv_lshlrev_b32 {v(vt0)}, 4, {v(vt0)}\nv_lshl_add_u32 {v(vSR)}, {v(vtcl)}, 7, {v(vt0)}\nv_add_u32 {v(vSR)}, {s(sT[2])}, {v(vSR)}")
    for i in range(1, 4): o.i(f"v_xor_b32 {v(vSR+i)}, {32*i}, {v(vSR)}")
    o.i(f"v_lshlrev_b32 {v(vSt)}, 12, {v(vtcl)}\nv_lshl_add_u32 {v(vSt)}, {v(vcgl)}, 4, {v(vSt)}")
    o.i(f"v_bfe_u32 {v(vt0)}, {v(vJ)}, 1, 2\nv_xor_b32 {v(vt0)}, {s(sW)}, {v(vt0)}\nv_lshlrev_b32 {v(vt0)}, 4, {v(vt0)}\nv_lshl_add_u32 {v(vXo)}, {v(vJ)}, 7, {v(vt0)}\nv_lshrrev_b32 {v(vt0)}, 1, {v(vG)}\nv_lshl_add_u32 {v(vXo)}, {v(vt0)}, 6, {v(vXo)}")
    o.i(f"v_and_b32 {v(vt0)}, 1, {v(vG)}\nv_lshl_add_u32 {v(vXo)}, {v(vt0)}, 3, {v(vXo)}\nv_add_u32 {v(vXo)}, {L_XT}, {v(vXo)}\nv_add_u32 {v(vSo)}, {L_ST}, {v(vL16)}")
    o.i(f"s_lshl_b32 {s(sU)}, {s(sT[1])}, 17\ns_lshl_b32 {s(sT[3])}, {s(sT[0])}, 7\ns_add_u32 {s(sU)}, {s(sU)}, {s(sT[3])}")
    o.i(f"s_mul_i32 {s(sT[2])}, {s(sW)}, {HC_CH}\ns_add_u32 {s(sT[2])}, {s(sT[2])}, {L_HC + 56}")
    o.i(f"v_and_b32 {v(vt0)}, 3, {v(vJ)}\nv_sub_u32 {v(vt0)}, 3, {v(vt0)}\nv_mul_u32_u24 {v(vAa)}, {HC_COPY}, {v(vt0)}\nv_lshrrev_b32 {v(vt0)}, 2, {v(vJ)}")
    o.i(f"v_lshl_add_u32 {v(vAa)}, {v(vt0)}, 3, {v(vAa)}\nv_lshlrev_b32 {v(vt0)}, 4, {v(vG)}\nv_sub_u32 {v(vAa)}, {v(vAa)}, {v(vt0)}\nv_add_u32 {v(vAa)}, {s(sT[2])}, {v(vAa)}")
    o.i(f"s_mul_i32 {s(sT[3])}, {s(sW)}, {U_ROW}\nv_lshl_add_u32 {v(vBa)}, {v(vJ)}, 1, {v(vG)}\nv_lshl_add_u32 {v(vBa)}, {v(vBa)}, 4, {s(sT[3])}")
    o.i(f"v_lshrrev_b32 {v(vt0)}, 1, {v(vG)}\nv_lshl_add_u32 {v(vUe)}, {v(vJ)}, 1, {v(vt0)}\nv_lshlrev_b32 {v(vUe)}, 4, {v(vUe)}\nv_and_b32 {v(vt1)}, 1, {v(vG)}\nv_lshlrev_b32 {v(vt1)}, 3, {v(vt1)}\nv_sub_u32 {v(vUe)}, {v(vUe)}, {v(vt1)}")
    o.i(f"s_add_u32 {s(sT[6])}, {s(sT[3])}, {L_U + 488}\nv_add_u32 {v(vUe)}, {s(sT[6])}, {v(vUe)}")
    o.i(f"s_bfe_u32 {s(sT[6])}, {s(sCH)}, 0x10001\ns_bfe_u32 {s(sT[7])}, {s(sCH)}, 0x10003\ns_lshl1_add_u32 {s(sT[6])}, {s(sT[7])}, {s(sT[6])}")
    o.i(f"v_and_b32 {v(vt0)}, 2, {v(vG)}\nv_bfe_u32 {v(vt1)}, {v(vJ)}, 1, 1\nv_or_b32 {v(vt0)}, {v(vt0)}, {v(vt1)}\nv_xor_b32 {v(vt0)}, {s(sT[6])}, {v(vt0)}\nv_lshlrev_b32 {v(vt0)}, 5, {v(vt0)}")
    o.i(f"v_and_b32 {v(vt1)}, 1, {v(vJ)}\nv_lshl_add_u32 {v(vt0)}, {v(vt1)}, 4, {v(vt0)}\nv_and_b32 {v(vt1)}, 1, {v(vG)}\nv_lshlrev_b32 {v(vt1)}, 2, {v(vt1)}\nv_lshrrev_b32 {v(vHo)}, 2, {v(vJ)}\nv_add_u32 {v(vHo)}, {v(vHo)}, {v(vt1)}")
    o.i(f"s_mov_b32 {s(sT[7])}, 81920\nv_mad_u32_u24 {v(vHo)}, {v(vHo)}, {s(sT[7])}, {v(vt0)}")
    zq = VR.get(4); vHW = VR.get()
    for k in range(4): o.i(f"v_mov_b32 {v(zq+k)}, 0")
    o.i(f"v_add_u32 {v(vt0)}, {s(sT[3])}, {v(vL16)}\nv_subrev_u32 {v(vt1)}, 30, {v(vL)}\nv_lshrrev_b32 {v(vHW)}, 1, {v(vt1)}\nv_mul_u32_u24 {v(vHW)}, {HC_COPY}, {v(vHW)}\nv_and_b32 {v(vt1)}, 1, {v(vt1)}\nv_lshl_add_u32 {v(vHW)}, {v(vt1)}, 4, {v(vHW)}")
    o.i(f"v_cmp_gt_u32 vcc, 30, {v(vL)}\ns_sub_u32 {s(sT[2])}, {s(sT[2])}, 56\nv_add_u32 {v(vHW)}, {s(sT[2])}, {v(vHW)}\nv_cndmask_b32 {v(vt0)}, {v(vHW)}, {v(vt0)}, vcc")
    o.i(f"s_mov_b32 exec_hi, 0x3f")
    o.lg(f"ds_write_b128 {v(vt0)}, {v(zq,4)}")
    o.i(f"s_mov_b32 exec_hi, -1\nv_add_u32 {v(vHW)}, {s(sT[2])}, {v(vL16)}")
    o.i(f"s_lshl_b32 {s(sF2)}, {s(sCI)}, {LF}\nv_lshlrev_b32 {v(vPA)}, {LF}, {v(vJ)}")
    o.i(f"s_lshl_b32 {s(sT[6])}, {s(sCB)}, 2\ns_add_u32 {s(sT[6])}, {s(sT[6])}, {FW}\nv_and_b32 {v(vt1)}, 3, {v(vL)}\nv_add_lshl_u32 {v(vPW)}, {v(vt1)}, {s(sT[6])}, {LF}")
    o.wlg0()
    o.i(f"s_bitcmp1_b32 {s(sCH)}, 0\ns_cselect_b32 {s(sT[6])}, 0, 16\ns_lshl_b32 {s(sD)}, {s(sD)}, {s(sT[6])}\ns_and_b32 {s(sD)}, {s(sD)}, {s(sMask)}\ns_mov_b32 {s(sD+1)}, {s(sD)}")
    nonce(o)
    stamp(o, 18)
    kf = VR.get(48); uf = VR.get(32); up = VR.get(16)
    o.wvm("sh")
    stamp(o, 1)
    if hw == 1: o.add(sech)
    for p in range(2):
        for m in range(4):
            for h in range(2):
                src = shr + 2 * (2 * p + h) + (m >> 1); d = wt + (p * 4 + m) * 2 + h
                o.i(f"v_lshlrev_b32 {v(d)}, 16, {v(src)}" if m % 2 == 0 else f"v_and_b32 {v(d)}, {s(sMask)}, {v(src)}")
    for r in range(11):
        for p in range(2):
            o.i(f"v_lshlrev_b32 {v(kf+4*r+2*p)}, 16, {v(kr+2*r+p)}\nv_and_b32 {v(kf+4*r+2*p+1)}, {s(sMask)}, {v(kr+2*r+p)}")
    for m in range(4):
        for t in range(8):
            for p in range(2):
                d = v(uf + 4 * t + 2 * p, 2); kk = v(kf + 4 * (t + 3 - m) + 2 * p, 2); w_ = v(wt + (p * 4 + m) * 2, 2)
                o.i(f"v_pk_mul_f32 {d}, {kk}, {w_}" if m == 0 else f"v_pk_fma_f32 {d}, {kk}, {w_}, {d}")
    o.wvm(("v", 7))
    for p in range(2):
        for t in range(8): o.i(f"v_lshlrev_b32 {v(kf+4*t+2*p)}, 16, {v(vr_+2*t+p)}\nv_and_b32 {v(kf+4*t+2*p+1)}, {s(sMask)}, {v(vr_+2*t+p)}")
        for t in range(8): o.i(f"v_pk_mul_f32 {v(uf+4*t+2*p,2)}, {v(uf+4*t+2*p,2)}, {v(kf+4*t+2*p,2)}")
        for c in (2 * p, 2 * p + 1):
            for q in range(4): o.i(f"v_cvt_pk_bf16_f32 {v(up+4*c+q)}, {v(uf+4*(7-2*q)+c)}, {v(uf+4*(6-2*q)+c)}")
            o.lg(f"ds_write_b128 {v(vSW)}, {v(up+4*c,4)} offset:{128*c}")
    def shuffle_out(dst, base_off, wsbase, tag):
        for i in range(4): o.lg(f"ds_read_b128 {v(dst+4*i,4)}, {v(vSR+i)} offset:{1024*i + base_off}", (tag, i))
        for i in range(4):
            o.i(f"s_add_u32 {s(sT[6])}, {s(sU)}, {wsbase + 32768*i}")
            o.wlg((tag, i))
            o.vm(f"buffer_store_dwordx4 {v(dst+4*i,4)}, {v(vSt)}, {s(sWS,4)}, {s(sT[6])} offen sc1", tag + "st")
    shuffle_out(uf, 0, U_WS, "u")
    stamp(o, 2)
    if hw == 2: o.add(sech)
    def copies(it):
        d = [hm + 2 * it, hm + 2 * it + 1] + [hd + 4 * it + k for k in range(4)]
        c1 = kf + 12 * it; c2 = c1 + 4; c3 = c1 + 8
        for k in range(4): o.i(f"v_alignbit_b32 {v(c1+k)}, {v(d[k+2])}, {v(d[k+1])}, 16")
        for k in range(4): o.i(f"v_mov_b32 {v(c2+k)}, {v(d[k+1])}")
        for k in range(4): o.i(f"v_alignbit_b32 {v(c3+k)}, {v(d[k+1])}, {v(d[k])}, 16")
        for c, r in enumerate((hd + 4 * it, c1, c2, c3)):
            o.lg(f"ds_write_b128 {v(vHW)}, {v(r,4)} offset:{c*HC_COPY + 32 + 1024*it}", ("hc", it))
    nc0 = CFG.get("copies0", 2) if hw < 2 else 0
    if nc0: o.wvm("hk")
    for it in range(nc0): copies(it)
    o.wvm("ust"); o.i("s_barrier")
    flag_store(o, s(sF2))
    stamp(o, 3)
    o.wvm("hk")
    for it in range(nc0, 4): copies(it)
    o.i(f"s_lshl_b32 {s(sT[5])}, {s(sCBK)}, {LF+4}")
    f1 = [(vPoll, vPA, s(sT[5]))]
    poll_issue(o, f1, "f1a")
    o.i(f"s_mul_i32 {s(sT[3])}, {s(sW)}, {U_ROW}\ns_add_u32 {s(sT[3])}, {s(sT[3])}, {L_U + 480}\ns_mov_b32 m0, {s(sT[3])}")
    o.i(f"s_lshl_b32 {s(sU)}, {s(sCH)}, 12\ns_add_u32 {s(sT[6])}, {s(sU)}, {U_WS}")
    poll_check(o, f1, "f1a")
    stamp(o, 4)
    for q in range(4): o.vm(f"buffer_load_dwordx4 {v(vL16)}, {s(sWS,4)}, {s(sT[6])} offen offset:{1024*q} sc1 lds", "udma")
    fw = [(vPollB, vPW, "0")]; fx = [(vPoll, vPA, s(sT[5])), (vPollC, vPA, s(sT[7]))]
    if CFG["pw"] < 0: poll_issue(o, fw, "fw")
    o.i(f"v_lshlrev_b32 {v(vPA)}, {LF}, {v(vL)}\ns_mov_b32 {s(sT[5])}, {FX*FSP}\ns_mov_b32 {s(sT[7])}, {(FX+32)*FSP}")
    VR.release(m1)
    accA = VR.get(16); accB = VR.get(16); fr = VR.get(128); xe = VR.get(8); st = VR.get(32); ue = VR.get(8); tm = VR.get(16)
    sHT = SR.get()
    o.i(f"s_lshl_b32 {s(sHT)}, {s(sCH)}, 7\ns_add_u32 {s(sHT)}, {s(sHT)}, {HT_WS}")
    def slot(c): return ("A", c) if c < 8 else ("B", c - 8)
    def fA(c, M): return fr + (c % 2) * 64 + 8 * M
    def fB(c, b): return fr + (c % 2) * 64 + 8 * b + 4
    def reads(c):
        half, m = slot(c); r = []
        if half == "A": order = [("B", 0), ("A", 0), ("B", 1), ("B", 2), ("B", 3), ("A", 1), ("A", 2), ("A", 3)]
        else: order = [("A", 0), ("B", 4), ("B", 5), ("B", 6), ("B", 7), ("A", 1), ("B", 3), ("A", 2), ("B", 2), ("A", 3), ("B", 1), ("A", 4), ("B", 0), ("A", 5), ("A", 6), ("A", 7)]
        for kind, q in order:
            if kind == "B": r.append(S().lg(f"ds_read_b128 {v(fB(c,q),4)}, {v(vBa)} offset:{L_U + 512*q - 64*m + 448}", ("f", c, "B", q)))
            else:
                r.append(S().lg(f"ds_read_b64 {v(fA(c,q),2)}, {v(vAa)} offset:{64*(8*q+m)}", ("f", c, "A", q)))
                r.append(S().lg(f"ds_read_b64 {v(fA(c,q)+2,2)}, {v(vAa)} offset:{64*(8*q+m)+8}", ("f", c, "A", q)))
        return r
    def mfmas(c):
        half, m = slot(c); lo, hi = (0, 4) if half == "A" else (4, 8); acc = accA if half == "A" else accB
        wpts = {0: 0, 1: 3} if half == "A" else {0: 2, 2: 7}
        r = []
        for M in range(hi):
            bs = [jt - M for jt in range(lo, hi) if 0 <= jt - M]
            g0 = S()
            if M in wpts:
                Ms = range(M, wpts[M] + 1)
                g0.wlg([("f", c, "A", x) for x in Ms] + [("f", c, "B", jt - x) for x in Ms for jt in range(lo, hi) if jt - x >= 0])
            for b in bs:
                d = v(acc + 4 * (M + b - lo), 4)
                cc = "0" if (m == 0 and M == 0) else d
                g = g0 if b == bs[0] else S()
                g.i(f"v_mfma_f32_16x16x32_bf16 {d}, {v(fA(c,M),4)}, {v(fB(c,b),4)}, {cc}")
                r.append(g)
        return r
    def xs_dma():
        r = []
        for base, src in ((L_XT, f"s_add_u32 {s(sT[4])}, {s(sU)}, {XT_WS}"), (L_ST, f"s_add_u32 {s(sT[4])}, {s(sT[3])}, {STATS}")):
            for q in range(4):
                g = S()
                if q == 0: g.i(f"s_lshl_b32 {s(sT[3])}, {s(sW)}, 12\ns_add_u32 m0, {s(sT[3])}, {base}\n{src}")
                g.vm(f"buffer_load_dwordx4 {v(vL16)}, {s(sWS,4)}, {s(sT[4])} offen offset:{1024*q} sc1 lds", "xs")
                r.append(g)
        return r
    def epi_reads(half):
        r = []
        for q in range(4): r.append(S().lg(f"ds_read_b64 {v(xe+2*q,2)}, {v(vXo)} offset:{2048*(4*half+q)}", ("xe", half)))
        for q in range(4):
            for h in range(2): r.append(S().lg(f"ds_read_b128 {v(st+8*q+4*h,4)}, {v(vSo)} offset:{2048*(4*half+q) + 1024*h}", ("st", half)))
        for q in range(4): r.append(S().lg(f"ds_read_b64 {v(ue+2*q,2)}, {v(vUe)} offset:{512*(4*half+q)}", ("ue", half)))
        return r
    def epilogue(half):
        e = S(); acc = accA if half == 0 else accB
        e.wlg(("xe", half))
        for q in range(4):
            t = tm + 4 * q
            e.i(f"v_lshlrev_b32 {v(t)}, 16, {v(xe+2*q)}\nv_and_b32 {v(t+1)}, {s(sMask)}, {v(xe+2*q)}\nv_lshlrev_b32 {v(t+2)}, 16, {v(xe+2*q+1)}\nv_and_b32 {v(t+3)}, {s(sMask)}, {v(xe+2*q+1)}")
        e.wlg(("st", half))
        for q in range(4):
            for h in range(2): e.i(f"v_pk_fma_f32 {v(st+8*q+2*h,2)}, {v(tm+4*q+2*h,2)}, {v(st+8*q+2*h,2)}, {v(st+8*q+4+2*h,2)}")
        e.wlg(("ue", half))
        for q in range(4):
            t = st + 8 * q + 4
            e.i(f"v_and_b32 {v(t)}, {s(sMask)}, {v(ue+2*q+1)}\nv_lshlrev_b32 {v(t+1)}, 16, {v(ue+2*q+1)}\nv_and_b32 {v(t+2)}, {s(sMask)}, {v(ue+2*q)}\nv_lshlrev_b32 {v(t+3)}, 16, {v(ue+2*q)}")
        for q in range(4):
            for h in range(2): e.i(f"v_pk_fma_f32 {v(acc+4*q+2*h,2)}, {v(st+8*q+4+2*h,2)}, {s(sD,2)}, {v(acc+4*q+2*h,2)}")
        for q in range(4):
            for h in range(2): e.i(f"v_pk_fma_f32 {v(tm+4*q+2*h,2)}, {v(st+8*q+2*h,2)}, {v(acc+4*q+2*h,2)}, {v(tm+4*q+2*h,2)}")
        for q in range(4):
            for h in range(2): e.i(f"v_cvt_pk_bf16_f32 {v(ue+2*q+h)}, {v(tm+4*q+2*h)}, {v(tm+4*q+2*h+1)}")
        for p in range(2):
            e.i(f"s_add_u32 {s(sT[4])}, {s(sHT)}, {(16*half + 8*p)*81920}")
            for h in range(2): e.i(f"v_permlane16_swap_b32 {v(ue+4*p+h)}, {v(ue+4*p+2+h)}")
            e.vm(f"buffer_store_dwordx4 {v(ue+4*p,4)}, {v(vHo)}, {s(sWS,4)}, {s(sT[4])} offen sc1", ("hst", half))
        return e
    o.wvm("udma"); o.wlg0()
    stamp(o, 5)
    for g in reads(0): o.add(g)
    wl = w_loads(); wi = 0; xsd = xs_dma()
    for c in range(16):
        fill = reads(c + 1) if c < 15 else epi_reads(1)
        extra = []
        if c == CFG["pw"]: poll_issue(o, fw, "fw")
        if c == CFG["px"]: poll_issue(o, fx, "fx")
        if c == CFG["cw"]: poll_check(o, fw, "fw")
        if c == CFG["cx"]:
            poll_check(o, fx, "fx"); extra += xsd[:4]
        if c == CFG["cx"] + 1: extra += xsd[4:]
        if c == CFG["epiA"]:
            stamp(o, 6)
            o.wvm("xs"); o.i("s_barrier")
            o.add(flat(epi_reads(0))); o.add(epilogue(0))
            stamp(o, 19)
        if c == CFG["f2a"]:
            o.wvm(("hst", 0)); o.i(f"s_barrier\ns_add_u32 {s(sT[6])}, {s(sF2)}, {F2A*FSP}"); flag_store(o, s(sT[6]))
        if c == 15:
            q = S(); f2_setup(q, 0); poll_issue(q, f2_loads(), "f2a"); h_dma_setup(q, 0); extra += singles(q)
        n = CFG["wconv"][c]; assert n == 0 or c >= CFG["cw"]
        extra += wl[wi:wi + n]; wi += n
        o.add(flat(gaps(mfmas(c), fill, extra)))
    stamp(o, 7)
    poll_check(o, f2_loads(), "f2a")
    o.add(flat(spread(singles(epilogue(1)), h_dma(0, 0) + h_dma(1, 0), 0.0, CFG.get("h01_hi", 1.0))))
    o.i(f"v_mov_b32 {v(vFOc)}, {v(vFO)}\ns_add_u32 {s(sF2)}, {s(sF2)}, {F2B*FSP}")
    VR.release(m0)
    return o

L_PX = 65536; L_PD = 106496
def role_prep():
    o = S(); m0 = VR.mark(); sm0 = SR.mark()
    o.label("L_prep")
    vt0, vt1, vt2 = VR.get(), VR.get(), VR.get()
    pf = VR.get(4)
    vr, vc = VR.get(), VR.get()
    fr = VR.get(60); xo = VR.get(5, 1); do = VR.get(5, 1); vXr, vXs, vXw, vXt = [VR.get() for _ in range(4)]
    xs = VR.get(20); acc = VR.get(4); onesr = VR.get()
    sI, sSo, sOut, sUn, sP12 = [SR.get() for _ in range(5)]
    def code_pf(q):
        lp = newlab("pc"); ln = newlab("nopf")
        q.i(f"s_cmp_ge_u32 {s(sP12)}, {CFG['npf']}\ns_cbranch_scc1 {ln}\ns_getpc_b64 {s(sP[0],2)}"); q.label(lp)
        q.i(f"s_sub_u32 {s(sP[0])}, {s(sP[0])}, {lp}-{NAME}\ns_subb_u32 {s(sP[0]+1)}, {s(sP[0]+1)}, 0\ns_lshl_b32 {s(sT[0])}, {s(sP12)}, 12\nv_lshl_add_u32 {v(vt0)}, v0, 4, {s(sT[0])}")
        q.i(f"global_load_dwordx4 {v(pf,4)}, {v(vt0)}, {s(sP[0],2)}"); q.label(ln)
    o.i(f"s_sub_u32 {s(sP12)}, {s(sY)}, 20")
    if CFG.get("pf_first", 1): code_pf(o)
    o.i(f"s_cmp_ge_u32 {s(sY)}, 28\ns_cbranch_scc1 L_dprep")
    head = o
    def divmod_c(q, add, magic, c):
        q.i(f"v_add_u32 {v(vt0)}, {add}, {v(vL)}\nv_mul_u32_u24 {v(vt1)}, {magic}, {v(vt0)}\nv_lshrrev_b32 {v(vt1)}, 16, {v(vt1)}\nv_mul_u32_u24 {v(vt2)}, {c}, {v(vt1)}\nv_sub_u32 {v(vt0)}, {v(vt0)}, {v(vt2)}")
    def frag_out(q, i):
        q.wlg(("t", i))
        q.vm(f"buffer_store_dwordx4 {v(fr+4*i,4)}, {v(vL16)}, {s(sWS,4)}, {s(sOut)} offen offset:{1024*(i%4)} sc1", "wst")
        if i % 4 == 3: q.i(f"s_add_u32 {s(sOut)}, {s(sOut)}, 4096")
    def x_addr(q):
        srd(q, (sX, 2621440))
        q.i(f"s_lshr_b32 {s(sT[0])}, {s(sW)}, 1\ns_lshl_b32 {s(sT[0])}, {s(sT[0])}, 2\ns_movk_i32 {s(sT[1])}, 1280")
        for i in range(5):
            divmod_c(q, 64 * i, 820, 80)
            q.i(f"v_or_b32 {v(vt2)}, {s(sT[0])}, {v(vt1)}\nv_lshlrev_b32 {v(vt2)}, 1, {v(vt2)}\nv_xor_b32 {v(vt0)}, {v(vt0)}, {v(vt2)}\nv_lshlrev_b32 {v(vt0)}, 4, {v(vt0)}\nv_mad_u32_u24 {v(xo+i)}, {v(vt1)}, {s(sT[1])}, {v(vt0)}")
    def x_dma(q, k):
        q.i(f"s_lshl2_add_u32 {s(sT[0])}, {s(sUn)}, {s(sW)}\ns_mul_i32 {s(sT[0])}, {s(sT[0])}, 5120\ns_mul_i32 {s(sT[1])}, {s(sW)}, 5120")
        if k: q.i(f"s_add_u32 {s(sT[0])}, {s(sT[0])}, {20480*k}")
        for i in range(5):
            q.i(f"s_add_u32 m0, {s(sT[1])}, {L_PX + 20480*k + i*1024}\ns_nop 0")
            q.vm(f"buffer_load_dwordx4 {v(xo+i)}, {s(sX,4)}, {s(sT[0])} offen lds", ("xd", k))
    def x_setup(q):
        q.i(f"v_and_b32 {v(vt0)}, 1, {v(vG)}\nv_lshl_add_u32 {v(vt1)}, {v(vt0)}, 3, {v(vr)}\nv_mul_u32_u24 {v(vXr)}, 1280, {v(vt1)}\nv_lshl_or_b32 {v(vt1)}, {v(vt0)}, 2, {v(vr)}")
        q.i(f"v_lshrrev_b32 {v(vt2)}, 1, {v(vG)}\ns_lshl_b32 {s(sT[0])}, {s(sW)}, 1\nv_or_b32 {v(vXw)}, {s(sT[0])}, {v(vt2)}\nv_xor_b32 {v(vt1)}, {v(vt1)}, {v(vXw)}\nv_lshl_add_u32 {v(vXr)}, {v(vt1)}, 5, {v(vXr)}\nv_lshl_add_u32 {v(vXr)}, {v(vc)}, 3, {v(vXr)}\nv_add_u32 {v(vXr)}, {L_PX}, {v(vXr)}")
        q.i(f"v_lshrrev_b32 {v(vt1)}, 2, {v(vJ)}\nv_lshl_add_u32 {v(vt1)}, {v(vt2)}, 2, {v(vt1)}\nv_lshlrev_b32 {v(vXw)}, 14, {v(vt1)}\nv_lshl_add_u32 {v(vXw)}, {v(vt0)}, 6, {v(vXw)}")
        q.i(f"s_bfe_u32 {s(sT[0])}, {s(sUn)}, 0x20001\nv_xor_b32 {v(vt1)}, {s(sT[0])}, {v(vc)}\nv_lshl_add_u32 {v(vXw)}, {v(vt1)}, 4, {v(vXw)}")
        q.i(f"s_mul_i32 {s(sT[0])}, {s(sW)}, 5120\ns_add_u32 {s(sT[0])}, {s(sT[0])}, {L_PX}\nv_mul_u32_u24 {v(vXs)}, 1280, {v(vG)}\nv_lshl_add_u32 {v(vXs)}, {v(vJ)}, 4, {v(vXs)}\nv_add_u32 {v(vXs)}, {s(sT[0])}, {v(vXs)}")
        q.i(f"v_cmp_gt_u32 vcc, 2, {v(vJ)}\nv_lshlrev_b32 {v(vt0)}, 10, {v(vJ)}\nv_lshl_add_u32 {v(vt0)}, {v(vG)}, 2, {v(vt0)}\nv_cndmask_b32 {v(vXt)}, {v(vFOc)}, {v(vt0)}, vcc\nv_mov_b32 {v(onesr)}, 0x3f803f80")
    def x_unit(q, k):
        q.wvm(("xd", k)); q.i("s_barrier")
        for f in range(5):
            for rd in range(2): q.lg(f"ds_read_b64_tr_b16 {v(fr+20*k+4*f+2*rd,2)}, {v(vXr)} offset:{20480*k + 5120*rd + 256*f}", ("xt", k, f))
        for i in range(5): q.lg(f"ds_read_b128 {v(xs+4*i,4)}, {v(vXs)} offset:{20480*k + 256*i}", ("xr", k))
        q.i(f"s_add_u32 {s(sT[2])}, {s(sUn)}, {k}\ns_lshl_b32 {s(sT[0])}, {s(sW)}, 17\ns_lshl_b32 {s(sT[1])}, {s(sT[2])}, 7\ns_add_u32 {s(sT[0])}, {s(sT[0])}, {s(sT[1])}")
        for f in range(5):
            q.i(f"s_add_u32 {s(sT[1])}, {s(sT[0])}, {XT_WS + f*524288}")
            q.wlg(("xt", k, f))
            q.vm(f"buffer_store_dwordx4 {v(fr+20*k+4*f,4)}, {v(vXw)}, {s(sWS,4)}, {s(sT[1])} offen sc1", "xst")
        for j in range(4): q.i(f"v_mov_b32 {v(acc+j)}, 0")
        q.wlg(("xr", k))
        for j in range(20):
            q.i(f"v_dot2c_f32_bf16 {v(acc+(j&1))}, {v(xs+j)}, {v(onesr)}\nv_dot2c_f32_bf16 {v(acc+2+(j&1))}, {v(xs+j)}, {v(xs+j)}")
        q.i(f"s_lshr_b32 {s(sT[0])}, {s(sT[2])}, 4\ns_lshl_b32 {s(sT[0])}, {s(sT[0])}, 11\ns_and_b32 {s(sT[2])}, {s(sT[2])}, 15\ns_lshl4_add_u32 {s(sT[2])}, {s(sW)}, {s(sT[2])}\ns_lshl4_add_u32 {s(sT[0])}, {s(sT[2])}, {s(sT[0])}\ns_add_u32 {s(sT[0])}, {s(sT[0])}, {STATS}")
        q.i(f"v_add_f32 {v(acc)}, {v(acc)}, {v(acc+1)}\nv_add_f32 {v(acc+2)}, {v(acc+2)}, {v(acc+3)}")
        for sh in (8, 4, 2, 1):
            for j in (0, 2): q.i(f"v_add_f32_dpp {v(acc+j)}, {v(acc+j)}, {v(acc+j)} row_ror:{sh} row_mask:0xf bank_mask:0xf")
        ln_finalize(q, acc, acc + 2, acc + 1, acc + 3, vt0)
        q.i(f"v_rcp_f32 {v(acc+3)}, {v(acc+3)}\nv_cmp_eq_u32 vcc, 0, {v(vJ)}\nv_mul_f32_e64 {v(acc+1)}, -{v(acc+1)}, {v(acc+3)}\nv_cndmask_b32 {v(vt1)}, {v(acc+1)}, {v(acc+3)}, vcc")
        q.vm(f"buffer_store_dword {v(vt1)}, {v(vXt)}, {s(sWS,4)}, {s(sT[0])} offen sc1", "xst")
    def x_flag(q):
        q.i(f"s_mul_i32 {s(sI)}, {s(sXc)}, 12\ns_add_u32 {s(sI)}, {s(sI)}, {s(sP12)}\ns_lshl_b32 {s(sI)}, {s(sI)}, {LF}\ns_add_u32 {s(sT[0])}, {s(sI)}, {FX*FSP}")
        q.wvm("xst"); q.i("s_barrier"); flag_store(q, s(sT[0]))
    def d_dma(q):
        srd(q, (sWD, 1966080))
        q.i(f"s_movk_i32 {s(sT[2])}, 1280")
        for i in range(5):
            divmod_c(q, 64 * i, 6554, 10)
            q.i(f"v_lshlrev_b32 {v(vt0)}, 4, {v(vt0)}\nv_and_b32 {v(vt2)}, 4, {v(vt1)}\nv_lshlrev_b32 {v(vt2)}, 1, {v(vt2)}\nv_and_b32 {v(do+i)}, 8, {v(vt1)}\nv_lshrrev_b32 {v(do+i)}, 1, {v(do+i)}\nv_and_b32 {v(vt1)}, 19, {v(vt1)}\nv_or3_b32 {v(vt1)}, {v(vt1)}, {v(vt2)}, {v(do+i)}")
            q.i(f"v_mad_u32_u24 {v(do+i)}, {v(vt1)}, {s(sT[2])}, {v(vt0)}")
        q.i(f"s_lshl2_add_u32 {s(sT[3])}, {s(sP12)}, {s(sW)}\ns_mul_i32 {s(sT[0])}, {s(sT[3])}, {32*1280}\ns_mul_i32 {s(sT[1])}, {s(sXc)}, 160\ns_add_u32 {s(sT[0])}, {s(sT[0])}, {s(sT[1])}\ns_mul_i32 {s(sT[1])}, {s(sW)}, 5120")
        for i in range(5):
            q.i(f"s_add_u32 m0, {s(sT[1])}, {L_PD + i*1024}\ns_nop 0")
            q.vm(f"buffer_load_dwordx4 {v(do+i)}, {s(sWD,4)}, {s(sT[0])} offen lds", "dd")
    def lanes(q): q.i(f"v_bfe_u32 {v(vr)}, {v(vL)}, 2, 2\nv_and_b32 {v(vc)}, 3, {v(vL)}")
    o = S(); m1 = VR.mark()
    sPC, sKQ = SR.get(), SR.get()
    o.i(f"s_lshl3_add_u32 {s(sI)}, {s(sXc)}, {s(sP12)}\ns_lshr_b32 {s(sPC)}, {s(sI)}, 2\ns_and_b32 {s(sKQ)}, {s(sI)}, 3\ns_mov_b32 {s(sUn)}, {s(sI)}")
    vo = VR.get(3, 1)
    o.i(f"s_lshr_b32 {s(sT[0])}, {s(sW)}, 1\ns_lshl_b32 {s(sT[0])}, {s(sT[0])}, 3\ns_movk_i32 {s(sT[1])}, 3072")
    for i in range(3):
        divmod_c(o, 64 * i, 5462, 12)
        o.i(f"v_lshlrev_b32 {v(vt0)}, 4, {v(vt0)}\nv_and_b32 {v(vt2)}, 8, {v(vt1)}\nv_add3_u32 {v(vt1)}, {v(vt1)}, {v(vt2)}, {s(sT[0])}\nv_mad_u32_u24 {v(vo+i)}, {v(vt1)}, {s(sT[1])}, {v(vt0)}")
    o.i(f"s_mul_i32 {s(sSo)}, {s(sKQ)}, {160*3072}\ns_mul_i32 {s(sT[0])}, {s(sPC)}, 192\ns_add_u32 {s(sSo)}, {s(sSo)}, {s(sT[0])}\ns_mul_i32 {s(sM0)}, {s(sW)}, 3088")
    srd(o, (sWG, 1966080))
    kernarg_ready(o)
    o.i(f"s_bitcmp1_b32 {s(sW)}, 0\ns_cselect_b32 {s(sWG)}, {s(sWU)}, {s(sWG)}\ns_cselect_b32 {s(sWG+1)}, {s(sWU+1)}, {s(sWG+1)}")
    dm = S()
    for st_ in range(5):
        for i in range(3):
            dm.i(f"s_add_u32 m0, {s(sM0)}, {st_*12352 + i*1024}\ns_nop 0")
            dm.vm(f"buffer_load_dwordx4 {v(vo+i)}, {s(sWG,4)}, {s(sSo)} offen lds", ("wd", st_))
        dm.i(f"s_add_u32 {s(sSo)}, {s(sSo)}, {32*3072}")
    late_w = CFG.get("late_w", 0)
    if not late_w: o.add(dm)
    if not CFG.get("pf_first", 1): code_pf(o)
    common_setup(o); lanes(o); x_addr(o); x_setup(o)
    va0, va2, vcs = VR.get(), VR.get(), VR.get(); ones = VR.get(4); cs = VR.get(12)
    o.i(f"v_and_b32 {v(vt0)}, 1, {v(vG)}\nv_mul_u32_u24 {v(va0)}, 6176, {v(vt0)}\nv_lshrrev_b32 {v(vt0)}, 1, {v(vG)}\nv_lshl_add_u32 {v(vt0)}, {v(vt0)}, 3, {v(vr)}\nv_mul_u32_u24 {v(vt0)}, 192, {v(vt0)}")
    o.i(f"s_mul_i32 {s(sT[0])}, {s(sW)}, 48\nv_add3_u32 {v(va0)}, {v(va0)}, {v(vt0)}, {s(sT[0])}")
    o.i(f"v_lshrrev_b32 {v(vt0)}, 1, {v(vc)}\nv_mul_u32_u24 {v(vt0)}, 3088, {v(vt0)}\nv_and_b32 {v(vt1)}, 1, {v(vc)}\nv_lshl_add_u32 {v(vt0)}, {v(vt1)}, 3, {v(vt0)}\nv_add3_u32 {v(va2)}, {v(va0)}, {v(vt0)}, 32")
    o.i(f"v_lshl_add_u32 {v(va0)}, {v(vc)}, 3, {v(va0)}")
    for k in range(4): o.i(f"v_mov_b32 {v(ones+k)}, 0x3f803f80")
    o.i(f"s_lshl2_add_u32 {s(sT[0])}, {s(sPC)}, {s(sW)}\ns_mul_i32 {s(sT[4])}, {s(sT[0])}, 768\ns_lshl4_add_u32 {s(sT[4])}, {s(sKQ)}, {s(sT[4])}\ns_add_u32 {s(sT[4])}, {s(sT[4])}, {CSUM}")
    o.i(f"s_lshl2_add_u32 {s(sT[0])}, {s(sT[0])}, {s(sKQ)}\ns_mul_i32 {s(sOut)}, {s(sT[0])}, 15360\ns_add_u32 {s(sOut)}, {s(sOut)}, {WF_WS}")
    o.i(f"v_cmp_eq_u32 vcc, 0, {v(vJ)}\nv_lshlrev_b32 {v(vt0)}, 6, {v(vG)}\ns_add_u32 {s(sI)}, {s(sI)}, {FW}\ns_lshl_b32 {s(sI)}, {s(sI)}, {LF}\nv_cndmask_b32 {v(vcs)}, {v(vFOc)}, {v(vt0)}, vcc")
    o.wlg0(); nonce(o)
    if late_w: o.add(dm)
    x_dma(o, 0)
    for st_ in range(5):
        o.wvm(("wd", st_)); o.i("s_barrier")
        if st_ == 0: stamp(o, 1)
        for tl in range(3):
            i = 3 * st_ + tl
            for rd in range(2):
                o.lg(f"ds_read_b64_tr_b16 {v(fr+4*i+2*rd,2)}, {v(va2 if tl == 2 else va0)} offset:{st_*12352 + rd*768 + (3088 if tl == 1 else 0)}", ("t", i))
        for tl in range(3):
            i = 3 * st_ + tl
            frag_out(o, i)
            o.i(f"v_mfma_f32_16x16x32_bf16 {v(cs+4*tl,4)}, {v(fr+4*i,4)}, {v(ones,4)}, {'0' if i < 3 else v(cs+4*tl,4)}")
    for tl in range(3): o.vm(f"buffer_store_dwordx4 {v(cs+4*tl,4)}, {v(vcs)}, {s(sWS,4)}, {s(sT[4])} offen offset:{256*tl} sc1", "wst")
    stamp(o, 16)
    x_unit(o, 0)
    o.wvm("wst"); o.i("s_barrier"); flag_store(o, s(sI))
    stamp(o, 17)
    d_dma(o)
    x_flag(o)
    o.wvm0()
    o.i("s_branch L_ptail")
    wprep = o; VR.release(m1)
    o = S(); o.label("L_dprep")
    o.i(f"s_lshl2_add_u32 {s(sUn)}, {s(sXc)}, {s(sY)}\ns_lshl_b32 {s(sUn)}, {s(sUn)}, 1\ns_add_u32 {s(sUn)}, {s(sUn)}, {64 - 56}")
    x_addr(o)
    kernarg_ready(o)
    late_x = CFG.get("late_x", 1)
    if not late_x: x_dma(o, 0); x_dma(o, 1)
    if not CFG.get("pf_first", 1): code_pf(o)
    common_setup(o); lanes(o); x_setup(o)
    o.wlg0(); nonce(o)
    if late_x: x_dma(o, 0); x_dma(o, 1)
    x_unit(o, 0)
    stamp(o, 1)
    x_unit(o, 1)
    stamp(o, 16)
    d_dma(o)
    x_flag(o)
    o.wvm0()
    dprep = o
    o = S(); o.label("L_ptail")
    stamp(o, 3)
    o.i(f"v_and_b32 {v(vt0)}, 1, {v(vG)}\nv_lshl_add_u32 {v(vt0)}, {v(vt0)}, 2, {v(vr)}\nv_lshrrev_b32 {v(vt1)}, 1, {v(vG)}\nv_lshl_add_u32 {v(vt0)}, {v(vt1)}, 4, {v(vt0)}\nv_mul_u32_u24 {v(vt0)}, 160, {v(vt0)}\nv_lshl_add_u32 {v(vt0)}, {v(vc)}, 3, {v(vt0)}")
    o.i(f"s_mul_i32 {s(sT[1])}, {s(sW)}, 5120\ns_add_u32 {s(sT[1])}, {s(sT[1])}, {L_PD}\nv_add_u32 {v(vt0)}, {s(sT[1])}, {v(vt0)}")
    o.i(f"s_mul_i32 {s(sOut)}, {s(sXc)}, 48\ns_add_u32 {s(sOut)}, {s(sOut)}, {s(sT[3])}\ns_mul_i32 {s(sOut)}, {s(sOut)}, 5120\ns_add_u32 {s(sOut)}, {s(sOut)}, {WDF_WS}\ns_add_u32 {s(sI)}, {s(sI)}, {FD*FSP}")
    for dl in range(5):
        for rd in range(2): o.lg(f"ds_read_b64_tr_b16 {v(fr+4*dl+2*rd,2)}, {v(vt0)} offset:{rd*1280 + dl*32}", ("t", dl))
    for dl in range(5): frag_out(o, dl)
    o.i(f"s_lshl_b32 {s(sT[5])}, {s(sCB)}, {LF+2}\ns_add_u32 {s(sT[5])}, {s(sT[5])}, {FW*FSP}\nv_lshlrev_b32 {v(vPA)}, {LF}, {v(vc)}")
    fw = [(vPoll, vPA, s(sT[5]))]
    poll_issue(o, fw, "fw")
    o.wvm("wst"); o.i("s_barrier"); flag_store(o, s(sI))
    stamp(o, 2)
    poll_check(o, fw, "fw")
    stamp(o, 4)
    for g in w_loads()[:NW0]: o.add(g)
    o.wvm0()
    stamp(o, 5)
    f2_setup(o, 0); h_dma_setup(o, 0)
    poll(o, f2_loads(), CFG.get("nap2", 8))
    stamp(o, 7)
    o.add(flat(h_dma(0, 0) + h_dma(1, 0)))
    o.i(f"s_mov_b32 {s(sF2)}, 0")
    o.wvm0(); o.i("s_branch L_join")
    VR.release(m0); SR.release(sm0)
    return [head + wprep, dprep, o]

def gemms():
    o = S(); o.label("L_join")
    m0 = VR.mark()
    vt0, vt1, vt2 = VR.get(), VR.get(), VR.get()
    vH = VR.get(4, 1); vSTw = VR.get(); vSTr = VR.get(6, 1); vA = VR.get(3, 1); vSGo = VR.get(); vRes = VR.get()
    ones = VR.get(4); cs = VR.get(12); sa = VR.get(8); pk = VR.get(12)
    acc = VR.get(48)
    hf = VR.get(32); sg = VR.get(16)
    kc = VR.get(24); tmp = VR.get(16)
    res = VR.get(10)
    sAct, sF3, sRB2, sTH, sDB, sSG, sA2, sOo = [SR.get() for _ in range(8)]
    sRF = SR.get(2)
    sM = sP[1:4]
    o.i(f"v_bfe_u32 {v(vt0)}, {v(vL)}, 2, 2\nv_lshl_add_u32 {v(vt1)}, {v(vG)}, 3, {v(vt0)}\nv_lshlrev_b32 {v(vt1)}, 7, {v(vt1)}\nv_and_b32 {v(vt2)}, 3, {v(vL)}\nv_lshl_add_u32 {v(vt1)}, {v(vt2)}, 3, {v(vt1)}\nv_add_u32 {v(vt1)}, {L_R1}, {v(vt1)}")
    o.i(f"v_lshrrev_b32 {v(vt0)}, 1, {v(vt0)}\nv_and_b32 {v(vt2)}, 1, {v(vG)}\nv_lshl_or_b32 {v(vt0)}, {v(vt2)}, 1, {v(vt0)}")
    for k in range(4):
        o.i(f"s_add_u32 {s(sT[0])}, {s(sW)}, {k}\ns_and_b32 {s(sT[0])}, {s(sT[0])}, 3\nv_xor_b32 {v(vt2)}, {s(sT[0])}, {v(vt0)}\nv_lshl_add_u32 {v(vH+k)}, {v(vt2)}, 5, {v(vt1)}")
    for k in range(4): o.i(f"v_mov_b32 {v(ones+k)}, 0x3f803f80")
    l1 = S()
    l1.i(f"v_and_b32 {v(vt0)}, 3, {v(vJ)}")
    for k in range(3): l1.i(f"v_cmp_eq_u32 {s(sM[k],2)}, {k+1}, {v(vt0)}")
    l1.i(f"s_lshl_b32 {s(sSG)}, {s(sRB)}, 12\ns_add_u32 {s(sSG)}, {s(sSG)}, {SG_WS}\ns_lshl2_add_u32 {s(sT[0])}, {s(sRot)}, {s(sW)}\ns_lshl_b32 {s(sT[0])}, {s(sT[0])}, 8")
    l1g = singles(l1)
    l1g.append(S().i(f"s_and_b32 {s(sT[1])}, {s(sCB)}, 3\ns_cselect_b32 {s(sT[0])}, 0x80000000, {s(sT[0])}"))
    l1g += singles(S().i(f"v_lshl_add_u32 {v(vSGo)}, {v(vJ)}, 4, {s(sT[0])}\nv_lshrrev_b32 {v(vt0)}, 2, {v(vJ)}\nv_bfrev_b32 {v(vt1)}, 1"))
    l1g.append(S().i(f"v_cmp_eq_u32 vcc, {v(vt0)}, {v(vG)}\ns_nop 1\nv_cndmask_b32 {v(vSGo)}, {v(vt1)}, {v(vSGo)}, vcc"))
    late = S()
    late.i(f"s_lshl2_add_u32 {s(sT[2])}, {s(sCB)}, {s(sW)}\ns_mul_i32 {s(sT[1])}, {s(sT[2])}, 768\ns_add_u32 {s(sT[1])}, {s(sT[1])}, {CSUM}\nv_and_b32 {v(vt0)}, 3, {v(vJ)}\nv_lshl_add_u32 {v(vt0)}, {v(vG)}, 2, {v(vt0)}\nv_lshlrev_b32 {v(vt0)}, 4, {v(vt0)}")
    for tl in range(3): late.vm(f"buffer_load_dwordx4 {v(cs+4*tl,4)}, {v(vt0)}, {s(sWS,4)}, {s(sT[1])} offen offset:{256*tl} sc1", "cs")
    late.i(f"s_lshl_b32 {s(sT[1])}, {s(sW)}, 10\ns_add_u32 {s(sT[1])}, {s(sT[1])}, {L_R1}\nv_add_u32 {v(vSTw)}, {s(sT[1])}, {v(vL16)}\nv_lshl_add_u32 {v(vt1)}, {v(vJ)}, 4, {s(sT[1])}")
    for k in range(4):
        late.i(f"s_add_u32 {s(sT[0])}, {s(sW)}, {k}\ns_and_b32 {s(sT[0])}, {s(sT[0])}, 3\ns_lshl_b32 {s(sT[0])}, {s(sT[0])}, 8\nv_add_u32 {v(vSTr+k)}, {s(sT[0])}, {v(vt1)}")
    lg_ = singles(late)
    lg_.append(S().i(f"v_cmp_gt_u32 vcc, 32, {v(vL)}\ns_mov_b32 {s(sT[1])}, 49152\nv_lshlrev_b32 {v(vt1)}, 4, {v(vJ)}\nv_cndmask_b32 {v(vSTr+4)}, {v(vSTr+1)}, {v(vSTr)}, vcc\nv_cndmask_b32 {v(vSTr+5)}, {v(vSTr+3)}, {v(vSTr+2)}, vcc"))
    late = S()
    late.i(f"v_and_b32 {v(vt0)}, 1, {v(vG)}\nv_lshrrev_b32 {v(vt2)}, 1, {v(vG)}")
    for p in range(2):
        late.i(f"v_add3_u32 {v(vA+p)}, {v(vt0)}, {s(sW)}, {2*p}\nv_and_b32 {v(vA+p)}, 3, {v(vA+p)}\nv_mad_u32_u24 {v(vA+p)}, {v(vA+p)}, {s(sT[1])}, {v(vt1)}\nv_lshl_add_u32 {v(vA+p)}, {v(vt2)}, 8, {v(vA+p)}")
    late.i(f"v_lshl_or_b32 {v(vA+2)}, {v(vt0)}, 1, {v(vt2)}\nv_add_u32 {v(vA+2)}, {s(sW)}, {v(vA+2)}\nv_and_b32 {v(vA+2)}, 3, {v(vA+2)}\nv_mad_u32_u24 {v(vA+2)}, {v(vA+2)}, {s(sT[1])}, {v(vt1)}")
    late.i(f"s_mul_i32 {s(sAct)}, {s(sRB)}, 196608\ns_mul_i32 {s(sT[1])}, {s(sT[2])}, 768\ns_add_u32 {s(sAct)}, {s(sAct)}, {s(sT[1])}\ns_add_u32 {s(sAct)}, {s(sAct)}, {ACT_WS}")
    late.i(f"s_lshl4_add_u32 {s(sF3)}, {s(sRB)}, {s(sCB)}\ns_add_u32 {s(sF3)}, {s(sF3)}, {F3A}\ns_lshl_b32 {s(sF3)}, {s(sF3)}, {LF}")
    nr = CFG["g2map"]; nd = 16 // nr; lr = nr.bit_length() - 1; nxr = 16 // nr; lx = nxr.bit_length() - 1
    late.i(f"s_and_b32 {s(sRB2)}, {s(sXc)}, {nxr-1}\ns_lshl_b32 {s(sRB2)}, {s(sRB2)}, {lr}\ns_and_b32 {s(sT[0])}, {s(sY)}, {nr-1}\ns_add_u32 {s(sRB2)}, {s(sRB2)}, {s(sT[0])}")
    late.i(f"s_bfe_u32 {s(sTH)}, {s(sY)}, {hex(0x10000 | lr)}\ns_lshr_b32 {s(sDB)}, {s(sXc)}, {lx}\ns_mul_i32 {s(sDB)}, {s(sDB)}, {nd}\ns_lshr_b32 {s(sT[0])}, {s(sY)}, {lr+1}\ns_add_u32 {s(sDB)}, {s(sDB)}, {s(sT[0])}")
    late.wvm("cs")
    for qp in ("[1,0,3,2]", "[2,3,0,1]"):
        for k in range(12): late.i(f"v_add_f32_dpp {v(cs+k)}, {v(cs+k)}, {v(cs+k)} quad_perm:{qp} row_mask:0xf bank_mask:0xf")
    lg_ += singles(late)

    def hreads(half, st_):
        r = []
        for k in range(4):
            for rd in range(2):
                g = S()
                if st_ == 16 and rd == 0: g.i(f"v_add_u32 {v(vH+k)}, 0x10000, {v(vH+k)}")
                g.lg(f"ds_read_b64_tr_b16 {v(hf+16*(st_%2)+4*k+2*rd,2)}, {v(vH+k)} offset:{(st_%16)*4096 + rd*512}", ("h", half, st_, k))
                r.append(g)
        return r
    def g1_mfmas(half, st_):
        r = []
        for k in range(4):
            h = v(hf + 16 * (st_ % 2) + 4 * k, 4)
            for tl in range(3):
                g = S()
                if k == 0 and tl == 0 and half == 0: g.wvm(("W", st_))
                if tl == 0 and k % 2 == 0: g.wlg(("h", half, st_, k + 1))
                d = v(acc + 12 * k + 4 * tl, 4)
                g.i(f"v_mfma_f32_16x16x32_bf16 {d}, {a(12*st_+4*tl,4)}, {h}, {'0' if st_ == 0 else d}")
                r.append(g)
            if k == 0 and st_ < 5:
                r.append(S().i(f"v_mfma_f32_16x16x32_bf16 {v(sa,4)}, {v(ones,4)}, {h}, {'0' if st_ == 0 else v(sa,4)}"))
                r.append(S().i(f"v_mfma_f32_16x16x32_bf16 {v(sa+4,4)}, {h}, {h}, {'0' if st_ == 0 else v(sa+4,4)}"))
        return r
    def sg_publish(half):
        q = S()
        q.i(f"v_cndmask_b32 {v(sa+2)}, {v(sa+4)}, {v(sa+5)}, {s(sM[0],2)}\nv_mov_b32 {v(sa+1)}, {v(vN)}\nv_cndmask_b32 {v(sa+2)}, {v(sa+2)}, {v(sa+6)}, {s(sM[1],2)}\nv_mov_b32 {v(sa+3)}, {v(vN+1)}\nv_cndmask_b32 {v(sa+2)}, {v(sa+2)}, {v(sa+7)}, {s(sM[2],2)}")
        q.vm(f"buffer_store_dwordx4 {v(sa,4)}, {v(vSGo)}, {s(sWS,4)}, {s(sSG)} offen sc1")
        return singles(q)
    sgt = [f"buffer_load_dwordx4 {v(sg+4*k,4)}, {v(vL16)}, {s(sWS,4)}, {s(sSG)} offen offset:{1024*k} sc1" for k in range(4)]
    def sg_loads(half): return [S().vm(t, ("sg", half)) for t in sgt]
    def sg_finish(half):
        def chk(q):
            for k in range(4): q.i(f"v_xor_b32 {v(sg+4*k+1)}, {v(vN)}, {v(sg+4*k+1)}\nv_xor_b32 {v(sg+4*k+3)}, {v(vN+1)}, {v(sg+4*k+3)}")
            for k in range(1, 4): q.i(f"v_or3_b32 {v(sg+1)}, {v(sg+1)}, {v(sg+4*k+1)}, {v(sg+4*k+3)}")
            q.i(f"v_or_b32 {v(sg+1)}, {v(sg+1)}, {v(sg+3)}\nv_cmp_ne_u32 vcc, 0, {v(sg+1)}")
        c = S(); spin_check(c, ("sg", half), sgt, chk)
        r = singles(S(c[:-3])) + [S(c[-3:])]
        e = S(); q = tmp
        for k in range(1, 4): e.i(f"v_add_f32 {v(sg)}, {v(sg)}, {v(sg+4*k)}\nv_add_f32 {v(sg+2)}, {v(sg+2)}, {v(sg+4*k+2)}")
        ln_finalize(e, sg, sg + 2, q, q + 3, q + 4)
        e.i(f"v_rcp_f32 {v(q+4)}, {v(q+3)}\nv_mul_f32 {v(q+3)}, {v(q+3)}, {v(q+3)}\nv_mul_f32 {v(q+1)}, {hex(f2u(C0))}, {v(q+4)}\nv_mul_f32 {v(q+2)}, {v(q+4)}, {v(q+4)}")
        e.i(f"v_mul_f32 {v(q+4)}, {hex(f2u(C1))}, {v(q+4)}\nv_xor_b32 {v(q)}, 0x80000000, {v(q)}\nv_mul_f32 {v(q+2)}, {v(q+2)}, {v(q+4)}")
        e.lg(f"ds_write_b128 {v(vSTw)}, {v(q,4)} offset:{4096*half}")
        for k in range(6): e.lg(f"ds_read_b128 {v(kc+4*k,4)}, {v(vSTr+k)} offset:{4096*half}", ("kc", half, k))
        if half == 0: e.i(f"s_add_u32 {s(sSG)}, {s(sSG)}, {16*4096}")
        return r + singles(e)
    def g1_pass(half, events, extras):
        ex = {k: [] for k in range(20)}
        for gs, lo, hi in extras:
            n = hi - lo + 1
            for k in range(n): ex[lo + k] += gs[k * len(gs) // n:(k + 1) * len(gs) // n]
        p = S()
        fine = CFG.get("fine", -1) == half
        p.wvm(("H", half, 0)); p.i("s_barrier")
        if fine: stamp(p, 23)
        for g in hreads(half, 0): p.add(g)
        for st_ in range(20):
            mm = g1_mfmas(half, st_)
            pre = S()
            if st_ % 4 == 3 and st_ < 19:
                if fine: stamp(pre, 24 + 2 * (st_ // 4))
                pre.wvm([("H", half, st_ // 4 + 1)] + events.get(st_, ([], None))[0]); pre.i("s_barrier")
                if fine: stamp(pre, 25 + 2 * (st_ // 4))
            if st_ in events and events[st_][1] is not None: pre.add(events[st_][1])
            mm[0] = group(mm[0], pre)
            p.add(flat(gaps(mm, hreads(half, st_ + 1) if st_ < 19 else [], ex[st_])))
        return p
    def gelu(items):
        e = S()
        T = lambda k: tmp + 4 * k
        for k, (g, u, q, d) in enumerate(items): e.i(f"v_pk_mul_f32 {v(T(k),2)}, {v(g,2)}, {v(g,2)}")
        for k, (g, u, q, d) in enumerate(items): e.i(f"v_pk_fma_f32 {v(T(k),2)}, {v(T(k),2)}, {v(q+2,2)}, {v(q,2)} op_sel:[0,0,1] op_sel_hi:[1,0,1]")
        for k, (g, u, q, d) in enumerate(items): e.i(f"v_pk_mul_f32 {v(T(k),2)}, {v(T(k),2)}, {v(g,2)}")
        for k, (g, u, q, d) in enumerate(items): e.i(f"v_exp_f32 {v(T(k))}, {v(T(k))}\nv_exp_f32 {v(T(k)+1)}, {v(T(k)+1)}\nv_pk_mul_f32 {v(T(k)+2,2)}, {v(g,2)}, {v(u,2)}")
        for k, (g, u, q, d) in enumerate(items): e.i(f"v_pk_fma_f32 {v(T(k),2)}, {v(T(k),2)}, {v(q+2,2)}, {v(q+2,2)} op_sel:[0,1,1] op_sel_hi:[1,1,1]")
        for k, (g, u, q, d) in enumerate(items): e.i(f"v_rcp_f32 {v(T(k))}, {v(T(k))}\nv_rcp_f32 {v(T(k)+1)}, {v(T(k)+1)}")
        for k, (g, u, q, d) in enumerate(items): e.i(f"v_pk_mul_f32 {v(T(k),2)}, {v(T(k),2)}, {v(T(k)+2,2)}")
        for k, (g, u, q, d) in enumerate(items): e.i(f"v_cvt_pk_bf16_f32 {v(d)}, {v(T(k))}, {v(T(k)+1)}")
        return e
    def g1_epilogue(half):
        e = S()
        e.wlg(("kc", half, 5))
        for k in range(4):
            for j in range(6):
                d = v(acc + 12 * k + 2 * j, 2)
                e.i(f"v_pk_fma_f32 {d}, {v(cs+2*j,2)}, {v(kc+4*k,2)}, {d} op_sel_hi:[1,0,1]")
        for p in range(2):
            for r in range(4): e.i(f"v_permlane32_swap_b32 {v(acc+24*p+8+r)}, {v(acc+24*p+20+r)}")
        for p in range(3):
            if p < 2: items = [(acc + 12 * k + 2 * h, acc + 12 * k + 4 + 2 * h, kc + 4 * k, pk + 4 * p + 2 * (k % 2) + h) for k in (2 * p, 2 * p + 1) for h in range(2)]
            else: items = [(acc + 24 * pp + 8 + 2 * h, acc + 24 * pp + 20 + 2 * h, kc + 16 + 4 * pp, pk + 8 + 2 * pp + h) for pp in range(2) for h in range(2)]
            e.add(gelu(items))
            for h in range(2): e.i(f"v_permlane16_swap_b32 {v(pk+4*p+h)}, {v(pk+4*p+2+h)}")
            e.vm(f"buffer_store_dwordx4 {v(pk+4*p,4)}, {v(vA+p)}, {s(sWS,4)}, {s(sAct)} offen offset:{512 if p == 2 else 0} sc1", ("ast", half))
        return singles(e)

    stamp(o, 8)
    ev = S(); flag_store(ev, s(sF2), vFOc)
    q = S(); f2_setup(q, 1); poll_issue(q, f2_loads(), "f2b")
    q2 = S(); poll_check(q2, f2_loads(), "f2b"); q3 = S(); h_dma_setup(q3, 1)
    need = [(4 * g - 1, k, x) for g in (2, 3, 4) for k, x in enumerate(h_dma(g, 0))] + [(i // 3, 10 + i, x) for i, x in enumerate(w_loads()) if i >= NW0]
    need.sort(key=lambda t: t[:2])
    sl, sc = CFG["sg_ld"], CFG["sg_chk"]; pb, cb_, hba = CFG["pb_at"], CFG["cb_at"], CFG["hb_a"]
    hb = [h_dma(g, 1) for g in range(5)]; hbg = CFG.get("hb_g", 3)
    nhi = CFG.get("needA_hi", 10); assert nhi < cb_
    exb = [([q2] + singles(q3), cb_, cb_), (sum(hb[:hba], []), cb_ + 1, 19)] if cb_ < 19 else []
    o.add(g1_pass(0, {3: ([("hst", 1)], ev)},
                  [([x for _, _, x in need], 0, nhi), (l1g, 0, 4), (sg_publish(0), 5, 5), (lg_, 6, 15), (singles(q), pb, pb)] + exb + [(sg_loads(0), sl, sl + 1), (sg_finish(0), sc, 19)]))
    stamp(o, 9)
    if cb_ >= 19: o.add(q2); o.add(q3); hba = 0
    gA = S(); o.append(gA)
    o.add(flat(spread(g1_epilogue(0), sum(hb[hba:hba + hbg], []), 0.0, 0.95)))
    gB = S(); o.append(gB)
    for k in range(4): o.i(f"v_add_u32 {v(vH+k)}, {(L_R2 - L_R1 - 0x10000) & 0xffffffff}, {v(vH+k)}")
    stamp(o, 10)
    ev = S(); flag_store(ev, s(sF3))
    ev.i(f"s_add_u32 {s(sF3)}, {s(sF3)}, {(F3B-F3A)*FSP}\ns_add_u32 {s(sAct)}, {s(sAct)}, {16*196608}")
    e0 = S()
    e0.i(f"s_lshl2_add_u32 {s(sT[0])}, {s(sDB)}, {s(sW)}\ns_mul_i32 {s(sWoff)}, {s(sT[0])}, 61440\ns_add_u32 {s(sWoff)}, {s(sWoff)}, {WDF_WS}")
    e0.i(f"s_mul_i32 {s(sT[5])}, {s(sT[0])}, {3*FSP}\ns_add_u32 {s(sT[5])}, {s(sT[5])}, {FD*FSP}\nv_min_u32 {v(vPA)}, 2, {v(vL)}\nv_lshlrev_b32 {v(vPA)}, {LF}, {v(vPA)}")
    fd = [(vPoll, vPA, s(sT[5]))]
    poll_issue(e0, fd, "fd")
    e1 = S(); poll_check(e1, fd, "fd")
    k = [id(x) for x in o].index(id(gA)); o[k:k + 1] = e0
    k = [id(x) for x in o].index(id(gB)); o[k:k + 1] = e1
    wd = w_loads("D", 5, wrap=False); nb = CFG["wd_in_b"]; exw = []; wi = 0
    for st_ in range(1, 20):
        n = min(-(-(nb - wi) // (20 - st_)), 3 * st_ - wi); exw.append((wd[wi:wi + n], st_, st_)); wi += n
    r0 = S()
    r0.i(f"s_and_b32 {s(sT[0])}, {s(sW)}, 1\ns_lshl1_add_u32 {s(sT[0])}, {s(sTH)}, {s(sT[0])}\nv_bfe_u32 {v(vt0)}, {v(vL)}, 2, 1\nv_bfe_u32 {v(vt1)}, {v(vL)}, 4, 1\nv_lshl_or_b32 {v(vt0)}, {v(vt1)}, 1, {v(vt0)}\nv_xor_b32 {v(vt0)}, {s(sT[0])}, {v(vt0)}")
    r0.i(f"v_lshrrev_b32 {v(vt1)}, 1, {v(vL)}\nv_lshlrev_b32 {v(vt1)}, 7, {v(vt1)}\nv_lshl_add_u32 {v(vt0)}, {v(vt0)}, 5, {v(vt1)}\nv_and_b32 {v(vt1)}, 1, {v(vL)}\nv_lshl_add_u32 {v(vt0)}, {v(vt1)}, 4, {v(vt0)}")
    r0.i(f"s_lshr_b32 {s(sT[0])}, {s(sW)}, 1\ns_lshl4_add_u32 {s(sT[2])}, {s(sT[0])}, {s(sRB2)}\ns_mul_i32 {s(sT[2])}, {s(sT[2])}, 81920\ns_mul_i32 {s(sT[0])}, {s(sDB)}, 10240\ns_add_u32 {s(sT[2])}, {s(sT[2])}, {s(sT[0])}")
    r0.i(f"s_lshl_b32 {s(sT[1])}, {s(sW)}, 12\ns_add_u32 {s(sT[1])}, {s(sT[1])}, {L_R1 + 16384}\nv_lshl_add_u32 {v(vRes)}, {v(vL)}, 3, {s(sT[1])}")
    r1 = []
    for i in range(3):
        g = S().i(f"s_add_u32 m0, {s(sT[1])}, {1024*i}\ns_add_u32 {s(sT[0])}, {s(sT[2])}, {HT_WS + 4096*i}")
        g.vm(f"buffer_load_dwordx4 {v(vt0)}, {s(sWS,4)}, {s(sT[0])} offen sc1 lds", "res"); r1.append(g)
    r3 = S(); r3.wvm("res")
    for dl in range(5): r3.lg(f"ds_read_b64_tr_b16 {v(res+2*dl,2)}, {v(vRes)} offset:{512*dl}", "rr")
    r2 = S()
    r2.i(f"s_lshl2_add_u32 {s(sT[5])}, {s(sRB2)}, {s(sW)}\ns_lshl_b32 {s(sT[5])}, {s(sT[5])}, {LF+2}\ns_add_u32 {s(sT[5])}, {s(sT[5])}, {F3A*FSP}\ns_add_u32 {s(sT[6])}, {s(sT[5])}, {(F3B-F3A)*FSP}")
    r2.i(f"v_and_b32 {v(vPA)}, 3, {v(vL)}\nv_lshlrev_b32 {v(vPA)}, {LF}, {v(vPA)}")
    f3 = [[(vPoll, vPA, s(sT[5]))], [(vPoll, vPA, s(sT[6]))]]
    r2.i(f"s_lshl1_add_u32 {s(sA2)}, {s(sRB2)}, {s(sTH)}\ns_mul_i32 {s(sA2)}, {s(sA2)}, 98304\ns_mul_i32 {s(sT[0])}, {s(sW)}, 12288\ns_add_u32 {s(sA2)}, {s(sA2)}, {s(sT[0])}\ns_add_u32 {s(sA2)}, {s(sA2)}, {ACT_WS}")
    r2g = singles(r2)
    q = S(); poll_issue(q, f3[0], "f3a")
    o.add(g1_pass(1, {3: ([("ast", 0)], ev)},
                  [(sum(hb[hba + hbg:], []), 0, 3), (singles(r0), 1, 5), (sg_publish(1), 5, 5)] + exw +
                  [(r1, 6, 8), (sg_loads(1), sl, sl + 1), (r2g, 10, 13), (singles(r3), 14, 15), (sg_finish(1), sc, 19), (singles(q), 18, 18)]))
    stamp(o, 11)
    af = [hf, acc]; ac2 = [kc, kc + 20]; rt = ones
    vRw, vRr, vOo = vH, vH + 1, vH + 2
    QS = 512 + 16 * 3; WV = 10 * QS; UN = 4 * WV
    def act_loads(u):
        r = []
        for st_ in range(12):
            g = S()
            g.vm(f"buffer_load_dwordx4 {v(af[u%2]+4*st_,4)}, {v(vL16)}, {s(sWS,4)}, {s(sA2)} offen offset:{1024*(st_%4)} sc1", ("a", u, st_))
            if st_ in (3, 7): g.i(f"s_add_u32 {s(sA2)}, {s(sA2)}, 4096")
            if st_ == 11 and u < 3: g.i(f"s_add_u32 {s(sA2)}, {s(sA2)}, {(49152 if u != 1 else 16*196608 - 49152) - 8192}")
            r.append(g)
        return r
    def acc_init(u):
        r = [S().i(f"s_cmp_eq_u32 {s(sW)}, {u}\ns_cselect_b32 {s(sRF)}, 0x10000, 0\ns_cselect_b32 {s(sRF+1)}, {s(sMask)}, 0")]
        e = S()
        for dl in range(5):
            d = ac2[u % 2] + 4 * dl
            for h in range(2): e.i(f"v_mul_u32_u24 {v(d+2*h)}, {s(sRF)}, {v(res+2*dl+h)}\nv_and_b32 {v(d+2*h+1)}, {s(sRF+1)}, {v(res+2*dl+h)}")
        return r + singles(e)
    def g2_mfmas(u):
        r = []
        for st_ in range(12):
            for dl in range(5):
                g = S()
                if dl == 0: g.wvm([("a", u, st_), ("D", st_)])
                d = v(ac2[u % 2] + 4 * dl, 4)
                g.i(f"v_mfma_f32_16x16x32_bf16 {d}, {a(20*st_+4*dl,4)}, {v(af[u%2]+4*st_,4)}, {d}")
                r.append(g)
        return r
    def reduce_out(u, packed):
        e = S()
        for dl in range(5): e.lg(f"ds_write_b128 {v(vRw)}, {v(ac2[u%2]+4*dl,4)} offset:{dl*2*QS}", ("rw", u))
        e.wlg(("rw", u)); e.i("s_barrier")
        for w_ in range(4):
            for h in range(2): e.lg(f"ds_read_b128 {v(rt+8*w_+4*h,4)}, {v(vRr)} offset:{w_*WV + 256*h}", ("r", u, w_))
        if u < 3: e.i(f"v_add_u32 {v(vRw)}, {UN}, {v(vRw)}\nv_add_u32 {v(vRr)}, {UN}, {v(vRr)}")
        for w_ in range(1, 4):
            e.wlg(("r", u, w_))
            if packed:
                for k in range(4): e.i(f"v_pk_add_f32 {v(rt+2*k,2)}, {v(rt+2*k,2)}, {v(rt+8*w_+2*k,2)}")
            else:
                for k in range(8): e.i(f"v_add_f32 {v(rt+k)}, {v(rt+k)}, {v(rt+8*w_+k)}")
        for k in range(4): e.i(f"v_cvt_pk_bf16_f32 {v(rt+32+k)}, {v(rt+2*k)}, {v(rt+2*k+1)}")
        e.vm(f"buffer_store_dwordx4 {v(rt+32,4)}, {v(vOo)}, {s(sOUT,4)}, {s(sOo)} offen{CFG['out_sc'][u]}")
        if u < 3: e.i(f"s_add_u32 {s(sOo)}, {s(sOo)}, {(32 if u != 1 else 1024 - 32)*1280}")
        return singles(e)
    poll_check(o, f3[0], "f3a")
    al = act_loads(0); ne = CFG["u0_early"]
    ngb = min(CFG["wd_gb"], 60 - wi)
    o.add(flat(spread(g1_epilogue(1), al[:ne] + wd[wi:wi + ngb], 0.0, CFG.get("gb_hi", 0.75)))); wi += ngb
    stamp(o, 12)
    need = [(k, 1, x) for k, x in enumerate(al) if k >= ne] + [(i // 5, 0, x) for i, x in enumerate(wd) if i >= wi]
    need.sort(key=lambda t: t[:2]); need = [x for _, _, x in need]
    o.wlg("rr"); o.add(flat(acc_init(0)))
    ad = S()
    ad.i(f"s_mul_i32 {s(sT[0])}, {s(sW)}, {WV}\nv_lshrrev_b32 {v(vt0)}, 1, {v(vG)}\nv_mul_u32_u24 {v(vRw)}, {QS}, {v(vt0)}\nv_and_b32 {v(vt0)}, 1, {v(vG)}\nv_lshl_add_u32 {v(vRw)}, {v(vt0)}, 8, {v(vRw)}\nv_lshl_add_u32 {v(vRw)}, {v(vJ)}, 4, {v(vRw)}\nv_add_u32 {v(vRw)}, {s(sT[0])}, {v(vRw)}")
    ad.i(f"s_lshl_b32 {s(sT[0])}, {s(sW)}, 6\ns_movk_i32 {s(sT[1])}, 1280")
    ad.i(f"v_min_u32 {v(vt0)}, 39, {v(vL)}\nv_mul_u32_u24 {v(vt1)}, 6554, {v(vt0)}\nv_lshrrev_b32 {v(vt1)}, 16, {v(vt1)}\nv_mul_u32_u24 {v(vt2)}, 10, {v(vt1)}\nv_sub_u32 {v(vt0)}, {v(vt0)}, {v(vt2)}")
    ad.i(f"v_mul_u32_u24 {v(vRr)}, {QS}, {v(vt0)}\nv_lshl_add_u32 {v(vRr)}, {v(vt1)}, 4, {v(vRr)}\nv_add_u32 {v(vRr)}, {s(sT[0])}, {v(vRr)}")
    ad.i(f"v_lshlrev_b32 {v(vt0)}, 4, {v(vt0)}\nv_mad_u32_u24 {v(vOo)}, {v(vt1)}, {s(sT[1])}, {v(vt0)}\nv_bfrev_b32 {v(vt0)}, 1")
    adg = singles(ad)
    adg.append(S().i(f"v_cmp_gt_u32 vcc, 40, {v(vL)}\ns_lshr_b32 {s(sT[0])}, {s(sW)}, 1\ns_and_b32 {s(sT[1])}, {s(sW)}, 1\nv_cndmask_b32 {v(vOo)}, {v(vt0)}, {v(vOo)}, vcc"))
    adg += singles(S().i(f"s_lshl2_add_u32 {s(sOo)}, {s(sRB2)}, {s(sT[0])}\ns_lshl1_add_u32 {s(sOo)}, {s(sOo)}, {s(sTH)}\ns_lshl1_add_u32 {s(sOo)}, {s(sOo)}, {s(sT[1])}\ns_mul_i32 {s(sOo)}, {s(sOo)}, {4*1280}\ns_mul_i32 {s(sT[0])}, {s(sDB)}, 160\ns_add_u32 {s(sOo)}, {s(sOo)}, {s(sT[0])}"))
    mm = g2_mfmas(0)
    ev = S(); ev.wvm(("ast", 1)); ev.i("s_barrier"); flag_store(ev, s(sF3))
    k = CFG["f3b_at"]; mm[k] = group(mm[k], ev)
    a1 = act_loads(1); n1 = CFG.get("u1_in0", 6)
    mm = spread(mm, adg + acc_init(1), 0.0, 0.95)
    o.add(flat(ahead(mm, need + a1[:n1], CFG.get("u0_hi", 0.9))))
    stamp(o, 20)
    mm = g2_mfmas(1)
    ev = S(); poll_issue(ev, f3[1], "f3b"); k = CFG.get("p3b_at", 40); mm[k] = group(mm[k], ev)
    mm = spread(mm, reduce_out(0, False), 0.12, 0.95)
    o.add(flat(ahead(mm, a1[n1:], 0.4)))
    stamp(o, 13)
    poll_check(o, f3[1], "f3b")
    stamp(o, 21)
    al = act_loads(2)
    o.add(flat(al[:3]))
    o.add(flat(spread(acc_init(2) + reduce_out(1, True) + acc_init(3), al[3:], 0.0, 1.0)))
    stamp(o, 14)
    o.add(flat(spread(g2_mfmas(2), act_loads(3), 0.0, 0.7)))
    o.add(flat(spread(g2_mfmas(3), reduce_out(2, False), 0.12, 0.95)))
    stamp(o, 22)
    o.add(flat(reduce_out(3, True)))
    o.i(f"s_cmp_lg_u32 s2, 0\ns_cbranch_scc1 L_noep\ns_mov_b32 {s(sT[0])}, {EPOCH}")
    flag_store(o, s(sT[0])); o.label("L_noep")
    if DIAG:
        o.wvm0(); stamp(o, 15)
        o.i(f"s_lshl_b32 {s(sT[0])}, s2, 10\ns_add_u32 {s(sT[0])}, {s(sT[0])}, {DIAGO}\nv_lshlrev_b32 {v(vt0)}, 2, v0")
        o.i(f"buffer_store_dword {v(vStamps)}, {v(vt0)}, {s(sWS,4)}, {s(sT[0])} offen")
        if CFG.get("tdiag"):
            k1, k0, lo, hi = CFG["tdiag"]
            o.i(f"s_cmp_lt_u32 {s(sY)}, {lo}\ns_cbranch_scc1 L_end\ns_cmp_ge_u32 {s(sY)}, {hi}\ns_cbranch_scc1 L_end")
            o.i(f"v_readlane_b32 {s(sT[0])}, {v(vStamps)}, {k1}\nv_readlane_b32 {s(sT[1])}, {v(vStamps)}, {k0}\ns_sub_u32 {s(sT[0])}, {s(sT[0])}, {s(sT[1])}\ns_min_u32 {s(sT[0])}, {s(sT[0])}, 10000\ns_mul_i32 {s(sT[0])}, {s(sT[0])}, 10\ns_mov_b32 {s(sT[2])}, {s(sStamp)}")
            o.label("L_td")
            o.i(f"s_memrealtime {s(sStamp,2)}\ns_waitcnt lgkmcnt(0)\ns_sub_u32 {s(sT[1])}, {s(sStamp)}, {s(sT[2])}\ns_cmp_lt_u32 {s(sT[1])}, {s(sT[0])}\ns_cbranch_scc1 L_td")
    o.label("L_end"); o.i("s_endpgm")
    VR.release(m0)
    return o

def build():
    pro = prologue()
    sm = SR.mark(); conv = role_conv(); SR.release(sm)
    preps = role_prep()
    gm = gemms()
    lines = resolve(S(pro + conv + gm))
    for p in preps: lines += resolve(p)
    lines += resolve(slow)
    lines, added = pad_hazards(lines, verbose=CFG.get("verbose", 0))
    npf = CFG["npf"]
    hdr = open("cdna_kernels/" + NAME[:-7] + ".s.ref").read().split("\n")
    hdr = [l for l in hdr[:hdr.index('.amdgcn_target "amdgcn-amd-amdhsa--gfx950"')] if "@launch" not in l]
    txt = "\n".join(hdr) + f"\n; wsbase={CFG.get('wsbase', 0)}" + "\n; @launch grid=(256,1,1) block=(256,1,1) lds=163840\n"
    txt += f'.amdgcn_target "amdgcn-amd-amdhsa--gfx950"\n.text\n.globl {NAME}\n.p2align 8\n.type {NAME},@function\n{NAME}:\n'
    txt += "\n".join(l if l.endswith(":") else "    " + l for l in lines) + "\n"
    txt += f"L_codeend:\n.fill ({npf*4096} - (L_codeend - {NAME})) / 4, 4, 0xbf800000\n"
    txt += f""".section .rodata,"a"
.p2align 6
.amdhsa_kernel {NAME}
  .amdhsa_next_free_vgpr 512
  .amdhsa_next_free_sgpr 102
  .amdhsa_accum_offset 256
  .amdhsa_group_segment_fixed_size 0
  .amdhsa_kernarg_size 104
  .amdhsa_user_sgpr_count 2
  .amdhsa_user_sgpr_kernarg_segment_ptr 1
  .amdhsa_system_sgpr_workgroup_id_x 1
.end_amdhsa_kernel
"""
    sys.stderr.write(f"lines={len(lines)} nop_states_added={added} vmax={VR.max} smax={SR.max}\n")
    return txt

if __name__ == "__main__":
    open(sys.argv[1], "w").write(build())
```

```python
import re

class Op:
    __slots__ = ("text", "kind", "tag")
    def __init__(self, text, kind="x", tag=None):
        self.text = text; self.kind = kind; self.tag = tag
    def __repr__(self): return f"Op({self.kind},{self.text},{self.tag})"

class S(list):
    def i(self, text):
        for t in text.strip().split("\n"):
            t = t.strip()
            if t: self.append(Op(t))
        return self
    def vm(self, text, tag=None): self.append(Op(text, "vm", tag)); return self
    def lg(self, text, tag=None): self.append(Op(text, "lg", tag)); return self
    def wvm(self, tag): self.append(Op("", "wvm", tag)); return self
    def wlg(self, tag): self.append(Op("", "wlg", tag)); return self
    def wvm0(self): self.append(Op("s_waitcnt vmcnt(0)", "wvm0")); return self
    def wlg0(self): self.append(Op("s_waitcnt lgkmcnt(0)", "wlg0")); return self
    def label(self, name): self.append(Op(name + ":", "label")); return self
    def cmt(self, text): self.append(Op("; " + text, "cmt")); return self
    def add(self, other): self.extend(other); return self

def group(*ops):
    g = S()
    for o in ops:
        if isinstance(o, list): g.extend(o)
        else: g.append(o)
    return g

def weave(main, fill, start=0, end=None, per=None):
    n = len(main)
    if end is None: end = n
    out = S(); j = 0; m = len(fill); span = end - start
    for k, x in enumerate(main):
        out.extend(x if isinstance(x, list) else [x])
        if start <= k < end:
            tgt = m if k == end - 1 else ((k - start + 1) * m + span - 1) // span if per is None else min(m, (k - start + 1) * per)
            while j < tgt:
                f = fill[j]; out.extend(f if isinstance(f, list) else [f]); j += 1
    assert j == m
    return out

def resolve(ops, vm_state=None):
    vm = list(vm_state or []); lg = []
    vm_done = 0; lg_done = 0
    out = []
    total = {}
    for o in ops:
        if o.kind in ("vm", "lg"): total[(o.kind, o.tag)] = total.get((o.kind, o.tag), 0) + 1
    for o in ops:
        if o.kind == "vm": vm.append(o.tag); out.append(o.text)
        elif o.kind == "lg": lg.append(o.tag); out.append(o.text)
        elif o.kind == "wvm0": vm_done = len(vm); out.append(o.text)
        elif o.kind == "wlg0": lg_done = len(lg); out.append(o.text)
        elif o.kind in ("wvm", "wlg"):
            q = vm if o.kind == "wvm" else lg
            tags = o.tag if isinstance(o.tag, list) else [o.tag]
            idx = -1
            for tg in tags:
                cand = [k for k, t in enumerate(q) if t == tg]
                assert cand, f"wait on unknown tag {tg}"
                assert len(cand) == total[(o.kind[1:], tg)], f"wait on tag {tg} before all its ops were issued"
                idx = max(idx, cand[-1])
            done = vm_done if o.kind == "wvm" else lg_done
            if idx < done: continue
            n = len(q) - 1 - idx
            mx = 63 if o.kind == "wvm" else 15
            n = min(n, mx)
            if o.kind == "wvm": vm_done = len(q) - n; out.append(f"s_waitcnt vmcnt({n})")
            else: lg_done = len(q) - n; out.append(f"s_waitcnt lgkmcnt({n})")
        else: out.append(o.text)
    res = []
    for t in out:
        if res and t.startswith("s_waitcnt") and res[-1].startswith("s_waitcnt"):
            a = dict(re.findall(r"(\w+cnt)\((\d+)\)", res[-1])); b = dict(re.findall(r"(\w+cnt)\((\d+)\)", t))
            for k, v in b.items(): a[k] = str(min(int(v), int(a.get(k, 99))))
            res[-1] = "s_waitcnt " + " ".join(f"{k}({v})" for k, v in a.items())
        else: res.append(t)
    return res

_REG = re.compile(r"\b([vas])(\d+)\b|\b([vas])\[(\d+):(\d+)\]|\b(vcc|exec|m0)\b")
def regs(s):
    r = set()
    for m in _REG.finditer(s):
        if m.group(1): r.add((m.group(1), int(m.group(2))))
        elif m.group(3): r.update((m.group(3), k) for k in range(int(m.group(4)), int(m.group(5)) + 1))
        else: r.add((m.group(6), 0))
    return r
TRANS = ("v_exp_", "v_log_", "v_rcp_", "v_rsq_", "v_sqrt_", "v_sin_", "v_cos_")
class I:
    def __init__(self, t):
        self.t = t
        p = t.split(None, 1); self.op = p[0]; rest = p[1] if len(p) > 1 else ""
        self.args = [a.strip() for a in rest.split(",")]
        op = self.op
        self.mfma = op.startswith("v_mfma"); self.valu = op.startswith("v_") and not self.mfma
        self.vmem = op.startswith(("buffer_", "global_")); self.ds = op.startswith("ds_")
        self.salu = op.startswith("s_")
        self.trans = op.startswith(TRANS); self.dot = op.startswith("v_dot")
        self.dpp = "_dpp" in op or "row_" in t or "quad_perm" in t
        self.perm = op.startswith("v_permlane"); self.rdlane = op.startswith(("v_readlane", "v_readfirstlane"))
        self.ldsdma = self.vmem and (t.rstrip().endswith(" lds") or " lds " in t or "load_lds" in op)
        self.passes = 0
        a = self.args; w = set(); r = set()
        if self.mfma:
            self.passes = 4 if "16x16x32" in op else 8
            w = regs(a[0]); self.A = regs(a[1]); self.B = regs(a[2]); self.C = regs(a[3]); r = self.A | self.B | self.C
        elif self.valu:
            w = regs(a[0]); r = set().union(*[regs(x) for x in a[1:]]) if len(a) > 1 else set()
            if self.perm or op.startswith("v_swap"): w |= regs(a[1]); r |= regs(a[0])
            if op.startswith(("v_fmac", "v_dot2c", "v_writelane", "v_pk_fmac")) or self.dpp: r |= regs(a[0])
            if op.startswith(("v_add_co", "v_sub_co", "v_addc_co")): w |= regs(a[1])
            if op.startswith("v_cmpx"): w.add(("exec", 0))
        elif self.vmem:
            if "load" in op and not self.ldsdma:
                w = regs(a[0]); r = set().union(*[regs(x) for x in a[1:]])
            else:
                r = set().union(*[regs(x) for x in a])
                if "atomic" in op and "sc0" in t: w = regs(a[0])
            self.wide_store = ("store" in op and ("x3" in op or "x4" in op))
            self.data = (regs(a[0]) if op.startswith("buffer") else regs(a[1])) if "store" in op else set()
        elif self.ds:
            if op.startswith(("ds_read", "ds_bpermute", "ds_permute", "ds_swizzle")):
                w = regs(a[0]); r = set().union(*[regs(x) for x in a[1:]])
            else: r = set().union(*[regs(x) for x in a])
        elif self.salu:
            if op.startswith(("s_cmp", "s_cbranch", "s_branch", "s_waitcnt", "s_barrier", "s_nop", "s_endpgm", "s_setprio", "s_bitcmp")): r = set().union(*[regs(x) for x in a])
            else:
                w = regs(a[0]); r = set().union(*[regs(x) for x in a[1:]]) if len(a) > 1 else set()
                if "saveexec" in op: w.add(("exec", 0))
        self.w = w; self.r = r
        self.states = (int(a[0], 0) + 1) if op == "s_nop" else 1

def need(p, c):
    n = 0
    vec = lambda s: {x for x in s if x[0] in "va" and len(x[0]) == 1}
    sc = lambda s: {x for x in s if x[0] == "s" or x[0] == "vcc"}
    if p.valu:
        pw = vec(p.w)
        if c.mfma and pw & c.r: n = max(n, 3 if p.dot else 2)
        if c.perm and pw & c.r: n = max(n, 2)
        if c.valu and c.dpp and pw & c.r: n = max(n, 2)
        if c.rdlane and pw & c.r: n = max(n, 1)
        if p.trans and c.valu and not c.trans and pw & c.r: n = max(n, 1)
        if p.trans and (c.vmem or c.ds) and pw & c.r: n = max(n, 1)
        if p.dot and pw & (c.r | c.w):
            if not (c.dot and c.op == p.op and not (pw & (regs(c.args[1]) | regs(c.args[2])))): n = max(n, 3)
        ps = sc(p.w)
        if ps:
            if c.vmem and ps & c.r: n = max(n, 5)
            if c.valu and ps & c.r: n = max(n, 4 if c.rdlane else 2)
        if ("exec", 0) in p.w and (c.mfma or c.perm or c.rdlane): n = max(n, 4)
        if ("exec", 0) in p.w and c.dpp: n = max(n, 5)
    if p.mfma:
        big = {4: 8, 8: 12}[p.passes]
        if c.mfma:
            if p.w & (c.A | c.B): n = max(n, big)
            if p.w & c.C and not (p.w == c.C and p.passes == c.passes): n = max(n, big - 2)
            if p.w & c.w and not (p.w & c.C): n = max(n, big - 2)
        elif c.valu or c.vmem or c.ds:
            if p.w & (c.r | c.w): n = max(n, big)
            if c.valu and p.C & c.w: n = max(n, {4: 3, 8: 7}[p.passes])
    if p.salu and ("m0", 0) in p.w and c.ldsdma: n = max(n, 1)
    if p.vmem and getattr(p, "wide_store", False) and p.data & c.w: n = max(n, 2 if c.valu else 1)
    return n

def pad_hazards(lines, verbose=False):
    out = []; hist = []
    added = 0
    for t in lines:
        s = t.strip()
        if not s or s.startswith(";") or s.startswith(".") or s.endswith(":"):
            out.append(t); continue
        c = I(s.split(";")[0].strip())
        dist = 0; req = 0
        for p in reversed(hist):
            k = need(p, c)
            if k > dist: req = max(req, k - dist)
            dist += p.states
            if dist >= 20: break
        if req:
            out.append(f"s_nop {req - 1}"); hist.append(I(f"s_nop {req - 1}")); added += req
            if verbose: print(f"pad {req} before: {s}")
        out.append(t); hist.append(c)
        if c.op in ("s_branch", "s_endpgm"): hist = []
        hist = hist[-24:]
    return out, added

class Regs:
    def __init__(self, prefix, lo, hi): self.p = prefix; self.n = lo; self.hi = hi; self.max = lo
    def get(self, cnt=1, align=None):
        if align is None: align = 1 if cnt == 1 else (2 if self.p != "s" or cnt == 2 else 4)
        self.n = (self.n + align - 1) // align * align
        r = self.n; self.n += cnt
        assert self.n <= self.hi, f"out of {self.p} regs"
        self.max = max(self.max, self.n)
        return r
    def mark(self): return self.n
    def release(self, m): self.n = m
def v(r, n=1): return f"v{r}" if n == 1 else f"v[{r}:{r+n-1}]"
def a(r, n=1): return f"a{r}" if n == 1 else f"a[{r}:{r+n-1}]"
def s(r, n=1): return f"s{r}" if n == 1 else f"s[{r}:{r+n-1}]"

def cost(g):
    c = 0
    for o in (g if isinstance(g, list) else [g]):
        t = o.text
        if o.kind in ("wvm", "wlg", "label", "cmt"): continue
        if t.startswith("v_mfma"): c += 16
        elif t.startswith(TRANS): c += 8
        elif o.kind == "lg": c += 1
        else: c += 4
    return c
def singles(stream):
    out = []; pend = S()
    for o in stream:
        pend.append(o)
        if o.kind in ("wvm", "wlg", "cmt"): continue
        out.append(pend); pend = S()
    if pend: out.append(pend)
    return out
def spread(main, fill, lo=0.0, hi=1.0):
    tot = sum(cost(g) for g in main); m = len(fill)
    out = []; t = 0; j = 0
    for g in main:
        out.append(g); t += cost(g)
        while j < m and t >= tot * (lo + (hi - lo) * j / max(m, 1)):
            out.append(fill[j]); j += 1
    out.extend(fill[j:])
    return out
def flat(groups):
    o = S()
    for g in groups: o.extend(g if isinstance(g, list) else [g])
    return o

def ahead(main, loads, hi):
    out = spread(main, loads, 0.0, hi)
    ids = {id(g): k for k, g in enumerate(loads)}
    tagof = lambda g: [o.tag for o in g if o.kind == "vm"]
    res = []; done = set()
    for g in out:
        if id(g) in ids:
            if id(g) not in done: res.append(g); done.add(id(g))
            continue
        waits = [t for o in g if o.kind == "wvm" for t in (o.tag if isinstance(o.tag, list) else [o.tag])]
        last = max([k for k, l in enumerate(loads) if id(l) not in done and set(tagof(l)) & set(waits)], default=-1)
        for l in loads[:last + 1]:
            if id(l) not in done: res.append(l); done.add(id(l))
        res.append(g)
    return res

def ninstr(g): return sum(1 for o in g if o.kind not in ("label", "cmt"))
def sched(slots, streams, cap_free=2, cap_busy=1):
    n = len(slots); slots = [group(g) for g in slots]
    cap = []
    for j, g in enumerate(slots):
        after = 0; seen = False
        for o in g:
            if o.text.startswith("v_mfma"): seen = True
            elif seen and o.kind not in ("label", "cmt"): after += 1
        before = 0
        if j + 1 < n:
            for o in slots[j + 1]:
                if o.text.startswith("v_mfma"): break
                if o.kind not in ("label", "cmt"): before = 1
        cap.append(cap_free - after - before if after + before < 2 else cap_busy - 1 - (after + before - 2))
    items = []
    for si, (gs, lo, hi) in enumerate(streams):
        hi = min(hi, n - 1); w = [max(1, ninstr(g)) for g in gs]; tot = sum(w); acc = 0
        for k, g in enumerate(gs):
            items.append((lo + (hi - lo + 1) * acc / tot, si, k, g, hi)); acc += w[k]
    items.sort(key=lambda t: t[:3])
    last = {}; add = [[] for _ in range(n)]; over = 0
    for pos, si, k, g, hi in items:
        j = max(int(pos), last.get(si, 0)); j0 = j
        while j <= hi and cap[j] <= 0: j += 1
        if j > hi: j = max(range(j0, hi + 1), key=lambda x: (cap[x], -x)) if j0 <= hi else hi
        c = ninstr(g); over += max(0, c - max(cap[j], 0)); cap[j] -= c
        add[j].append(g); last[si] = j
    for j in range(n):
        for g in add[j]: slots[j].add(g)
    sched.over = over
    return slots
```

```python
import sys, os, struct, math
sys.path.insert(0, os.path.dirname(os.path.abspath(__file__)))
from asmlib import *

NAME = "sequential_preLN__ssm_conv_h3__geglu_ffn__prompt_kernel"
CFG = dict(diag=0, g1map=(8, 4), g2map=2, out_sc=(" sc1", " sc1", " sc1", ""), spin=200000, npf=11,
           hk=(1, 1, 1, 1), px=(0, 10), cx=(2, 12), epiA=8, f2a=11, hint=14, nap=1, napw=6, nap2=8,
           b1=2, r3=(8, 10), i4=(11, 11), g4=13, r4=(13, 14),
           needA_hi=5, pcd=8, ccd=11, pb=7, cb=10, hb_a=5, sg_ld=10, sg_chk=15, wd_a=0, wd_ga=12, wd_b=42, u0_early=6, wd_gb=6,
           warm="", p3a=11, c3a=16, f3b_at=30, p3b_at=40, u1_in0=8, dpos=0)
for kv in sys.argv[2:]:
    k, val = kv.split("=", 1); CFG[k] = eval(val)
DIAG = CFG["diag"]
LF = 7; FSP = 1 << LF; LF2 = CFG.get("lf2", 4); LFX = CFG.get("lfx", 5)

F1A, F2A, F2B, FH, F3A, F3B, FW, FX, FD, FC = 0, 160, 320, 472, 480, 736, 992, 1072, 1200, 1296
STATS = 0x2A000; CSUM = 0x2E000; SG_WS = 0x32000; EPOCH = 0x7ff00; DIAGO = 0x80000
UROW = 4096 + 128; XROW = 16384 + 128
U_WS = 0x100000; XT_WS = 0x3A0000; HT_WS = 0x640000; WF_WS = 0x8C0000; WDF_WS = 0xC80000; ACT_WS = 0xE60000
WS_END = ACT_WS + 32 * 196608
L_U = 0; U_ROW = 4576; L_HC = 18304; HC_COPY = 4160; HC_CH = 16640
L_WR = 84864; WCELL = 12352; L_XT = 147456; L_ST = 155648
L_R1 = 81920; L_R2 = 0
QS = 512 + 16 * 3; WV = 10 * QS; UN = 4 * WV
def f2u(x): return struct.unpack("<I", struct.pack("<f", x))[0]
C0 = -2.0 * math.log2(math.e) * math.sqrt(2.0 / math.pi); C1 = C0 * 0.044715

sK, sV, sSH, sHK, sX, sWG, sWD, sWU, sDp, sOUT, sWS = 4, 8, 12, 16, 20, 24, 28, 32, 34, 36, 40
SC = [20, 21, 22, 23, 28, 29, 30, 31]
SP = Regs("s", 4, 20)
SR = Regs("s", 44, 102)
sN = SR.get(2); sP0 = SR.get(2); sM = [SR.get(2) for _ in range(3)]; sRF = SR.get(2)
sStamp = SR.get(2) if DIAG else None; sStampC = SR.get(2) if DIAG else None
sW, sXc, sY, sMask, sSpin, sRB, sCB, sRot, sWoff, sWt, sM0 = [SR.get() for _ in range(11)]
sWq = [SR.get() for _ in range(4)]
sT = [SR.get() for _ in range(8)]
sHo = [SR.get() for _ in range(5)]
sHm, sSG, sAct, sF3, sCs, sWd, sA2, sOo, sRes, sResM, sP3, sWm, sPfD = [SR.get() for _ in range(13)]
VR = Regs("v", 1, 256)
vL, vL16, vL16B, vFO, vOOB, vEv, vJ, vG, vPA = [VR.get() for _ in range(9)]
vN = VR.get(2); vPoll = VR.get(2); vPollB = VR.get(2)
vH = VR.get(4, 1); vA = VR.get(3, 1)
vSTw, vSTr, vSTr2, vSGo, vP2, vP3, vPCD, vCs, vResD, vRes, vRw, vRr, vOo = [VR.get() for _ in range(13)]
vPf, vPfH, vPfA = VR.get(), VR.get(), VR.get()
vDum = vL
vStamps = VR.get() if DIAG else None
ones = VR.get(4)
slow = S()
_lab = [0]
def newlab(p): _lab[0] += 1; return f"L_{p}{_lab[0]}"

def stamp(o, k):
    if not DIAG or k in CFG.get("nostamp", ()): return
    o.i(f"s_memrealtime {s(sStamp,2)}\ns_memtime {s(sStampC,2)}"); o.wlg0(); o.i(f"v_writelane_b32 {v(vStamps)}, {s(sStamp)}, {k}\nv_writelane_b32 {v(vStamps)}, {s(sStampC)}, {32+k}")

def spin_check(o, tag, load_txts, chk, nap=0):
    back = newlab("ok"); sl = newlab("spin"); lp = newlab("lp"); out = newlab("out")
    o.wvm(tag); chk(o); o.i(f"s_cbranch_vccnz {sl}" if not CFG.get("nospin") else "s_nop 0"); o.label(back)
    slow.label(sl); slow.i(f"s_mov_b32 {s(sSpin)}, {CFG['spin']}"); slow.label(lp)
    slow.i("s_mov_b64 exec, vcc")
    if nap: slow.i(f"s_sleep {nap}")
    for t in load_txts: slow.i(t)
    slow.i("s_waitcnt vmcnt(0)"); chk(slow)
    slow.i(f"s_cbranch_vccz {out}\ns_sub_u32 {s(sSpin)}, {s(sSpin)}, 1\ns_cmp_lg_u32 {s(sSpin)}, 0\ns_cbranch_scc1 {lp}")
    slow.label(out); slow.i(f"s_mov_b64 exec, -1\ns_branch {back}")
class Poll:
    def __init__(p, dst, addr, soff, nap=None):
        p.txt = f"buffer_load_dwordx2 {v(dst,2)}, {v(addr)}, {s(sWS,4)}, {soff} offen sc1"; p.dst = dst; p.tag = newlab("pt")
        p.nap = CFG["nap"] if nap is None else nap
    def issue(p): return S().vm(p.txt, p.tag)
    def check(p):
        o = S(); spin_check(o, p.tag, [p.txt], lambda q: q.i(f"v_cmp_ne_u64 vcc, {v(vN,2)}, {v(p.dst,2)}"), p.nap); return o
    def both(p): return p.issue().add(p.check())
def flag_store(o, soff, vfo=None):
    o.vm(f"buffer_store_dwordx2 {v(vN,2)}, {v(vFO if vfo is None else vfo)}, {s(sWS,4)}, {soff} offen sc1"); return o
def nonce(o):
    o.i(f"s_add_u32 {s(sN)}, {s(sN)}, 0x7f4a7c15\ns_addc_u32 {s(sN+1)}, {s(sN+1)}, 0x9e3779b9\nv_mov_b32 {v(vN)}, {s(sN)}\nv_mov_b32 {v(vN+1)}, {s(sN+1)}")
def bf16r(o, d, x):
    o.i(f"v_cvt_pk_bf16_f32 {v(d)}, {v(x)}, {v(x)}\nv_lshlrev_b32 {v(d)}, 16, {v(d)}")
def ln_finalize(o, vsum, vsq, vmean, vsd, t):
    o.i(f"v_mul_f32 {v(vmean)}, {hex(f2u(1/640))}, {v(vsum)}")
    o.i(f"v_mul_f32 {v(t)}, {hex(f2u(1/640))}, {v(vsq)}")
    o.i(f"v_fma_f32 {v(t)}, -{v(vmean)}, {v(vmean)}, {v(t)}")
    o.i(f"v_max_f32 {v(t)}, 0, {v(t)}")
    bf16r(o, vmean, vmean); bf16r(o, t, t)
    o.i(f"v_add_f32 {v(t)}, {hex(f2u(1e-5))}, {v(t)}")
    bf16r(o, t, t)
    o.i(f"v_sqrt_f32 {v(t)}, {v(t)}")
    bf16r(o, vsd, t)
def srd(o, *ps):
    for r, n in ps: o.i(f"s_mov_b32 {s(r+2)}, {n}\ns_mov_b32 {s(r+3)}, 0x00020000")

def prologue():
    o = S()
    if DIAG: o.i(f"s_memrealtime {s(sStamp,2)}\ns_memtime {s(sStampC,2)}")
    o.i(f"s_load_dwordx2 {s(sK,2)}, s[0:1], 8\ns_load_dwordx2 {s(sWS,2)}, s[0:1], 96")
    o.i(f"s_getpc_b64 {s(sP0,2)}\ns_lshr_b32 {s(sY)}, s2, 3\ns_min_u32 {s(sT[0])}, {s(sY)}, 31\ns_mul_i32 {s(sT[0])}, {s(sT[0])}, {CFG['npf'] * 128}")
    o.i(f"v_min_u32 {v(vPollB)}, {CFG['npf'] * 2 - 1}, v0\nv_lshl_add_u32 {v(vPollB)}, {v(vPollB)}, 6, {s(sT[0])}")
    o.i(f"global_load_dword {v(vPollB+1)}, {v(vPollB)}, {s(sP0,2)}")
    for r, off in ((sV, 16), (sSH, 24), (sX, 0), (sWG, 56), (sWU, 64), (sHK, 32), (sWD, 72), (sOUT, 80), (sDp, 40)):
        o.i(f"s_load_dwordx2 {s(r,2)}, s[0:1], {off}")
    o.i("s_cmp_ge_u32 s2, 256\ns_cbranch_scc1 L_end")
    o.i(f"v_lshrrev_b32 {v(vPoll)}, 6, v0\nv_and_b32 {v(vL)}, 63, v0")
    o.i(f"v_readfirstlane_b32 {s(sW)}, {v(vPoll)}")
    o.i(f"s_and_b32 {s(sXc)}, s2, 7\nv_bfrev_b32 {v(vOOB)}, 1\nv_lshlrev_b32 {v(vL16)}, 4, {v(vL)}")
    o.i(f"v_and_b32 {v(vJ)}, 15, {v(vL)}\nv_lshrrev_b32 {v(vG)}, 4, {v(vL)}")
    o.i(f"s_cmp_ge_u32 {s(sY)}, 20\ns_cbranch_scc1 L_prep")
    return o
def kernarg_ready(o):
    o.wlg0()
    if DIAG: o.i(f"v_mov_b32 {v(vStamps)}, 0\nv_writelane_b32 {v(vStamps)}, {s(sStamp)}, 0\nv_writelane_b32 {v(vStamps)}, {s(sStampC)}, 32")
def epoch_load(o): o.i(f"s_load_dwordx2 {s(sN,2)}, {s(sWS,2)}, {EPOCH}")
def common_setup(o):
    srd(o, (sWS, WS_END))
    o.i(f"v_cmp_ne_u32 vcc, 0, v0\ns_mov_b32 {s(sMask)}, 0xffff0000\ns_nop 0\nv_cndmask_b32 {v(vFO)}, 0, {v(vOOB)}, vcc")
def gemm_setup(o, t0, t1, t2):
    T = sT
    srd(o, (sOUT, 2621440))
    R, C = CFG["g1map"]
    o.i(f"s_lshl2_add_u32 {s(T[1])}, {s(sCB)}, {s(sW)}\nv_min_u32 {v(vPf)}, 59, {v(vL)}\nv_lshlrev_b32 {v(vPf)}, 7, {v(vPf)}")
    o.i(f"s_lshl_b32 {s(sCs)}, {s(T[1])}, 8\ns_add_u32 {s(sCs)}, {s(sCs)}, {CSUM}\nv_lshlrev_b32 {v(vCs)}, 4, {v(vG)}")
    o.i(f"s_mul_i32 {s(sAct)}, {s(sRB)}, 196608\ns_mul_i32 {s(T[1])}, {s(T[1])}, 768\ns_add_u32 {s(sAct)}, {s(sAct)}, {s(T[1])}\ns_add_u32 {s(sAct)}, {s(sAct)}, {ACT_WS}")
    o.i(f"s_lshl4_add_u32 {s(sF3)}, {s(sRB)}, {s(sCB)}\ns_add_u32 {s(sF3)}, {s(sF3)}, {F3A}\ns_lshl_b32 {s(sF3)}, {s(sF3)}, {LF}")
    o.i(f"s_add_u32 {s(T[0])}, {s(sW)}, 1\ns_and_b32 {s(T[0])}, {s(T[0])}, 3\ns_lshl_b32 {s(sHm)}, {s(T[0])}, 12\ns_lshl2_add_u32 {s(T[1])}, {s(sRot)}, {s(sRot)}\ns_add_u32 {s(T[0])}, {s(T[0])}, {s(T[1])}")
    o.i(f"s_mul_i32 {s(T[1])}, {s(sRB)}, 81920\ns_add_u32 {s(T[1])}, {s(T[1])}, {HT_WS}")
    for g in range(5):
        o.i(f"s_add_u32 {s(T[2])}, {s(T[0])}, {4*g}\ns_sub_u32 {s(T[3])}, {s(T[2])}, 20\ns_min_u32 {s(T[2])}, {s(T[2])}, {s(T[3])}\ns_lshl_b32 {s(T[2])}, {s(T[2])}, 12\ns_add_u32 {s(sHo[g])}, {s(T[1])}, {s(T[2])}")
    o.i(f"v_add_u32 {v(vL16B)}, {16*81920}, {v(vL16)}")
    o.i(f"v_lshrrev_b32 {v(vP2)}, 3, {v(vL)}\nv_min_u32 {v(vP2)}, 4, {v(vP2)}\nv_lshl_add_u32 {v(vP2)}, {v(vP2)}, 2, {s(T[0])}\nv_subrev_u32 {v(t0)}, 20, {v(vP2)}\nv_min_u32 {v(vP2)}, {v(vP2)}, {v(t0)}")
    o.i(f"s_and_b32 {s(T[2])}, {s(sCB)}, 3\ns_lshl_b32 {s(T[2])}, {s(T[2])}, 10\ns_add_u32 {s(T[2])}, {s(T[2])}, {s(T[1])}\nv_and_b32 {v(t0)}, 7, {v(vL)}\nv_lshl_add_u32 {v(vPfH)}, {v(vP2)}, 5, {v(t0)}\nv_lshl_add_u32 {v(vPfH)}, {v(vPfH)}, 7, {s(T[2])}")
    o.i(f"v_lshl_add_u32 {v(vP2)}, {v(vP2)}, 3, {v(t0)}\nv_lshlrev_b32 {v(vP2)}, {LF2}, {v(vP2)}\nv_add_u32 {v(vP2)}, {F2A*FSP}, {v(vP2)}")
    o.i(f"v_bfe_u32 {v(t0)}, {v(vL)}, 2, 2\nv_lshl_add_u32 {v(t1)}, {v(vG)}, 3, {v(t0)}\nv_lshlrev_b32 {v(t1)}, 7, {v(t1)}\nv_and_b32 {v(t2)}, 3, {v(vL)}\nv_lshlrev_b32 {v(vP3)}, {LF}, {v(t2)}\nv_lshl_add_u32 {v(t1)}, {v(t2)}, 3, {v(t1)}\nv_add_u32 {v(t1)}, {L_R1}, {v(t1)}")
    for k in range(3): o.i(f"v_cmp_eq_u32 {s(sM[k],2)}, {k+1}, {v(t2)}")
    o.i(f"v_lshrrev_b32 {v(t0)}, 1, {v(t0)}\nv_and_b32 {v(t2)}, 1, {v(vG)}\nv_lshl_or_b32 {v(t0)}, {v(t2)}, 1, {v(t0)}")
    for k in range(4):
        o.i(f"s_add_u32 {s(T[0])}, {s(sW)}, {k}\ns_and_b32 {s(T[0])}, {s(T[0])}, 3\nv_xor_b32 {v(t2)}, {s(T[0])}, {v(t0)}\nv_lshl_add_u32 {v(vH+k)}, {v(t2)}, 5, {v(t1)}")
    for k in range(4): o.i(f"v_mov_b32 {v(ones+k)}, 0x3f803f80")
    o.i(f"s_lshl_b32 {s(sSG)}, {s(sRB)}, 12\ns_add_u32 {s(sSG)}, {s(sSG)}, {SG_WS}\ns_lshl2_add_u32 {s(T[0])}, {s(sRot)}, {s(sW)}\ns_lshl_b32 {s(T[0])}, {s(T[0])}, 8")
    o.i(f"s_and_b32 {s(T[1])}, {s(sCB)}, 3\ns_cselect_b32 {s(T[0])}, 0x80000000, {s(T[0])}\nv_lshrrev_b32 {v(t0)}, 2, {v(vJ)}\nv_cmp_eq_u32 vcc, {v(t0)}, {v(vG)}\nv_lshl_add_u32 {v(vSGo)}, {v(vJ)}, 4, {s(T[0])}")
    o.i(f"s_lshl_b32 {s(T[1])}, {s(sW)}, 10\ns_add_u32 {s(T[1])}, {s(T[1])}, {L_R1}\nv_cndmask_b32 {v(vSGo)}, {v(vOOB)}, {v(vSGo)}, vcc")
    o.i(f"v_lshl_add_u32 {v(vSTr)}, {v(vJ)}, 4, {s(T[1])}\nv_subrev_u32 {v(t0)}, {s(sW)}, {v(vG)}\nv_and_b32 {v(t0)}, 3, {v(t0)}\nv_lshl_add_u32 {v(vSTw)}, {v(t0)}, 8, {v(vSTr)}\nv_lshrrev_b32 {v(t2)}, 1, {v(vG)}\nv_lshl_add_u32 {v(vSTr2)}, {v(t2)}, 8, {v(vSTr)}")
    o.i(f"s_mov_b32 {s(T[1])}, 49152\nv_lshlrev_b32 {v(t1)}, 4, {v(vJ)}\nv_and_b32 {v(t0)}, 1, {v(vG)}")
    for p in range(2):
        o.i(f"v_add3_u32 {v(vA+p)}, {v(t0)}, {s(sW)}, {2*p}\nv_and_b32 {v(vA+p)}, 3, {v(vA+p)}\nv_mad_u32_u24 {v(vA+p)}, {v(vA+p)}, {s(T[1])}, {v(t1)}\nv_lshl_add_u32 {v(vA+p)}, {v(t2)}, 8, {v(vA+p)}")
    o.i(f"v_lshl_or_b32 {v(vA+2)}, {v(t0)}, 1, {v(t2)}\nv_add_u32 {v(vA+2)}, {s(sW)}, {v(vA+2)}\nv_and_b32 {v(vA+2)}, 3, {v(vA+2)}\nv_mad_u32_u24 {v(vA+2)}, {v(vA+2)}, {s(T[1])}, {v(t1)}")
    o.i(f"s_mul_i32 {s(T[0])}, {s(sW)}, {WV}\nv_mul_u32_u24 {v(vRw)}, {QS}, {v(t2)}\nv_lshl_add_u32 {v(vRw)}, {v(t0)}, 8, {v(vRw)}\nv_add3_u32 {v(vRw)}, {v(vRw)}, {v(t1)}, {s(T[0])}")
    nr = CFG["g2map"]; nd = 16 // nr; lr = nr.bit_length() - 1; nxr = 16 // nr; lx = nxr.bit_length() - 1
    if R == 8: o.i(f"s_and_b32 {s(T[4])}, {s(sXc)}, 1\ns_lshl_b32 {s(T[4])}, {s(T[4])}, {lx-1}\ns_bfe_u32 {s(T[0])}, {s(sXc)}, {hex(((lx-1) << 16) | 1)}\ns_add_u32 {s(T[4])}, {s(T[4])}, {s(T[0])}")
    else: o.i(f"s_and_b32 {s(T[4])}, {s(sXc)}, {nxr-1}")
    o.i(f"s_lshl_b32 {s(T[4])}, {s(T[4])}, {lr}\ns_and_b32 {s(T[0])}, {s(sY)}, {nr-1}\ns_add_u32 {s(T[4])}, {s(T[4])}, {s(T[0])}")
    o.i(f"s_bfe_u32 {s(T[5])}, {s(sY)}, {hex(0x10000 | lr)}\ns_lshr_b32 {s(T[6])}, {s(sXc)}, {lx}\ns_mul_i32 {s(T[6])}, {s(T[6])}, {nd}\ns_lshr_b32 {s(T[0])}, {s(sY)}, {lr+1}\ns_add_u32 {s(T[6])}, {s(T[6])}, {s(T[0])}")
    o.i(f"s_lshl2_add_u32 {s(T[0])}, {s(T[6])}, {s(sW)}\ns_mul_i32 {s(sWd)}, {s(T[0])}, 61440\ns_add_u32 {s(sWd)}, {s(sWd)}, {WDF_WS}")
    o.i(f"s_and_b32 {s(T[0])}, {s(sY)}, {2*nr - 1}\ns_mul_i32 {s(T[0])}, {s(T[0])}, {61440 // (2*nr)}\ns_add_u32 {s(sPfD)}, {s(sWd)}, {s(T[0])}")
    o.i(f"s_lshr_b32 {s(T[0])}, {s(sY)}, {lr+1}\ns_mul_i32 {s(T[0])}, {s(T[0])}, {12288 // nd}\nv_and_b32 {v(t0)}, 31, {v(vL)}\nv_min_u32 {v(t0)}, {96 // nd - 1}, {v(t0)}\nv_lshl_add_u32 {v(t0)}, {v(t0)}, 7, {s(T[0])}\nv_lshrrev_b32 {v(t1)}, 5, {v(vL)}\nv_mul_u32_u24 {v(t1)}, 49152, {v(t1)}\nv_add_u32 {v(vPfA)}, {v(t0)}, {v(t1)}")
    o.i(f"s_mul_i32 {s(T[0])}, {s(sW)}, 24\ns_lshr_b32 {s(T[1])}, {s(T[6])}, 2\ns_add_u32 {s(T[0])}, {s(T[0])}, {s(T[1])}\ns_add_u32 {s(T[0])}, {s(T[0])}, {FD}\ns_add_u32 {s(T[1])}, {s(sCB)}, {FC}")
    o.i(f"v_cmp_gt_u32 vcc, 12, {v(vL)}\nv_lshl_add_u32 {v(vPCD)}, {v(vL)}, 1, {s(T[0])}\nv_mov_b32 {v(t0)}, {s(T[1])}\nv_cndmask_b32 {v(vPCD)}, {v(t0)}, {v(vPCD)}, vcc\nv_lshlrev_b32 {v(vPCD)}, {LF}, {v(vPCD)}")
    o.i(f"s_lshl2_add_u32 {s(sP3)}, {s(T[4])}, {s(sW)}\ns_lshl_b32 {s(sP3)}, {s(sP3)}, {LF+2}\ns_add_u32 {s(sP3)}, {s(sP3)}, {F3A*FSP}")
    o.i(f"s_lshl1_add_u32 {s(sA2)}, {s(T[4])}, {s(T[5])}\ns_mul_i32 {s(sA2)}, {s(sA2)}, 98304\ns_mul_i32 {s(T[0])}, {s(sW)}, 12288\ns_add_u32 {s(sA2)}, {s(sA2)}, {s(T[0])}\ns_add_u32 {s(sA2)}, {s(sA2)}, {ACT_WS}")
    o.i(f"s_lshr_b32 {s(T[0])}, {s(sW)}, 1\ns_and_b32 {s(T[1])}, {s(sW)}, 1\ns_lshl1_add_u32 {s(T[2])}, {s(T[5])}, {s(T[1])}")
    o.i(f"v_bfe_u32 {v(t0)}, {v(vL)}, 2, 1\nv_bfe_u32 {v(t1)}, {v(vL)}, 4, 1\nv_lshl_or_b32 {v(t0)}, {v(t1)}, 1, {v(t0)}\nv_xor_b32 {v(t0)}, {s(T[2])}, {v(t0)}")
    o.i(f"v_lshrrev_b32 {v(t1)}, 1, {v(vL)}\nv_lshlrev_b32 {v(t1)}, 7, {v(t1)}\nv_lshl_add_u32 {v(t0)}, {v(t0)}, 5, {v(t1)}\nv_and_b32 {v(t1)}, 1, {v(vL)}\nv_lshl_add_u32 {v(vResD)}, {v(t1)}, 4, {v(t0)}")
    o.i(f"s_lshl4_add_u32 {s(sRes)}, {s(T[0])}, {s(T[4])}\ns_mul_i32 {s(sRes)}, {s(sRes)}, 81920\ns_mul_i32 {s(T[2])}, {s(T[6])}, 10240\ns_add_u32 {s(sRes)}, {s(sRes)}, {s(T[2])}\ns_add_u32 {s(sRes)}, {s(sRes)}, {HT_WS}")
    o.i(f"s_lshl_b32 {s(sResM)}, {s(sW)}, 12\ns_add_u32 {s(sResM)}, {s(sResM)}, {L_R1 + 16384}\nv_lshl_add_u32 {v(vRes)}, {v(vL)}, 3, {s(sResM)}")
    o.i(f"s_lshl2_add_u32 {s(sOo)}, {s(T[4])}, {s(T[0])}\ns_lshl1_add_u32 {s(sOo)}, {s(sOo)}, {s(T[5])}\ns_lshl1_add_u32 {s(sOo)}, {s(sOo)}, {s(T[1])}\ns_mul_i32 {s(sOo)}, {s(sOo)}, {4*1280}\ns_mul_i32 {s(T[0])}, {s(T[6])}, 160\ns_add_u32 {s(sOo)}, {s(sOo)}, {s(T[0])}")
    o.i(f"s_lshl_b32 {s(T[0])}, {s(sW)}, 6\ns_movk_i32 {s(T[1])}, 1280")
    o.i(f"v_min_u32 {v(t0)}, 39, {v(vL)}\nv_mul_u32_u24 {v(t1)}, 6554, {v(t0)}\nv_lshrrev_b32 {v(t1)}, 16, {v(t1)}\nv_mul_u32_u24 {v(t2)}, 10, {v(t1)}\nv_sub_u32 {v(t0)}, {v(t0)}, {v(t2)}")
    o.i(f"v_mul_u32_u24 {v(vRr)}, {QS}, {v(t0)}\nv_lshl_add_u32 {v(vRr)}, {v(t1)}, 4, {v(vRr)}\nv_add_u32 {v(vRr)}, {s(T[0])}, {v(vRr)}")
    o.i(f"v_cmp_gt_u32 vcc, 40, {v(vL)}\nv_lshlrev_b32 {v(t0)}, 4, {v(t0)}\nv_mad_u32_u24 {v(vOo)}, {v(t1)}, {s(T[1])}, {v(t0)}\nv_cndmask_b32 {v(vOo)}, {v(vOOB)}, {v(vOo)}, vcc")

class WStage:
    def __init__(w): w.vo = VR.get(3, 1); w.va0 = VR.get(); w.va2 = VR.get()
    def setup(w, o, t0, t1, t2, T0, T1):
        R, C = CFG["g1map"]; lr = R.bit_length() - 1; nxr = 16 // R; lx = nxr.bit_length() - 1; lc = C.bit_length() - 1
        o.i(f"s_and_b32 {s(sRB)}, {s(sXc)}, {nxr-1}\ns_lshl_b32 {s(sRB)}, {s(sRB)}, {lr}\ns_lshr_b32 {s(T0)}, {s(sY)}, {lc}\ns_add_u32 {s(sRB)}, {s(sRB)}, {s(T0)}")
        o.i(f"s_lshr_b32 {s(sCB)}, {s(sXc)}, {lx}\ns_lshl_b32 {s(sCB)}, {s(sCB)}, {lc}\ns_and_b32 {s(T0)}, {s(sY)}, {C-1}\ns_add_u32 {s(sCB)}, {s(sCB)}, {s(T0)}\ns_lshr_b32 {s(sRot)}, {s(sCB)}, 2")
        o.i(f"s_mul_i32 {s(T1)}, {s(sCB)}, 192")
        for q in range(4): o.i(f"s_add_u32 {s(T0)}, {s(sRot)}, {q}\ns_and_b32 {s(T0)}, {s(T0)}, 3\ns_mul_i32 {s(T0)}, {s(T0)}, {160*3072}\ns_add_u32 {s(sWq[q])}, {s(T1)}, {s(T0)}")
        o.i(f"s_lshr_b32 {s(T0)}, {s(sW)}, 1\ns_lshl_b32 {s(T0)}, {s(T0)}, 3\ns_movk_i32 {s(T1)}, 3072\ns_mul_i32 {s(sWm)}, {s(sW)}, 3088")
        for i in range(3):
            o.i(f"v_add_u32 {v(t0)}, {64*i}, {v(vL)}\nv_mul_u32_u24 {v(t1)}, 5462, {v(t0)}\nv_lshrrev_b32 {v(t1)}, 16, {v(t1)}\nv_mul_u32_u24 {v(t2)}, 12, {v(t1)}\nv_sub_u32 {v(t0)}, {v(t0)}, {v(t2)}")
            o.i(f"v_lshlrev_b32 {v(t0)}, 4, {v(t0)}\nv_and_b32 {v(t2)}, 8, {v(t1)}\nv_add3_u32 {v(t1)}, {v(t1)}, {v(t2)}, {s(T0)}\nv_mad_u32_u24 {v(w.vo+i)}, {v(t1)}, {s(T1)}, {v(t0)}")
        srd(o, (sWG, 1966080))
        o.i(f"s_bitcmp1_b32 {s(sW)}, 0\ns_cselect_b32 {s(sWG)}, {s(sWU)}, {s(sWG)}\ns_cselect_b32 {s(sWG+1)}, {s(sWU+1)}, {s(sWG+1)}")
    def setup2(w, o, t0, t1, t2, T0, base):
        o.i(f"v_bfe_u32 {v(t2)}, {v(vL)}, 2, 2\nv_and_b32 {v(t0)}, 1, {v(vG)}\nv_mul_u32_u24 {v(w.va0)}, 6176, {v(t0)}\nv_lshrrev_b32 {v(t0)}, 1, {v(vG)}\nv_lshl_add_u32 {v(t0)}, {v(t0)}, 3, {v(t2)}\nv_mul_u32_u24 {v(t0)}, 192, {v(t0)}")
        o.i(f"s_mul_i32 {s(T0)}, {s(sW)}, 48\ns_add_u32 {s(T0)}, {s(T0)}, {base}\nv_add3_u32 {v(w.va0)}, {v(w.va0)}, {v(t0)}, {s(T0)}\nv_and_b32 {v(t2)}, 3, {v(vL)}")
        o.i(f"v_lshrrev_b32 {v(t0)}, 1, {v(t2)}\nv_mul_u32_u24 {v(t0)}, 3088, {v(t0)}\nv_and_b32 {v(t1)}, 1, {v(t2)}\nv_lshl_add_u32 {v(t0)}, {v(t1)}, 3, {v(t0)}\nv_add3_u32 {v(w.va2)}, {v(w.va0)}, {v(t0)}, 32")
        o.i(f"v_lshl_add_u32 {v(w.va0)}, {v(t2)}, 3, {v(w.va0)}")
    def dma(w, q, base):
        r = S()
        for j in range(5):
            for i in range(3):
                r.i(f"s_add_u32 m0, {s(sWm)}, {base + j*WCELL + i*1024}")
                if i == 0 and j: r.i(f"s_add_u32 {s(sWoff)}, {s(sWq[q])}, {j*32*3072}")
                r.vm(f"buffer_load_dwordx4 {v(w.vo+i)}, {s(sWG,4)}, {s(sWoff if j else sWq[q])} offen lds", ("wb", q))
        return singles(r)
    def reads(w, q):
        r = S()
        for j in range(5):
            for tl in range(3):
                for rd in range(2):
                    r.lg(f"ds_read_b64_tr_b16 {a(60*q + 12*j + 4*tl + 2*rd, 2)}, {v(w.va2 if tl == 2 else w.va0)} offset:{j*WCELL + rd*768 + (3088 if tl == 1 else 0)}", ("wr", q))
        return singles(r)
def h_dma(gam, half):
    r = [S().i(f"s_add_u32 m0, {s(sHm)}, {(L_R1 if half == 0 else L_R2) + 16384*gam}")]
    for q in range(4):
        r.append(S().vm(f"buffer_load_dwordx4 {v(vL16B if half else vL16)}, {s(sWS,4)}, {s(sHo[gam])} offen offset:{1024*q} sc1 lds", ("H", half, gam)))
    return r
def warm(kind, addr, soff):
    if kind not in CFG["warm"]: return []
    return [S().vm(f"buffer_load_dword {v(vDum)}, {v(addr)}, {s(sWS,4)}, {soff} offen sc1")]
def attach(mm, fill):
    n = len(mm); slots = [group(g) for g in mm]
    for k, f in enumerate(fill): slots[k if len(fill) <= n else k * n // len(fill)].add(f)
    return slots
def cat(ls): return [g for l in ls for g in l]

def role_conv():
    o = S(); m0 = VR.mark()
    sD = SC[0]; sCI, sF1, sF2, sCH, sU, sHT = SC[2:8]; sHKo, sXS = sRF, sRF + 1
    vAa, vBa, vUe, vXo, vSo, vHo, vHint = [VR.get() for _ in range(7)]
    ws = WStage()
    m1 = VR.mark()
    vOff, vOffH, vt0, vt1, vt2 = [VR.get() for _ in range(5)]
    kr = VR.get(22); vr_ = VR.get(16); shr = VR.get(8); wt = VR.get(16)
    o.i(f"s_cmp_ge_u32 {s(sY)}, 10\ns_cselect_b32 {s(sT[1])}, 10, 0\ns_addc_u32 {s(sT[7])}, {s(sXc)}, {s(sXc)}\ns_sub_u32 {s(sT[1])}, {s(sY)}, {s(sT[1])}")
    o.i(f"s_lshl2_add_u32 {s(sT[0])}, {s(sT[7])}, {s(sW)}")
    o.i(f"s_mul_i32 {s(sT[2])}, {s(sT[0])}, {32*1280}\ns_lshl_b32 {s(sT[3])}, {s(sT[1])}, 7\ns_add_u32 {s(sT[2])}, {s(sT[2])}, {s(sT[3])}")
    o.i(f"v_lshrrev_b32 {v(vt0)}, 3, {v(vL)}\nv_mul_u32_u24 {v(vOff)}, 1280, {v(vt0)}\nv_and_b32 {v(vt0)}, 7, {v(vL)}\nv_lshl_add_u32 {v(vOff)}, {v(vt0)}, 4, {v(vOff)}")
    o.i(f"s_cmp_eq_u32 {s(sT[0])}, 0\ns_cselect_b32 {s(sT[4])}, 64, 40\ns_cselect_b32 {s(sT[5])}, 0, 10240\nv_cmp_gt_u32 vcc, {s(sT[4])}, {v(vL)}\ns_sub_u32 {s(sT[5])}, {s(sT[2])}, {s(sT[5])}")
    srd(o, (sK, 2621440), (sV, 2621440), (sSH, 5120), (sHK, 2621440))
    o.i(f"v_cndmask_b32 {v(vOffH)}, {v(vOff)}, {v(vOOB)}, vcc\ns_mul_i32 {s(sM0)}, {s(sW)}, {HC_CH}\ns_add_u32 {s(sM0)}, {s(sM0)}, {L_HC}")
    o.i(f"s_lshl_b32 {s(sT[3])}, {s(sT[1])}, 9\nv_lshrrev_b32 {v(vt1)}, 2, {v(vL)}\nv_lshlrev_b32 {v(vt0)}, 5, {v(vt1)}\ns_add_u32 m0, {s(sM0)}, 1088")
    common_setup(o)
    o.i(f"s_mul_i32 {s(sWt)}, {s(sXc)}, 20\ns_add_u32 {s(sWt)}, {s(sWt)}, {s(sY)}\ns_lshl2_add_u32 {s(sT[6])}, {s(sWt)}, {s(sW)}\ns_lshr_b32 {s(sT[6])}, {s(sT[6])}, 1\ns_lshl_b32 {s(sT[6])}, {s(sT[6])}, 2")
    kernarg_ready(o)
    stamp(o, 16)
    for i in range(4):
        o.vm(f"buffer_load_dwordx4 {v(vOff)}, {s(sK,4)}, {s(sT[2] if i == 0 else sT[4])} offen lds", "k")
        if i == 0: epoch_load(o); o.i(f"s_load_dword {s(sD)}, {s(sDp,2)}, {s(sT[6])}")
        if i < 3: o.i(f"s_add_u32 m0, {s(sM0)}, {1088*(i+2)}\ns_add_u32 {s(sT[4])}, {s(sT[2])}, {10240*(i+1)}")
    o.i(f"s_mov_b32 m0, {s(sM0)}")
    o.vm(f"buffer_load_dwordx4 {v(shr,4)}, {v(vt0)}, {s(sSH,4)}, {s(sT[3])} offen", "k")
    o.vm(f"buffer_load_dwordx4 {v(vOffH)}, {s(sK,4)}, {s(sT[5])} offen lds", "k")
    o.i(f"s_add_u32 m0, {s(sM0)}, {1088*5}")
    o.vm(f"buffer_load_dwordx4 {v(shr+4,4)}, {v(vt0)}, {s(sSH,4)}, {s(sT[3])} offen offset:16", "k")
    for i in range(4):
        o.vm(f"buffer_load_dwordx4 {v(vOff)}, {s(sV,4)}, {s(sT[2] if i == 0 else sT[4])} offen lds", "v")
        if i < 3: o.i(f"s_add_u32 m0, {s(sM0)}, {1088*(i+6)}\ns_add_u32 {s(sT[4])}, {s(sT[2])}, {10240*(i+1)}")
    if not DIAG or 17 in CFG.get("nostamp", (17,)): pass
    else: stamp(o, 17)
    hd = VR.get(16); hm = VR.get(8); vM0, vM1 = VR.get(), VR.get()
    o.i(f"s_mov_b32 {s(sCI)}, {s(sWt)}\ns_lshl2_add_u32 {s(sCH)}, {s(sCI)}, {s(sW)}\ns_lshl_b32 {s(sHKo)}, {s(sCH)}, 12")
    o.i(f"v_cmp_eq_u32 vcc, 0, {v(vL)}\nv_add_u32 {v(vM1)}, 1016, {v(vL16)}\nv_subrev_u32 {v(vM0)}, 8, {v(vL16)}\nv_cndmask_b32 {v(vM0)}, {v(vM0)}, {v(vOOB)}, vcc")
    def hk_loads(when):
        for it in range(4):
            if CFG["hk"][it] != when: continue
            o.vm(f"buffer_load_dwordx4 {v(hd+4*it,4)}, {v(vL16)}, {s(sHK,4)}, {s(sHKo)} offen offset:{1024*it}", ("hk", it))
            o.vm(f"buffer_load_dwordx2 {v(hm+2*it,2)}, {v(vM0 if it == 0 else vM1)}, {s(sHK,4)}, {s(sHKo)} offen offset:{1024*(it-1) if it else 0}", ("hk", it))
    hk_loads(0)
    ws.setup(o, vt0, vt1, vt2, sT[2], sT[3])
    if CFG["b1"] == 0: o.add(flat(ws.dma(0, L_WR)))
    ws.setup2(o, vt0, vt1, vt2, sT[2], L_WR)
    vSR, vSt = VR.get(), VR.get()
    o.i(f"s_lshl4_add_u32 {s(sF1)}, {s(sT[1])}, {s(sT[7])}\ns_lshl_b32 {s(sF1)}, {s(sF1)}, {LF}")
    o.i(f"v_lshrrev_b32 {v(vt1)}, 2, {v(vL)}\nv_and_b32 {v(vt0)}, 3, {v(vL)}\nv_mul_u32_u24 {v(vSR)}, 1088, {v(vt0)}\nv_lshl_add_u32 {v(vSR)}, {v(vt1)}, 3, {v(vSR)}\nv_add_u32 {v(vSR)}, {s(sM0)}, {v(vSR)}")
    o.i(f"v_mul_u32_u24 {v(vSt)}, {4*UROW}, {v(vt1)}\nv_lshl_add_u32 {v(vSt)}, {v(vt0)}, 4, {v(vSt)}")
    o.i(f"s_mul_i32 {s(sU)}, {s(sT[1])}, {64*UROW}\ns_lshl_b32 {s(sT[3])}, {s(sT[0])}, 6\ns_add_u32 {s(sU)}, {s(sU)}, {s(sT[3])}")
    o.i(f"v_bfe_u32 {v(vt0)}, {v(vJ)}, 1, 2\nv_xor_b32 {v(vt0)}, {s(sW)}, {v(vt0)}\nv_lshlrev_b32 {v(vt0)}, 4, {v(vt0)}\nv_lshl_add_u32 {v(vXo)}, {v(vJ)}, 7, {v(vt0)}\nv_lshrrev_b32 {v(vt0)}, 1, {v(vG)}\nv_lshl_add_u32 {v(vXo)}, {v(vt0)}, 6, {v(vXo)}")
    o.i(f"v_and_b32 {v(vt0)}, 1, {v(vG)}\nv_lshl_add_u32 {v(vXo)}, {v(vt0)}, 3, {v(vXo)}\nv_add_u32 {v(vXo)}, {L_XT}, {v(vXo)}\nv_add_u32 {v(vSo)}, {L_ST}, {v(vL16)}")
    o.i(f"s_mul_i32 {s(sT[2])}, {s(sW)}, {HC_CH}\ns_add_u32 {s(sT[2])}, {s(sT[2])}, {L_HC + 56}")
    o.i(f"v_and_b32 {v(vt0)}, 3, {v(vJ)}\nv_sub_u32 {v(vt0)}, 3, {v(vt0)}\nv_mul_u32_u24 {v(vAa)}, {HC_COPY}, {v(vt0)}\nv_lshrrev_b32 {v(vt0)}, 2, {v(vJ)}")
    o.i(f"v_lshl_add_u32 {v(vAa)}, {v(vt0)}, 3, {v(vAa)}\nv_lshlrev_b32 {v(vt0)}, 4, {v(vG)}\nv_sub_u32 {v(vAa)}, {v(vAa)}, {v(vt0)}\nv_add_u32 {v(vAa)}, {s(sT[2])}, {v(vAa)}")
    o.i(f"s_mul_i32 {s(sT[3])}, {s(sW)}, {U_ROW}\nv_lshl_add_u32 {v(vBa)}, {v(vJ)}, 1, {v(vG)}\nv_lshl_add_u32 {v(vBa)}, {v(vBa)}, 4, {s(sT[3])}")
    o.i(f"v_lshrrev_b32 {v(vt0)}, 1, {v(vG)}\nv_lshl_add_u32 {v(vUe)}, {v(vJ)}, 1, {v(vt0)}\nv_lshlrev_b32 {v(vUe)}, 4, {v(vUe)}\nv_and_b32 {v(vt1)}, 1, {v(vG)}\nv_lshlrev_b32 {v(vt1)}, 3, {v(vt1)}\nv_sub_u32 {v(vUe)}, {v(vUe)}, {v(vt1)}")
    o.i(f"s_add_u32 {s(sT[6])}, {s(sT[3])}, {L_U + 488}\nv_add_u32 {v(vUe)}, {s(sT[6])}, {v(vUe)}")
    o.i(f"s_bfe_u32 {s(sT[6])}, {s(sCH)}, 0x10001\ns_bfe_u32 {s(sT[7])}, {s(sCH)}, 0x10003\ns_lshl1_add_u32 {s(sT[6])}, {s(sT[7])}, {s(sT[6])}")
    o.i(f"v_and_b32 {v(vt0)}, 2, {v(vG)}\nv_bfe_u32 {v(vt1)}, {v(vJ)}, 1, 1\nv_or_b32 {v(vt0)}, {v(vt0)}, {v(vt1)}\nv_xor_b32 {v(vt0)}, {s(sT[6])}, {v(vt0)}\nv_lshlrev_b32 {v(vt0)}, 5, {v(vt0)}")
    o.i(f"v_and_b32 {v(vt1)}, 1, {v(vJ)}\nv_lshl_add_u32 {v(vt0)}, {v(vt1)}, 4, {v(vt0)}\nv_and_b32 {v(vt1)}, 1, {v(vG)}\nv_lshlrev_b32 {v(vt1)}, 2, {v(vt1)}\nv_lshrrev_b32 {v(vHo)}, 2, {v(vJ)}\nv_add_u32 {v(vHo)}, {v(vHo)}, {v(vt1)}")
    o.i(f"s_mov_b32 {s(sT[7])}, 81920\nv_mad_u32_u24 {v(vHo)}, {v(vHo)}, {s(sT[7])}, {v(vt0)}\ns_lshl_b32 {s(sHT)}, {s(sCH)}, 7\ns_add_u32 {s(sHT)}, {s(sHT)}, {HT_WS}")
    zq = VR.get(4); vHW = VR.get(); vZ = VR.get()
    for k in range(4): o.i(f"v_mov_b32 {v(zq+k)}, 0")
    o.i(f"v_add_u32 {v(vt0)}, {s(sT[3])}, {v(vL16)}\nv_subrev_u32 {v(vt1)}, 30, {v(vL)}\nv_lshrrev_b32 {v(vHW)}, 1, {v(vt1)}\nv_mul_u32_u24 {v(vHW)}, {HC_COPY}, {v(vHW)}\nv_and_b32 {v(vt1)}, 1, {v(vt1)}\nv_lshl_add_u32 {v(vHW)}, {v(vt1)}, 4, {v(vHW)}")
    o.i(f"v_cmp_gt_u32 vcc, 30, {v(vL)}\ns_sub_u32 {s(sT[2])}, {s(sT[2])}, 56\nv_add_u32 {v(vHW)}, {s(sT[2])}, {v(vHW)}\nv_cndmask_b32 {v(vZ)}, {v(vHW)}, {v(vt0)}, vcc")
    o.i(f"v_add_u32 {v(vHW)}, {s(sT[2])}, {v(vL16)}")
    o.i(f"s_lshl_b32 {s(sF2)}, {s(sCI)}, {LF2}\ns_add_u32 {s(sT[6])}, {s(sF2)}, {F2B*FSP}\ns_add_u32 {s(sF2)}, {s(sF2)}, {F2A*FSP}\nv_add_u32 {v(vEv)}, {s(sT[6])}, {v(vFO)}")
    o.i(f"s_add_u32 {s(sT[6])}, {s(sXc)}, {FH}\ns_lshl_b32 {s(sT[6])}, {s(sT[6])}, {LF}\ns_cmp_eq_u32 {s(sY)}, 0\ns_cselect_b32 {s(sT[6])}, {s(sT[6])}, 0x80000000\nv_or_b32 {v(vHint)}, {s(sT[6])}, {v(vFO)}")
    o.i(f"s_and_b32 {s(sT[6])}, {s(sCI)}, 0xf0\nv_add_lshl_u32 {v(vPA)}, {v(vJ)}, {s(sT[6])}, {LF}")
    gs = S(); gemm_setup(gs, vt0, vt1, vt2)
    ng = int(len(gs) * CFG.get("gs_early", 0.3))
    while any(x in gs[ng - 1].text for x in ("s_cmp", "s_and_b32", "v_cmp", "s_cselect")) or "vcc" in "".join(x.text for x in gs[ng:ng + 6]): ng += 1
    sv = {}
    o.add(gs[:ng])
    stamp(o, 18)
    kf = VR.get(48); uf = VR.get(32); up = kr
    o.wvm("k")
    stamp(o, 1)
    for r in range(11): o.lg(f"ds_read_b64 {v(kr+2*r,2)}, {v(vSR)} offset:{(5+r)*128 if r < 3 else 1088 + (r-3)*128}")
    hk_loads(1)
    for p in range(2):
        for m in range(4):
            for h in range(2):
                src = shr + 2 * (2 * p + h) + (m >> 1); d = wt + (p * 4 + m) * 2 + h
                o.i(f"v_lshlrev_b32 {v(d)}, 16, {v(src)}" if m % 2 == 0 else f"v_and_b32 {v(d)}, {s(sMask)}, {v(src)}")
    o.wlg0()
    mk = len(o)
    for r in range(11):
        for p in range(2):
            o.i(f"v_lshlrev_b32 {v(kf+4*r+2*p)}, 16, {v(kr+2*r+p)}\nv_and_b32 {v(kf+4*r+2*p+1)}, {s(sMask)}, {v(kr+2*r+p)}")
    for m in range(4):
        for t in range(8):
            if m == 3 and t == 2:
                if CFG["b1"] == 1: o[mk:] = flat(spread(singles(S(o[mk:])), ws.dma(0, L_WR)))
                o.wvm("v")
                for r in range(8): o.lg(f"ds_read_b64 {v(vr_+2*r,2)}, {v(vSR)} offset:{5*1088 + r*128}", ("vr", r // 4))
            for p in range(2):
                d = v(uf + 4 * t + 2 * p, 2); kk = v(kf + 4 * (t + 3 - m) + 2 * p, 2); w_ = v(wt + (p * 4 + m) * 2, 2)
                o.i(f"v_pk_mul_f32 {d}, {kk}, {w_}" if m == 0 else f"v_pk_fma_f32 {d}, {kk}, {w_}, {d}")
    for p in range(2):
        for t in range(8):
            if t % 4 == 0: o.wlg(("vr", t // 4))
            o.i(f"v_lshlrev_b32 {v(kf+4*t+2*p)}, 16, {v(vr_+2*t+p)}\nv_and_b32 {v(kf+4*t+2*p+1)}, {s(sMask)}, {v(vr_+2*t+p)}")
        for t in range(8): o.i(f"v_pk_mul_f32 {v(uf+4*t+2*p,2)}, {v(uf+4*t+2*p,2)}, {v(kf+4*t+2*p,2)}")
        for c in (2 * p, 2 * p + 1):
            for q in range(4): o.i(f"v_cvt_pk_bf16_f32 {v(up+4*c+q)}, {v(uf+4*(7-2*q)+c)}, {v(uf+4*(6-2*q)+c)}")
            o.i(f"s_add_u32 {s(sXS)}, {s(sU)}, {U_WS + UROW*c}")
            o.vm(f"buffer_store_dwordx4 {v(up+4*c,4)}, {v(vSt)}, {s(sWS,4)}, {s(sXS)} offen sc1", "ust")
    stamp(o, 2)
    hk_loads(2)
    o.i(f"s_mov_b32 exec_hi, 0x3f"); o.lg(f"ds_write_b128 {v(vZ)}, {v(zq,4)}"); o.i("s_mov_b32 exec_hi, -1")
    nonce(o)
    if CFG["b1"] == 2:
        gg = []
        for g in singles(S(gs[ng:])):
            if gg and g[0].text.startswith("s_cselect"): gg[-1].add(g)
            else: gg.append(g)
        o.add(flat(spread(gg, ws.dma(0, L_WR))))
    else: o.add(gs[ng:])
    def copies(it):
        d = [hm + 2 * it, hm + 2 * it + 1] + [hd + 4 * it + k for k in range(4)]
        c1 = kf + 12 * it; c2 = c1 + 4; c3 = c1 + 8
        o.wvm(("hk", it))
        for k in range(4): o.i(f"v_alignbit_b32 {v(c1+k)}, {v(d[k+2])}, {v(d[k+1])}, 16")
        for k in range(4): o.i(f"v_mov_b32 {v(c2+k)}, {v(d[k+1])}")
        for k in range(4): o.i(f"v_alignbit_b32 {v(c3+k)}, {v(d[k+1])}, {v(d[k])}, 16")
        for c, r in enumerate((hd + 4 * it, c1, c2, c3)):
            o.lg(f"ds_write_b128 {v(vHW)}, {v(r,4)} offset:{c*HC_COPY + 32 + 1024*it}")
    early = [it for it in range(4) if CFG["hk"][it] < 2]; nc0 = CFG.get("copies0", 1)
    if CFG["b1"] < 2: o.wvm(("wb", 0)); o.i("s_barrier"); o.add(flat(ws.reads(0)))
    for it in early[:nc0]: copies(it)
    o.wvm("ust")
    if CFG["b1"] < 2: o.wlg(("wr", 0))
    o.i("s_barrier")
    flag_store(o, s(sF1))
    stamp(o, 3)
    hk_loads(3)
    if CFG["b1"] == 2: o.wvm(("wb", 0)); o.i("s_barrier"); o.add(flat(ws.reads(0))); o.wlg(("wr", 0)); o.i("s_barrier")
    o.i(f"s_bitcmp1_b32 {s(sCH)}, 0\ns_cselect_b32 {s(sT[6])}, 0, 16\ns_lshl_b32 {s(sD)}, {s(sD)}, {s(sT[6])}\ns_and_b32 {s(sD)}, {s(sD)}, {s(sMask)}\ns_mov_b32 {s(sD+1)}, {s(sD)}")
    rest = [it for it in range(4) if it not in early[:nc0]]; nc1 = CFG.get("copies1", 3)
    mk = len(o)
    for it in rest[:nc1]: copies(it)
    o[mk:] = flat(spread(singles(S(o[mk:])), ws.dma(1, L_WR)))
    f1 = Poll(vPoll, vPA, "0"); o.add(f1.issue())
    o.i(f"s_mul_i32 {s(sT[3])}, {s(sW)}, {U_ROW}\ns_add_u32 m0, {s(sT[3])}, {L_U + 480}")
    o.i(f"s_mul_i32 {s(sT[6])}, {s(sCH)}, {UROW}\ns_add_u32 {s(sT[6])}, {s(sT[6])}, {U_WS}\ns_lshl_b32 {s(sXS)}, {s(sW)}, 11\ns_mul_i32 {s(sU)}, {s(sCI)}, {XROW}\ns_add_u32 {s(sU)}, {s(sU)}, {s(sXS)}")
    o.add(f1.check())
    stamp(o, 4)
    for q in range(4): o.vm(f"buffer_load_dwordx4 {v(vL16)}, {s(sWS,4)}, {s(sT[6])} offen offset:{1024*q} sc1 lds", ("udma", q // 2))
    o.i(f"s_lshl_b32 {s(sT[5])}, {s(sW)}, 4\nv_add_lshl_u32 {v(vPA)}, {v(vJ)}, {s(sT[5])}, {LFX}\ns_mov_b32 {s(sT[5])}, {FX*FSP}\ns_mov_b32 {s(sT[7])}, {FX*FSP + (64 << LFX)}")
    fx = [Poll(vPoll, vPA, s(sT[5]), CFG["napw"]), Poll(vPoll, vPA, s(sT[7]), CFG["napw"])]
    if CFG["px"][0] < 0: o.add(fx[0].issue())
    o.wvm(("wb", 1)); o.i("s_barrier"); o.add(flat(ws.reads(1)))
    for it in rest[nc1:]: copies(it)
    o.wlg0(); o.i("s_barrier")
    b3 = ws.dma(2, L_WR); n3 = CFG.get("b3_first", 13)
    o.add(flat(b3[:n3]))
    VR.release(m1)
    accA = VR.get(16); accB = VR.get(16); fr = VR.get(128)
    def slot(c): return ("A", c) if c < 8 else ("B", c - 8)
    def fA(c, M): return fr + (c % 2) * 64 + 8 * M
    def fB(c, b): return fr + (c % 2) * 64 + 8 * b + 4
    def eregs(half):
        b = fr + 64 * ((CFG["epiA"] + 1) % 2 if half == 0 else 0); return b, b + 8, b + 40, b + 48
    def reads(c):
        half, m = slot(c); r = []
        if half == "A": order = [("B", 0), ("A", 0), ("B", 1), ("B", 2), ("B", 3), ("A", 1), ("A", 2), ("A", 3)]
        else: order = [("A", 0), ("B", 4), ("B", 5), ("B", 6), ("B", 7), ("A", 1), ("B", 3), ("A", 2), ("B", 2), ("A", 3), ("B", 1), ("A", 4), ("B", 0), ("A", 5), ("A", 6), ("A", 7)]
        for kind, q in order:
            if kind == "B": r.append(S().lg(f"ds_read_b128 {v(fB(c,q),4)}, {v(vBa)} offset:{L_U + 512*q - 64*m + 448}", ("f", c, "B", q)))
            else:
                r.append(S().lg(f"ds_read_b64 {v(fA(c,q),2)}, {v(vAa)} offset:{64*(8*q+m)}", ("f", c, "A", q)))
                r.append(S().lg(f"ds_read_b64 {v(fA(c,q)+2,2)}, {v(vAa)} offset:{64*(8*q+m)+8}", ("f", c, "A", q)))
        return r
    def mfmas(c):
        half, m = slot(c); lo, hi = (0, 4) if half == "A" else (4, 8); acc = accA if half == "A" else accB
        wpts = {0: 0, 1: 3} if half == "A" else {0: 2, 2: 7}
        r = []
        for M in range(hi):
            bs = [jt - M for jt in range(lo, hi) if 0 <= jt - M]
            g0 = S()
            if M in wpts:
                Ms = range(M, wpts[M] + 1)
                g0.wlg([("f", c, "A", x) for x in Ms] + [("f", c, "B", jt - x) for x in Ms for jt in range(lo, hi) if jt - x >= 0])
            for b in bs:
                d = v(acc + 4 * (M + b - lo), 4)
                cc = "0" if (m == 0 and M == 0) else d
                g = g0 if b == bs[0] else S()
                g.i(f"v_mfma_f32_16x16x32_bf16 {d}, {v(fA(c,M),4)}, {v(fB(c,b),4)}, {cc}")
                r.append(g)
        return r
    def xs_dma(half):
        q = S()
        for base, src, off in ((L_XT, sU, XT_WS), (L_ST, sXS, STATS)):
            q.i(f"s_add_u32 m0, {s(sXS)}, {base}\ns_add_u32 {s(sT[4])}, {s(src)}, {off + 8192*half}")
            for k in range(2): q.vm(f"buffer_load_dwordx4 {v(vL16)}, {s(sWS,4)}, {s(sT[4])} offen offset:{1024*k} sc1 lds", ("xs", half))
        return singles(q)
    def epi_reads(half):
        r = []; xe, st, ue, tm = eregs(half)
        for q in range(4): r.append(S().lg(f"ds_read_b64 {v(xe+2*q,2)}, {v(vXo)} offset:{2048*q}", ("xe", half)))
        for q in range(4):
            for h in range(2): r.append(S().lg(f"ds_read_b128 {v(st+8*q+4*h,4)}, {v(vSo)} offset:{2048*q + 1024*h}", ("st", half)))
        for q in range(4): r.append(S().lg(f"ds_read_b64 {v(ue+2*q,2)}, {v(vUe)} offset:{512*(4*half+q)}", ("ue", half)))
        return r
    def epilogue(half):
        e = S(); acc = accA if half == 0 else accB; xe, st, ue, tm = eregs(half)
        e.wlg(("xe", half))
        for q in range(4):
            t = tm + 4 * q
            e.i(f"v_lshlrev_b32 {v(t)}, 16, {v(xe+2*q)}\nv_and_b32 {v(t+1)}, {s(sMask)}, {v(xe+2*q)}\nv_lshlrev_b32 {v(t+2)}, 16, {v(xe+2*q+1)}\nv_and_b32 {v(t+3)}, {s(sMask)}, {v(xe+2*q+1)}")
        e.wlg(("st", half))
        for q in range(4):
            for h in range(2): e.i(f"v_pk_fma_f32 {v(st+8*q+2*h,2)}, {v(tm+4*q+2*h,2)}, {v(st+8*q+2*h,2)}, {v(st+8*q+4+2*h,2)}")
        e.wlg(("ue", half))
        for q in range(4):
            t = st + 8 * q + 4
            e.i(f"v_and_b32 {v(t)}, {s(sMask)}, {v(ue+2*q+1)}\nv_lshlrev_b32 {v(t+1)}, 16, {v(ue+2*q+1)}\nv_and_b32 {v(t+2)}, {s(sMask)}, {v(ue+2*q)}\nv_lshlrev_b32 {v(t+3)}, 16, {v(ue+2*q)}")
        for q in range(4):
            for h in range(2): e.i(f"v_pk_fma_f32 {v(acc+4*q+2*h,2)}, {v(st+8*q+4+2*h,2)}, {s(sD,2)}, {v(acc+4*q+2*h,2)}")
        for q in range(4):
            for h in range(2): e.i(f"v_pk_fma_f32 {v(tm+4*q+2*h,2)}, {v(st+8*q+2*h,2)}, {v(acc+4*q+2*h,2)}, {v(tm+4*q+2*h,2)}")
        for q in range(4):
            for h in range(2): e.i(f"v_cvt_pk_bf16_f32 {v(ue+2*q+h)}, {v(tm+4*q+2*h)}, {v(tm+4*q+2*h+1)}")
        for p in range(2):
            e.i(f"s_add_u32 {s(sT[3])}, {s(sHT)}, {(16*half + 8*p)*81920}")
            for h in range(2): e.i(f"v_permlane16_swap_b32 {v(ue+4*p+h)}, {v(ue+4*p+2+h)}")
            e.vm(f"buffer_store_dwordx4 {v(ue+4*p,4)}, {v(vHo)}, {s(sWS,4)}, {s(sT[3])} offen sc1", ("hst", half))
        return e
    o.wvm(("udma", 0))
    stamp(o, 5)
    o.add(flat(reads(0)))
    f2a = Poll(vPoll, vP2, "0", CFG["nap2"])
    def part(gs, rng, c):
        lo, hi = rng
        if not lo <= c <= hi: return []
        def cutp(k):
            x = k * len(gs) // (hi - lo + 1)
            while 0 < x < len(gs) and gs[x - 1][-1].kind not in ("vm", "lg"): x += 1
            return x
        return gs[cutp(c - lo):cutp(c - lo + 1)]
    assert b3[n3 - 1][-1].kind == "vm" and CFG["cx"][1] >= CFG["f2a"] and CFG["r3"][0] >= CFG["epiA"] and CFG["r3"][1] < CFG["f2a"] <= CFG["i4"][0]
    for c in range(16):
        st = []; mm = mfmas(c); n = len(mm); pre = S(); dm = []
        if c == CFG["epiA"]:
            stamp(o, 6)
            o.wvm([("xs", 0), ("wb", 2)]); o.i("s_barrier")
            o.add(flat(epi_reads(0))); o.add(epilogue(0))
            stamp(o, 19)
        if c == 7: pre.wvm(("udma", 1))
        if c == CFG["f2a"]: pre.wvm(("hst", 0)); pre.wlg(("wr", 2)); pre.i("s_barrier"); flag_store(pre, s(sF2))
        for h in range(2):
            if c == CFG["cx"][h]: pre.add(fx[h].check()); dm += xs_dma(h)
        if c == CFG["g4"]: pre.wvm(("wb", 3)); pre.i("s_barrier")
        if c == 15: pre.wvm(("xs", 1)); pre.wlg(("wr", 3)); pre.i("s_barrier")
        for h in range(2):
            if c == CFG["px"][h]: st.append(([fx[h].issue()], 0, 2))
        if c == 15: st.append(([f2a.issue()], CFG.get("p2a_at", 2), n - 1))
        if c == CFG["hint"]: st.append(([flag_store(S(), "0", vHint)], 0, n - 1))
        dm += part(b3[n3:], CFG.get("i3", (0, 4)), c) + part(ws.dma(3, L_WR), CFG["i4"], c)
        if dm: st.append((dm, 0, n - 1))
        rd = part(ws.reads(2), CFG["r3"], c) + part(ws.reads(3), CFG["r4"], c)
        if rd: st.append((rd, 0, n - 1))
        mm[0] = group(mm[0], pre)
        o.add(flat(sched(attach(mm, reads(c + 1) if c < 15 else epi_reads(1)), st)))
    stamp(o, 7)
    o.add(f2a.check())
    o.add(flat(spread(singles(epilogue(1)), h_dma(0, 0) + warm("h", vPfH, "0") + h_dma(1, 0), 0.0, CFG.get("h01_hi", 1.0))))
    VR.release(m0)
    return o

def role_prep():
    o = S(); m0 = VR.mark()
    o.label("L_prep")
    vt0, vt1, vt2, vr, vc = [VR.get() for _ in range(5)]
    fr = VR.get(60); xo = VR.get(5, 1); do = VR.get(5, 1); vXr, vXs, vXw, vXt = [VR.get() for _ in range(4)]
    xs = VR.get(20); acc = VR.get(4); onesr = VR.get()
    sP12, sUn = sRF, sRF + 1
    sDo, sDi, sDm, sWw = [SP.get() for _ in range(4)]
    vDr, vCw, vWw = VR.get(), VR.get(), VR.get(); df = VR.get(20); cs = VR.get(12)
    ws = WStage(); RA = 0; RB_ = 5 * WCELL; PX = 10 * WCELL; L_PD = 143360
    o.i(f"s_sub_u32 {s(sP12)}, {s(sY)}, 20")
    common_setup(o)
    o.i(f"s_cmp_ge_u32 {s(sY)}, 28\ns_cbranch_scc1 L_dprep")
    head = o
    def divmod_c(q, add, magic, c):
        q.i(f"v_add_u32 {v(vt0)}, {add}, {v(vL)}\nv_mul_u32_u24 {v(vt1)}, {magic}, {v(vt0)}\nv_lshrrev_b32 {v(vt1)}, 16, {v(vt1)}\nv_mul_u32_u24 {v(vt2)}, {c}, {v(vt1)}\nv_sub_u32 {v(vt0)}, {v(vt0)}, {v(vt2)}")
    def touch(q):
        q.i(f"s_mul_i32 {s(sT[0])}, {s(sXc)}, 12\ns_add_u32 {s(sT[0])}, {s(sT[0])}, {s(sP12)}\ns_lshl2_add_u32 {s(sT[0])}, {s(sT[0])}, {s(sW)}\ns_lshl_b32 {s(sT[0])}, {s(sT[0])}, 10")
        q.i(f"v_cmp_gt_u32 vcc, 16, {v(vL)}\nv_lshlrev_b32 {v(vt0)}, 6, {v(vL)}\nv_mov_b32 {v(vt1)}, 0\nv_cndmask_b32 {v(vt0)}, {v(vOOB)}, {v(vt0)}, vcc")
        q.vm(f"buffer_atomic_add {v(vt1)}, {v(vt0)}, {s(sWS,4)}, {s(sT[0])} offen sc1")
    def lanes(q): q.i(f"v_bfe_u32 {v(vr)}, {v(vL)}, 2, 2\nv_and_b32 {v(vc)}, 3, {v(vL)}")
    def x_addr(q):
        srd(q, (sX, 2621440))
        q.i(f"s_lshr_b32 {s(sT[0])}, {s(sW)}, 1\ns_lshl_b32 {s(sT[0])}, {s(sT[0])}, 2\ns_movk_i32 {s(sT[1])}, 1280")
        for i in range(5):
            divmod_c(q, 64 * i, 820, 80)
            q.i(f"v_or_b32 {v(vt2)}, {s(sT[0])}, {v(vt1)}\nv_lshlrev_b32 {v(vt2)}, 1, {v(vt2)}\nv_xor_b32 {v(vt0)}, {v(vt0)}, {v(vt2)}\nv_lshlrev_b32 {v(vt0)}, 4, {v(vt0)}\nv_mad_u32_u24 {v(xo+i)}, {v(vt1)}, {s(sT[1])}, {v(vt0)}")
    def x_dma(q, k, px):
        q.i(f"s_lshl2_add_u32 {s(sT[0])}, {s(sUn)}, {s(sW)}\ns_mul_i32 {s(sT[0])}, {s(sT[0])}, 5120\ns_mul_i32 {s(sT[1])}, {s(sW)}, 5120")
        if k: q.i(f"s_add_u32 {s(sT[0])}, {s(sT[0])}, {20480*64*k}")
        for i in range(5):
            q.i(f"s_add_u32 m0, {s(sT[1])}, {px[k] + i*1024}\ns_nop 0")
            q.vm(f"buffer_load_dwordx4 {v(xo+i)}, {s(sX,4)}, {s(sT[0])} offen lds", ("xd", k))
    def x_setup(q, px):
        q.i(f"v_and_b32 {v(vt0)}, 1, {v(vG)}\nv_lshl_add_u32 {v(vt1)}, {v(vt0)}, 3, {v(vr)}\nv_mul_u32_u24 {v(vXr)}, 1280, {v(vt1)}\nv_lshl_or_b32 {v(vt1)}, {v(vt0)}, 2, {v(vr)}")
        q.i(f"v_lshrrev_b32 {v(vt2)}, 1, {v(vG)}\ns_lshl_b32 {s(sT[0])}, {s(sW)}, 1\nv_or_b32 {v(vXw)}, {s(sT[0])}, {v(vt2)}\nv_xor_b32 {v(vt1)}, {v(vt1)}, {v(vXw)}\nv_lshl_add_u32 {v(vXr)}, {v(vt1)}, 5, {v(vXr)}\nv_lshl_add_u32 {v(vXr)}, {v(vc)}, 3, {v(vXr)}\nv_add_u32 {v(vXr)}, {px}, {v(vXr)}")
        q.i(f"v_lshrrev_b32 {v(vt1)}, 2, {v(vJ)}\nv_lshl_add_u32 {v(vt1)}, {v(vt2)}, 2, {v(vt1)}\nv_mul_u32_u24 {v(vXw)}, {XROW}, {v(vt1)}\nv_lshl_add_u32 {v(vXw)}, {v(vt0)}, 6, {v(vXw)}\nv_lshl_add_u32 {v(vXw)}, {v(vc)}, 4, {v(vXw)}")
        q.i(f"s_mul_i32 {s(sT[0])}, {s(sW)}, 5120\ns_add_u32 {s(sT[0])}, {s(sT[0])}, {px}\nv_mul_u32_u24 {v(vXs)}, 1280, {v(vG)}\nv_lshl_add_u32 {v(vXs)}, {v(vJ)}, 4, {v(vXs)}\nv_add_u32 {v(vXs)}, {s(sT[0])}, {v(vXs)}")
        q.i(f"v_cmp_gt_u32 vcc, 2, {v(vJ)}\nv_lshlrev_b32 {v(vt0)}, 10, {v(vJ)}\nv_lshl_add_u32 {v(vt0)}, {v(vG)}, 2, {v(vt0)}\nv_cndmask_b32 {v(vXt)}, {v(vOOB)}, {v(vt0)}, vcc\nv_mov_b32 {v(onesr)}, 0x3f803f80")
    def x_unit(q, k):
        kk = k
        q.wvm(("xd", k)); q.i("s_barrier")
        for f in range(5):
            for rd in range(2): q.lg(f"ds_read_b64_tr_b16 {v(fr+20*kk+4*f+2*rd,2)}, {v(vXr)} offset:{20480*kk + 5120*rd + 256*f}", ("xt", k, f))
        for i in range(5): q.lg(f"ds_read_b128 {v(xs+4*i,4)}, {v(vXs)} offset:{20480*kk + 256*i}", ("xr", k))
        q.i(f"s_add_u32 {s(sT[2])}, {s(sUn)}, {64*k}\ns_mul_i32 {s(sT[0])}, {s(sW)}, {8*XROW}\ns_lshl_b32 {s(sT[1])}, {s(sT[2])}, 7\ns_add_u32 {s(sT[0])}, {s(sT[0])}, {s(sT[1])}")
        q.i(f"s_bfe_u32 {s(sT[1])}, {s(sT[2])}, 0x20001\ns_lshl_b32 {s(sT[1])}, {s(sT[1])}, 4\nv_xor_b32 {v(vt2)}, {s(sT[1])}, {v(vXw)}")
        for f in range(5):
            q.i(f"s_add_u32 {s(sT[1])}, {s(sT[0])}, {XT_WS + f*32*XROW}")
            q.wlg(("xt", k, f))
            q.vm(f"buffer_store_dwordx4 {v(fr+20*kk+4*f,4)}, {v(vt2)}, {s(sWS,4)}, {s(sT[1])} offen sc1", ("xst", k))
        for j in range(4): q.i(f"v_mov_b32 {v(acc+j)}, 0")
        q.wlg(("xr", k))
        for j in range(20):
            q.i(f"v_dot2c_f32_bf16 {v(acc+(j&1))}, {v(xs+j)}, {v(onesr)}\nv_dot2c_f32_bf16 {v(acc+2+(j&1))}, {v(xs+j)}, {v(xs+j)}")
        q.i(f"s_lshr_b32 {s(sT[0])}, {s(sT[2])}, 4\ns_lshl_b32 {s(sT[0])}, {s(sT[0])}, 11\ns_and_b32 {s(sT[2])}, {s(sT[2])}, 15\ns_lshl4_add_u32 {s(sT[2])}, {s(sW)}, {s(sT[2])}\ns_lshl4_add_u32 {s(sT[0])}, {s(sT[2])}, {s(sT[0])}\ns_add_u32 {s(sT[0])}, {s(sT[0])}, {STATS}")
        q.i(f"v_add_f32 {v(acc)}, {v(acc)}, {v(acc+1)}\nv_add_f32 {v(acc+2)}, {v(acc+2)}, {v(acc+3)}")
        for sh in (8, 4, 2, 1):
            for j in (0, 2): q.i(f"v_add_f32_dpp {v(acc+j)}, {v(acc+j)}, {v(acc+j)} row_ror:{sh} row_mask:0xf bank_mask:0xf")
        ln_finalize(q, acc, acc + 2, acc + 1, acc + 3, vt0)
        q.i(f"v_rcp_f32 {v(acc+3)}, {v(acc+3)}\nv_cmp_eq_u32 vcc, 0, {v(vJ)}\nv_mul_f32_e64 {v(acc+1)}, -{v(acc+1)}, {v(acc+3)}\nv_cndmask_b32 {v(vt1)}, {v(acc+1)}, {v(acc+3)}, vcc")
        q.vm(f"buffer_store_dword {v(vt1)}, {v(vXt)}, {s(sWS,4)}, {s(sT[0])} offen sc1", ("xst", k))
    def x_flag(q, n, half):
        q.i(f"s_lshl_b32 {s(sT[0])}, {s(sUn)}, {LFX}\ns_add_u32 {s(sT[0])}, {s(sT[0])}, {FX*FSP + ((64*half) << LFX)}")
        q.i(f"v_cmp_gt_u32 vcc, {n}, v0\nv_lshlrev_b32 {v(vt0)}, {LFX}, v0\nv_cndmask_b32 {v(vt0)}, {v(vOOB)}, {v(vt0)}, vcc")
        q.wvm(("xst", half)); q.i("s_barrier"); flag_store(q, s(sT[0]), vt0)
    def d_setup(o):
        srd(o, (sWD, 1966080))
        o.i(f"s_movk_i32 {s(sT[2])}, 1280")
        for i in range(5):
            divmod_c(o, 64 * i, 6554, 10)
            o.i(f"v_lshlrev_b32 {v(vt0)}, 4, {v(vt0)}\nv_and_b32 {v(vt2)}, 4, {v(vt1)}\nv_lshlrev_b32 {v(vt2)}, 1, {v(vt2)}\nv_and_b32 {v(do+i)}, 8, {v(vt1)}\nv_lshrrev_b32 {v(do+i)}, 1, {v(do+i)}\nv_and_b32 {v(vt1)}, 19, {v(vt1)}\nv_or3_b32 {v(vt1)}, {v(vt1)}, {v(vt2)}, {v(do+i)}")
            o.i(f"v_mad_u32_u24 {v(do+i)}, {v(vt1)}, {s(sT[2])}, {v(vt0)}")
        o.i(f"s_lshl2_add_u32 {s(sT[3])}, {s(sP12)}, {s(sW)}\ns_lshr_b32 {s(sT[0])}, {s(sT[3])}, 3\ns_and_b32 {s(sT[3])}, {s(sT[3])}, 7\ns_mul_i32 {s(sT[1])}, {s(sXc)}, 6\ns_add_u32 {s(sT[0])}, {s(sT[0])}, {s(sT[1])}")
        o.i(f"s_mul_i32 {s(sT[1])}, {s(sT[3])}, 160\ns_mul_i32 {s(sT[3])}, {s(sT[3])}, 48\ns_add_u32 {s(sT[3])}, {s(sT[3])}, {s(sT[0])}\ns_mul_i32 {s(sT[0])}, {s(sT[0])}, {32*1280}\ns_add_u32 {s(sDi)}, {s(sT[0])}, {s(sT[1])}")
        o.i(f"s_mul_i32 {s(sDm)}, {s(sW)}, 5120\ns_add_u32 {s(sDm)}, {s(sDm)}, {L_PD}\ns_mul_i32 {s(sDo)}, {s(sT[3])}, 5120\ns_add_u32 {s(sDo)}, {s(sDo)}, {WDF_WS}")
        o.i(f"v_and_b32 {v(vt0)}, 1, {v(vG)}\nv_lshl_add_u32 {v(vt0)}, {v(vt0)}, 2, {v(vr)}\nv_lshrrev_b32 {v(vt1)}, 1, {v(vG)}\nv_lshl_add_u32 {v(vt0)}, {v(vt1)}, 4, {v(vt0)}\nv_mul_u32_u24 {v(vt0)}, 160, {v(vt0)}\nv_lshl_add_u32 {v(vt0)}, {v(vc)}, 3, {v(vt0)}\nv_add_u32 {v(vDr)}, {s(sDm)}, {v(vt0)}")
        o.i(f"s_mul_i32 {s(sT[2])}, {s(sXc)}, 12\ns_add_u32 {s(sT[2])}, {s(sT[2])}, {s(sP12)}\ns_add_u32 {s(sT[2])}, {s(sT[2])}, {FD}\ns_lshl_b32 {s(sT[2])}, {s(sT[2])}, {LF}\nv_add_u32 {v(vEv)}, {s(sT[2])}, {v(vFO)}")
    def d_dma(o):
        for k in range(5):
            o.i(f"s_add_u32 m0, {s(sDm)}, {k*1024}\ns_nop 0")
            o.vm(f"buffer_load_dwordx4 {v(do+k)}, {s(sWD,4)}, {s(sDi)} offen lds", "dd")
    def d_unit(o):
        o.wvm("dd")
        for dl in range(5):
            for rd in range(2): o.lg(f"ds_read_b64_tr_b16 {v(df+4*dl+2*rd,2)}, {v(vDr)} offset:{rd*1280 + dl*32}", ("dt", dl))
        for dl in range(5):
            if dl == 4: o.i(f"s_add_u32 {s(sDo)}, {s(sDo)}, 4096")
            o.wlg(("dt", dl)); o.vm(f"buffer_store_dwordx4 {v(df+4*dl,4)}, {v(vL16)}, {s(sWS,4)}, {s(sDo)} offen offset:{1024*(dl%4)} sc1")
    def w_warm_setup(o, first):
        divmod_c(o, 0, 10923, 6)
        o.i(f"v_min_u32 {v(vt1)}, 9, {v(vt1)}\nv_mul_u32_u24 {v(vt1)}, 3072, {v(vt1)}\nv_lshl_add_u32 {v(vWw)}, {v(vt0)}, 7, {v(vt1)}")
        o.i(f"s_and_b32 {s(sT[1])}, {s(sCB)}, 3\ns_mul_i32 {s(sT[1])}, {s(sT[1])}, 192\ns_mul_i32 {s(sWw)}, {first}, {10*3072}\ns_sub_u32 {s(sWw)}, {s(sWw)}, {s(sT[1])}")
    def w_warm(o, q, add=0):
        if "W" not in CFG.get("warmw", "W"): return
        o.i(f"s_add_u32 {s(sT[0])}, {s(sWq[q])}, {s(sWw)}")
        if add: o.i(f"s_add_u32 {s(sT[0])}, {s(sT[0])}, {add*10*3072}")
        o.vm(f"buffer_load_dword {v(vPollB)}, {v(vWw)}, {s(sWG,4)}, {s(sT[0])} offen")
    def own_stage(o, mid=None):
        for q in range(4):
            o.wvm(("wb", q)); o.i("s_barrier"); o.add(flat(ws.reads(q)))
            d = (RB_ - RA) if q % 2 == 0 else (RA - RB_) & 0xffffffff
            if q < 3: o.i(f"v_add_u32 {v(ws.va0)}, {d}, {v(ws.va0)}\nv_add_u32 {v(ws.va2)}, {d}, {v(ws.va2)}")
            o.wlg(("wr", q))
            if q < 2: o.i("s_barrier"); o.add(flat(ws.dma(q + 2, RA if q == 0 else RB_)))
            if mid and q in mid: mid[q](o)
    o = S(); px = (PX - 20480, PX)
    o.i(f"s_lshl3_add_u32 {s(sUn)}, {s(sXc)}, {s(sP12)}")
    x_addr(o)
    kernarg_ready(o); epoch_load(o)
    late_x = CFG.get("late_x", 0)
    if not late_x: x_dma(o, 0, px)
    touch(o); lanes(o); x_setup(o, px[0])
    ws.setup(o, vt0, vt1, vt2, sT[2], sT[3]); ws.setup2(o, vt0, vt1, vt2, sT[2], RA)
    o.i(f"s_lshr_b32 {s(sT[4])}, {s(sW)}, 1\ns_lshl1_add_u32 {s(sT[4])}, {s(sP12)}, {s(sT[4])}"); w_warm_setup(o, s(sT[4]))
    o.wlg0(); nonce(o)
    if late_x: x_dma(o, 0, px)
    stamp(o, 18)
    x_unit(o, 0)
    stamp(o, 1)
    w_warm(o, 2)
    gemm_setup(o, vt0, vt1, vt2)
    x_flag(o, 1, 0)
    stamp(o, 17)
    x_dma(o, 1, px); w_warm(o, 3)
    o.add(flat(ws.dma(0, RA)))
    d_setup(o)
    x_unit(o, 1)
    o.add(flat(ws.dma(1, RB_)))
    x_flag(o, 1, 1)
    stamp(o, 3)
    own_stage(o, {1: d_dma})
    d_unit(o)
    o.i("s_branch L_ptail")
    wprep = o
    o = S(); o.label("L_dprep")
    kernarg_ready(o); epoch_load(o)
    ws.setup(o, vt0, vt1, vt2, sT[2], sT[3])
    o.i(f"s_and_b32 {s(sT[4])}, {s(sW)}, 2\ns_sub_u32 {s(sT[5])}, {s(sP12)}, 8\ns_lshl2_add_u32 {s(sT[4])}, {s(sT[5])}, {s(sT[4])}"); w_warm_setup(o, s(sT[4]))
    if CFG.get("w0_early", 1): w_warm(o, 0); w_warm(o, 0, 1)
    touch(o); lanes(o); ws.setup2(o, vt0, vt1, vt2, sT[2], RA); d_setup(o); gemm_setup(o, vt0, vt1, vt2)
    R, C = CFG["g1map"]; assert C == 4
    o.i(f"s_and_b32 {s(sT[2])}, {s(sXc)}, {16//R - 1}\ns_cselect_b32 {s(sT[2])}, 0x80000000, 0")
    o.i(f"v_cmp_eq_u32 vcc, 0, {v(vJ)}\nv_or_b32 {v(vt0)}, {s(sT[2])}, {v(vCs)}\ns_add_u32 {s(sT[3])}, {s(sCB)}, {FC}\nv_cndmask_b32 {v(vCw)}, {v(vOOB)}, {v(vt0)}, vcc")
    o.i(f"s_lshl_b32 {s(sT[3])}, {s(sT[3])}, {LF}\ns_or_b32 {s(sT[3])}, {s(sT[3])}, {s(sT[2])}\nv_cmp_eq_u32 vcc, 1, v0\nv_mov_b32 {v(vt0)}, {s(sT[3])}\nv_cndmask_b32 {v(vEv)}, {v(vEv)}, {v(vt0)}, vcc")
    o.wlg0(); nonce(o)
    stamp(o, 18)
    if not CFG.get("w0_early", 1): w_warm(o, 0); w_warm(o, 0, 1)
    w_warm(o, 1); w_warm(o, 1, 1)
    o.add(flat(ws.dma(0, RA) + ws.dma(1, RB_)))
    stamp(o, 1)
    own_stage(o, {3: d_dma})
    stamp(o, 3)
    for j in range(60):
        o.i(f"v_mfma_f32_16x16x32_bf16 {v(cs+4*(j%3),4)}, {a(4*j,4)}, {v(ones,4)}, {'0' if j < 3 else v(cs+4*(j%3),4)}")
    d_unit(o)
    for tl in range(3): o.vm(f"buffer_store_dwordx4 {v(cs+4*tl,4)}, {v(vCw)}, {s(sWS,4)}, {s(sCs)} offen offset:{64*tl} sc1")
    xprep = o
    o = S(); o.label("L_ptail")
    stamp(o, 5)
    o.i(f"s_add_u32 {s(sT[5])}, {s(sXc)}, {FH}\ns_lshl_b32 {s(sT[5])}, {s(sT[5])}, {LF}\nv_mov_b32 {v(vPA)}, 0")
    o.wvm0(); o.i("s_barrier"); flag_store(o, "0", vEv); o.i(f"v_mov_b32 {v(vEv)}, {v(vOOB)}")
    o.add(Poll(vPoll, vPA, s(sT[5]), CFG["nap2"]).both())
    o.add(Poll(vPoll, vP2, "0", CFG["nap2"]).both())
    stamp(o, 7)
    o.add(flat(h_dma(0, 0) + warm("h", vPfH, "0") + h_dma(1, 0)))
    o.wvm(("H", 0, 0)); o.i("s_branch L_join")
    VR.release(m0)
    return [head + wprep, xprep, o]

def gemms():
    o = S(); o.label("L_join")
    m0 = VR.mark()
    cs = VR.get(12); sa = VR.get(8); pk = VR.get(12)
    acc = VR.get(48)
    hf = VR.get(32); sg = VR.get(16)
    kc = VR.get(24); tmp = VR.get(16)
    res = VR.get(10)
    nsp = (256 - VR.mark()) // 4; spare = VR.get(4 * nsp); NE = nsp + 4
    assert cs == ones + 4
    def dreg(i): return v(spare + 4 * i, 4) if i < nsp else a(240 + 4 * (i - nsp), 4) if i < NE else a(4 * (i - NE), 4)
    wd = []
    for i in range(60):
        g = [S().vm(f"buffer_load_dwordx4 {dreg(i)}, {v(vL16)}, {s(sWS,4)}, {s(sWd)} offen offset:{1024*(i%4)} sc1", ("D", i // 5))]
        if i % 4 == 3 and i < 59: g.append(S().i(f"s_add_u32 {s(sWd)}, {s(sWd)}, 4096"))
        wd.append(g)

    def hreads(half, st_):
        r = []
        for k in range(4):
            for rd in range(2):
                g = S()
                if st_ == 16 and rd == 0: g.i(f"v_add_u32 {v(vH+k)}, 0x10000, {v(vH+k)}")
                g.lg(f"ds_read_b64_tr_b16 {v(hf+16*(st_%2)+4*k+2*rd,2)}, {v(vH+k)} offset:{(st_%16)*4096 + rd*512}", ("h", half, st_, k))
                r.append(g)
        return r
    def g1_mfmas(half, st_):
        r = []
        for k in range(4):
            h = v(hf + 16 * (st_ % 2) + 4 * k, 4)
            for tl in range(3):
                g = S()
                if tl == 0 and k % 2 == 0: g.wlg(("h", half, st_, k + 1))
                d = v(acc + 12 * k + 4 * tl, 4)
                g.i(f"v_mfma_f32_16x16x32_bf16 {d}, {a(12*st_+4*tl,4)}, {h}, {'0' if st_ == 0 else d}")
                r.append(g)
            if k == 0 and st_ < 5:
                r.append(S().i(f"v_mfma_f32_16x16x32_bf16 {v(sa,4)}, {v(ones,4)}, {h}, {'0' if st_ == 0 else v(sa,4)}"))
                r.append(S().i(f"v_mfma_f32_16x16x32_bf16 {v(sa+4,4)}, {h}, {h}, {'0' if st_ == 0 else v(sa+4,4)}"))
        return r
    def sg_publish(half):
        q = S()
        q.i(f"v_cndmask_b32 {v(sa+2)}, {v(sa+4)}, {v(sa+5)}, {s(sM[0],2)}\nv_mov_b32 {v(sa+1)}, {v(vN)}\nv_cndmask_b32 {v(sa+2)}, {v(sa+2)}, {v(sa+6)}, {s(sM[1],2)}\nv_mov_b32 {v(sa+3)}, {v(vN+1)}\nv_cndmask_b32 {v(sa+2)}, {v(sa+2)}, {v(sa+7)}, {s(sM[2],2)}")
        q.vm(f"buffer_store_dwordx4 {v(sa,4)}, {v(vSGo)}, {s(sWS,4)}, {s(sSG)} offen sc1")
        return singles(q)
    sgt = [f"buffer_load_dwordx4 {v(sg+4*k,4)}, {v(vL16)}, {s(sWS,4)}, {s(sSG)} offen offset:{1024*k} sc1" for k in range(4)]
    def sg_loads(half): return [S().vm(t, ("sg", half)) for t in sgt]
    def sg_finish(half):
        def chk(q):
            q.i(f"v_xor_b32 {v(sg+1)}, {v(vN)}, {v(sg+1)}")
            for k in range(1, 8): q.i(f"v_bitop3_b32 {v(sg+1)}, {v(sg+2*k+1)}, {v(vN+(k&1))}, {v(sg+1)} bitop3:0xbe")
            q.i(f"v_cmp_ne_u32 vcc, 0, {v(sg+1)}")
        c = S(); spin_check(c, ("sg", half), sgt, chk, CFG["nap"])
        r = singles(S(c[:-3])) + [S(c[-3:])]
        e = S(); q = tmp
        for k in range(1, 4): e.i(f"v_add_f32 {v(sg)}, {v(sg)}, {v(sg+4*k)}\nv_add_f32 {v(sg+2)}, {v(sg+2)}, {v(sg+4*k+2)}")
        ln_finalize(e, sg, sg + 2, q, q + 3, q + 4)
        e.i(f"v_rcp_f32 {v(q+4)}, {v(q+3)}\nv_mul_f32 {v(q+3)}, {v(q+3)}, {v(q+3)}\nv_mul_f32 {v(q+1)}, {hex(f2u(C0))}, {v(q+4)}\nv_mul_f32 {v(q+2)}, {v(q+4)}, {v(q+4)}")
        e.i(f"v_mul_f32 {v(q+4)}, {hex(f2u(C1))}, {v(q+4)}\nv_mul_f32 {v(q+2)}, {v(q+2)}, {v(q+4)}")
        e.lg(f"ds_write_b128 {v(vSTw)}, {v(q,4)} offset:{4096*half}")
        for k in range(6): e.lg(f"ds_read_b128 {v(kc+4*k,4)}, {v(vSTr if k < 4 else vSTr2)} offset:{4096*half + (256*k if k < 4 else 512*(k-4))}", ("kc", half))
        if half == 0: e.i(f"s_add_u32 {s(sSG)}, {s(sSG)}, {16*4096}")
        return r + singles(e)
    def g1_pass(half, events, extras):
        p = S(); fine = CFG.get("fine", -1) == half
        p.wvm(("H", half, 0)); p.i("s_barrier")
        if fine: stamp(p, 23)
        p.add(flat(hreads(half, 0)))
        slots = []; first = []
        for st_ in range(20):
            mm = g1_mfmas(half, st_)
            pre = S()
            if st_ % 4 == 3 and st_ < 19:
                if fine: stamp(pre, 24 + 2 * (st_ // 4))
                pre.wvm([("H", half, st_ // 4 + 1)] + events.get(st_, ([], None))[0]); pre.i("s_barrier")
                if fine: stamp(pre, 25 + 2 * (st_ // 4))
            if st_ in events and events[st_][1] is not None: pre.add(events[st_][1])
            mm[0] = group(mm[0], pre)
            first.append(len(slots)); slots += attach(mm, hreads(half, st_ + 1) if st_ < 19 else [])
        first.append(len(slots))
        p.add(flat(sched(slots, [(gs, first[lo], first[hi + 1] - 1) for gs, lo, hi in extras if gs])))
        sys.stderr.write(f"pass {half}: fillers {sum(ninstr(g) for gs, _, _ in extras for g in gs)} overflow {sched.over}\n")
        return p
    def gelu(items):
        e = S()
        T = lambda k: tmp + 4 * k
        for k, (g, u, q, d) in enumerate(items): e.i(f"v_pk_mul_f32 {v(T(k),2)}, {v(g,2)}, {v(g,2)}")
        for k, (g, u, q, d) in enumerate(items): e.i(f"v_pk_fma_f32 {v(T(k),2)}, {v(T(k),2)}, {v(q+2,2)}, {v(q,2)} op_sel:[0,0,1] op_sel_hi:[1,0,1]")
        for k, (g, u, q, d) in enumerate(items): e.i(f"v_pk_mul_f32 {v(T(k),2)}, {v(T(k),2)}, {v(g,2)}")
        for k, (g, u, q, d) in enumerate(items): e.i(f"v_exp_f32 {v(T(k))}, {v(T(k))}\nv_exp_f32 {v(T(k)+1)}, {v(T(k)+1)}\nv_pk_mul_f32 {v(T(k)+2,2)}, {v(g,2)}, {v(u,2)}")
        for k, (g, u, q, d) in enumerate(items): e.i(f"v_pk_fma_f32 {v(T(k),2)}, {v(T(k),2)}, {v(q+2,2)}, {v(q+2,2)} op_sel:[0,1,1] op_sel_hi:[1,1,1]")
        for k, (g, u, q, d) in enumerate(items): e.i(f"v_rcp_f32 {v(T(k))}, {v(T(k))}\nv_rcp_f32 {v(T(k)+1)}, {v(T(k)+1)}")
        for k, (g, u, q, d) in enumerate(items): e.i(f"v_pk_mul_f32 {v(T(k),2)}, {v(T(k),2)}, {v(T(k)+2,2)}")
        for k, (g, u, q, d) in enumerate(items): e.i(f"v_cvt_pk_bf16_f32 {v(d)}, {v(T(k))}, {v(T(k)+1)}")
        return e
    def g1_epilogue(half):
        e = S()
        e.wlg(("kc", half))
        if half == 0: e.wvm("cs")
        for k in range(4):
            for j in range(6):
                d = v(acc + 12 * k + 2 * j, 2)
                e.i(f"v_pk_fma_f32 {d}, {v(cs+2*j,2)}, {v(kc+4*k,2)}, {d} op_sel_hi:[1,0,1] neg_lo:[0,1,0] neg_hi:[0,1,0]")
        for p in range(2):
            for r in range(4): e.i(f"v_permlane32_swap_b32 {v(acc+24*p+8+r)}, {v(acc+24*p+20+r)}")
        for p in range(3):
            if p < 2: items = [(acc + 12 * k + 2 * h, acc + 12 * k + 4 + 2 * h, kc + 4 * k, pk + 4 * p + 2 * (k % 2) + h) for k in (2 * p, 2 * p + 1) for h in range(2)]
            else: items = [(acc + 24 * pp + 8 + 2 * h, acc + 24 * pp + 20 + 2 * h, kc + 16 + 4 * pp, pk + 8 + 2 * pp + h) for pp in range(2) for h in range(2)]
            e.add(gelu(items))
            for h in range(2): e.i(f"v_permlane16_swap_b32 {v(pk+4*p+h)}, {v(pk+4*p+2+h)}")
            e.vm(f"buffer_store_dwordx4 {v(pk+4*p,4)}, {v(vA+p)}, {s(sWS,4)}, {s(sAct)} offen offset:{512 if p == 2 else 0} sc1", ("ast", half))
        return singles(e)

    stamp(o, 8)
    ev = flag_store(S(), "0", vEv)
    f2b = Poll(vPoll, vP2, s(sT[5]), CFG["nap2"]); fcd = Poll(vPollB, vPCD, "0")
    need = [(4 * g - 1, 0, h_dma(g, 0)) for g in (2, 3, 4)]
    need.sort(key=lambda t: t[:2])
    sl, sc = CFG["sg_ld"], CFG["sg_chk"]; hba = CFG["hb_a"]; nhi = CFG["needA_hi"]; assert nhi < CFG["cb"]
    hb = [h_dma(g, 1) for g in range(5)]
    csl = [S().vm(f"buffer_load_dwordx4 {v(cs+4*tl,4)}, {v(vCs)}, {s(sWS,4)}, {s(sCs)} offen offset:{64*tl} sc1", "cs") for tl in range(3)]
    wmd = warm("d", vPf, s(sPfD))
    if wmd and CFG["g2map"] == 2: wmd += [S().i(f"s_add_u32 {s(sPfD)}, {s(sPfD)}, 7680")] + warm("d", vPf, s(sPfD))
    wmh = [S().i(f"s_mov_b32 {s(sT[4])}, {16*81920}")] + warm("h", vPfH, s(sT[4]))
    wi = min(CFG["wd_a"], NE)
    o.add(g1_pass(0, {3: ([("hst", 1)], ev)},
                  [(cat([x for _, _, x in need]), 0, nhi), (sg_publish(0), 5, 5),
                   ([fcd.issue()], CFG["pcd"], CFG["pcd"]), ([fcd.check()] + csl + wmd + cat(wd[:wi]), CFG["ccd"], 19 if wi else CFG["ccd"] + 1),
                   ([S().i(f"s_movk_i32 {s(sT[5])}, {(F2B-F2A)*FSP}"), f2b.issue()], CFG["pb"], CFG["pb"]), ([f2b.check()] + wmh + cat(hb[:hba]), CFG["cb"], 19),
                   (sg_loads(0), sl, sl + 1), (sg_finish(0), sc, 19)]))
    stamp(o, 9)
    hbg = CFG.get("hb_g", 0); n = min(CFG["wd_ga"], NE - wi)
    o.add(flat(spread(g1_epilogue(0), cat(hb[hba:hba + hbg]) + cat(wd[wi:wi + n]), 0.0, CFG.get("ga_hi", 0.9)))); wi += n
    for k in range(4): o.i(f"v_add_u32 {v(vH+k)}, {(L_R2 - L_R1 - 0x10000) & 0xffffffff}, {v(vH+k)}")
    stamp(o, 10)
    ev = flag_store(S(), s(sF3))
    e2 = singles(S().i(f"s_add_u32 {s(sF3)}, {s(sF3)}, {(F3B-F3A)*FSP}\ns_add_u32 {s(sAct)}, {s(sAct)}, {16*196608}"))
    nb = min(CFG["wd_b"], 60 - wi); exw = []; w0 = wi; wlo = CFG.get("wd_lo", 1)
    for st_ in range(wlo, 20):
        n = max(0, min(-(-(w0 + nb - wi) // (20 - st_)), NE + 3 * st_ - wi)); exw.append((cat(wd[wi:wi + n]), st_, st_)); wi += n
    r1 = S()
    for i in range(3):
        r1.i(f"s_add_u32 m0, {s(sResM)}, {1024*i}\ns_add_u32 {s(sT[0])}, {s(sRes)}, {4096*i}")
        r1.vm(f"buffer_load_dwordx4 {v(vResD)}, {s(sWS,4)}, {s(sT[0])} offen sc1 lds", "res")
    r3 = S(); r3.wvm("res")
    for dl in range(5): r3.lg(f"ds_read_b64_tr_b16 {v(res+2*dl,2)}, {v(vRes)} offset:{512*dl}", "rr")
    f3 = [Poll(vPoll, vP3, s(sP3)), Poll(vPoll, vP3, s(sT[6]), 0)]
    o.add(g1_pass(1, {3: ([("ast", 0)], ev)},
                  [(cat(hb[hba + hbg:]), 0, 3), (e2, 4, 4), (sg_publish(1), 5, 5)] + exw +
                  [(singles(r1), 4, 6), (sg_loads(1), sl, sl + 1), (singles(r3), 13, 14), (sg_finish(1), sc, 19),
                   ([S().i(f"s_add_u32 {s(sT[6])}, {s(sP3)}, {(F3B-F3A)*FSP}"), f3[0].issue()], CFG["p3a"], CFG["p3a"]),
                   ([f3[0].check()] + warm("a", vPfA, s(sA2)), CFG["c3a"], CFG["c3a"])]))
    stamp(o, 11)
    af = [hf, acc]; ac2 = [kc, kc + 20]; rt = ones
    def act_loads(u):
        r = []
        for st_ in range(12):
            g = S()
            g.vm(f"buffer_load_dwordx4 {v(af[u%2]+4*st_,4)}, {v(vL16)}, {s(sWS,4)}, {s(sA2)} offen offset:{1024*(st_%4)} sc1", ("a", u, st_))
            if st_ in (3, 7): g.i(f"s_add_u32 {s(sA2)}, {s(sA2)}, 4096")
            if st_ == 11 and u < 3: g.i(f"s_add_u32 {s(sA2)}, {s(sA2)}, {(49152 if u != 1 else 16*196608 - 49152) - 8192}")
            r.append(g)
        return r
    def acc_init(u):
        r = [S().i(f"s_cmp_eq_u32 {s(sW)}, {u}\ns_cselect_b32 {s(sRF)}, 0x10000, 0\ns_cselect_b32 {s(sRF+1)}, {s(sMask)}, 0")]
        e = S()
        for dl in range(5):
            d = ac2[u % 2] + 4 * dl
            for h in range(2): e.i(f"v_mul_u32_u24 {v(d+2*h)}, {s(sRF)}, {v(res+2*dl+h)}\nv_and_b32 {v(d+2*h+1)}, {s(sRF+1)}, {v(res+2*dl+h)}")
        return r + singles(e)
    def g2_mfmas(u):
        r = []
        for st_ in range(12):
            for dl in range(5):
                g = S()
                if dl == 0: g.wvm([("a", u, st_), ("D", st_)])
                d = v(ac2[u % 2] + 4 * dl, 4)
                g.i(f"v_mfma_f32_16x16x32_bf16 {d}, {dreg(5*st_+dl)}, {v(af[u%2]+4*st_,4)}, {d}")
                r.append(g)
        return r
    def reduce_out(u, packed):
        e = S()
        for dl in range(5): e.lg(f"ds_write_b128 {v(vRw)}, {v(ac2[u%2]+4*dl,4)} offset:{dl*2*QS}", ("rw", u))
        w1 = singles(e); e = S()
        e.wlg(("rw", u)); e.i("s_barrier")
        for w_ in range(4):
            for h in range(2): e.lg(f"ds_read_b128 {v(rt+8*w_+4*h,4)}, {v(vRr)} offset:{w_*WV + 256*h}", ("r", u, w_))
        if u < 3: e.i(f"v_add_u32 {v(vRw)}, {UN}, {v(vRw)}\nv_add_u32 {v(vRr)}, {UN}, {v(vRr)}")
        w2 = singles(e); e = S()
        for w_ in range(1, 4):
            e.wlg(("r", u, w_))
            if packed:
                for k in range(4): e.i(f"v_pk_add_f32 {v(rt+2*k,2)}, {v(rt+2*k,2)}, {v(rt+8*w_+2*k,2)}")
            else:
                for k in range(8): e.i(f"v_add_f32 {v(rt+k)}, {v(rt+k)}, {v(rt+8*w_+k)}")
        for k in range(4): e.i(f"v_cvt_pk_bf16_f32 {v(rt+32+k)}, {v(rt+2*k)}, {v(rt+2*k+1)}")
        e.vm(f"buffer_store_dwordx4 {v(rt+32,4)}, {v(vOo)}, {s(sOUT,4)}, {s(sOo)} offen{CFG['out_sc'][u]}")
        if u < 3: e.i(f"s_add_u32 {s(sOo)}, {s(sOo)}, {(32 if u != 1 else 1024 - 32)*1280}")
        return w1, w2, singles(e)
    def red_streams(u):
        w1, w2, w3 = reduce_out(u, False); return [(w1, 4, 18), (w2, 26, 35), (w3, 40, 59)]
    al = act_loads(0); ne = CFG["u0_early"]; n = min(CFG["wd_gb"], 60 - wi)
    o.add(flat(spread(g1_epilogue(1), al[:ne] + cat(wd[wi:wi + n]), 0.0, CFG.get("gb_hi", 0.75)))); wi += n
    stamp(o, 12)
    need = [(k, 1, x) for k, x in enumerate(al) if k >= ne] + [(i // 5, 0, flat(x)) for i, x in enumerate(wd) if i >= wi]
    need.sort(key=lambda t: t[:2]); need = [x for _, _, x in need]
    o.wlg("rr"); o.add(flat(acc_init(0)))
    mm = g2_mfmas(0)
    ev = S(); ev.wvm(("ast", 1)); ev.i("s_barrier"); flag_store(ev, s(sF3))
    k = CFG["f3b_at"]; mm[k] = group(mm[k], ev)
    a1 = act_loads(1); n1 = CFG["u1_in0"]
    mm = sched(mm, [(acc_init(1), 30, 56)])
    o.add(flat(ahead(mm, need + a1[:n1], CFG.get("u0_hi", 0.9))))
    stamp(o, 20)
    mm = g2_mfmas(1)
    k = CFG["p3b_at"]; mm[k] = group(mm[k], f3[1].issue())
    o.add(flat(ahead(sched(mm, red_streams(0)), a1[n1:], 0.3)))
    stamp(o, 13)
    o.add(f3[1].check())
    stamp(o, 21)
    al = act_loads(2) + act_loads(3); w1, w2, w3 = reduce_out(1, False); n0 = CFG.get("u2_first", 7)
    o.add(flat(al[:2] + warm("a", vPfA, s(sA2))))
    o.add(flat(spread(w1 + acc_init(2), al[2:n0], 0.0, 1.0)))
    stamp(o, 14)
    mm = sched(g2_mfmas(2), [(w2, 0, 9), (w3, 14, 36), (acc_init(3), 38, 56)]) + sched(g2_mfmas(3), red_streams(2))
    o.add(flat(ahead(mm, al[n0:], CFG.get("u23_hi", 0.6))))
    stamp(o, 22)
    o.add(flat(cat(reduce_out(3, True))))
    o.i(f"s_cmp_lg_u32 s2, 0\ns_cbranch_scc1 L_noep\ns_mov_b32 {s(sT[0])}, {EPOCH}")
    flag_store(o, s(sT[0])); o.label("L_noep")
    if DIAG:
        o.wvm0(); stamp(o, 15)
        o.i(f"s_lshl_b32 {s(sT[0])}, s2, 10\ns_add_u32 {s(sT[0])}, {s(sT[0])}, {DIAGO}\nv_lshlrev_b32 {v(vPA)}, 2, v0")
        o.i(f"buffer_store_dword {v(vStamps)}, {v(vPA)}, {s(sWS,4)}, {s(sT[0])} offen")
        if CFG.get("tdiag"):
            k1, k0, lo, hi = CFG["tdiag"]
            o.i(f"s_cmp_lt_u32 {s(sY)}, {lo}\ns_cbranch_scc1 L_end\ns_cmp_ge_u32 {s(sY)}, {hi}\ns_cbranch_scc1 L_end")
            o.i(f"v_readlane_b32 {s(sT[0])}, {v(vStamps)}, {k1}\nv_readlane_b32 {s(sT[1])}, {v(vStamps)}, {k0}\ns_sub_u32 {s(sT[0])}, {s(sT[0])}, {s(sT[1])}\ns_min_u32 {s(sT[0])}, {s(sT[0])}, 10000\ns_mul_i32 {s(sT[0])}, {s(sT[0])}, 10\ns_mov_b32 {s(sT[2])}, {s(sStamp)}")
            o.label("L_td")
            o.i(f"s_memrealtime {s(sStamp,2)}\ns_waitcnt lgkmcnt(0)\ns_sub_u32 {s(sT[1])}, {s(sStamp)}, {s(sT[2])}\ns_cmp_lt_u32 {s(sT[1])}, {s(sT[0])}\ns_cbranch_scc1 L_td")
    o.label("L_end"); o.i("s_endpgm")
    sys.stderr.write(f"early down-weight fragments: {NE}\n")
    VR.release(m0)
    return o

def build():
    pro = prologue(); conv = role_conv(); preps = role_prep(); gm = gemms()
    lines = resolve(S(pro + conv + gm))
    for p in preps: lines += resolve(p)
    lines += resolve(slow)
    lines, added = pad_hazards(lines, verbose=CFG.get("verbose", 0))
    npf = CFG["npf"]
    hdr = open("cdna_kernels/" + NAME[:-7] + ".s.ref").read().split("\n")
    hdr = [l for l in hdr[:hdr.index('.amdgcn_target "amdgcn-amd-amdhsa--gfx950"')] if "@launch" not in l]
    txt = "\n".join(hdr) + "\n; @launch grid=(256,1,1) block=(256,1,1) lds=163840\n"
    txt += f'.amdgcn_target "amdgcn-amd-amdhsa--gfx950"\n.text\n.globl {NAME}\n.p2align 8\n.type {NAME},@function\n{NAME}:\n'
    txt += "\n".join(l if l.endswith(":") else "    " + l for l in lines) + "\n"
    txt += f"L_codeend:\n.if (L_codeend - {NAME}) > {npf*4096}\n.error \"code larger than the prefetched range\"\n.endif\n.fill ({npf*4096 + 64} - (L_codeend - {NAME})) / 4, 4, 0xbf800000\n"
    txt += f""".section .rodata,"a"
.p2align 6
.amdhsa_kernel {NAME}
  .amdhsa_next_free_vgpr 512
  .amdhsa_next_free_sgpr 102
  .amdhsa_accum_offset 256
  .amdhsa_group_segment_fixed_size 0
  .amdhsa_kernarg_size 104
  .amdhsa_user_sgpr_count 2
  .amdhsa_user_sgpr_kernarg_segment_ptr 1
  .amdhsa_system_sgpr_workgroup_id_x 1
.end_amdhsa_kernel
"""
    sys.stderr.write(f"lines={len(lines)} nop_states_added={added} vmax={VR.max} smax={SR.max}\n")
    return txt

if __name__ == "__main__":
    open(sys.argv[1], "w").write(build())
```

```python
import sys, os, struct, math
sys.path.insert(0, os.path.dirname(os.path.abspath(__file__)))
from asmlib import *

NAME = "sequential_preLN__ssm_conv_h3__geglu_ffn__prompt_kernel"
CFG = dict(diag=0, g1map=(8, 4), g2map=2, out_sc=("", "", "", ""), spin=200000, npf=12, cwarm=(-1, 2, -1, -1), nwd=4, walk=1, align=1, lfx=7,
           hk=(1, 1, 1, 1), copies0=2, nap=1, napw=6, nap2=4,
           rA=(24, 42, 60), rB=(80, 17), i59=40, c5_first=2, ev_early=1, f2a=2, pxb=160, cxb=200, hint=200, p2a=240, c2a=270, chain=1,
           needA_hi=7, pcd=0, ccd=3, cd_hi=11, csb=8, pb=9, cb=12, hb_a=4, hb_g=1, sg_ld=11, sg_chk=15, wd_a=10, wd_ga=0, wd_lo=0, wd_b=50, u0_early=12, wd_gb=0, lf2=6,
           warm="", p3a=16, c3a=19, f3b_at=30, p3b_at=20, c3b_at=40, b_before=5, u2_first=8, u1_in0=10, dpos=0)
for kv in sys.argv[2:]:
    k, val = kv.split("=", 1)
    if k.endswith(":"): CFG[k[:-1]] = val.replace("_", " ")
    else: CFG[k] = eval(val)
DIAG = CFG["diag"]
LF = 7; FSP = 1 << LF; LF2 = CFG.get("lf2", 7); LFX = CFG.get("lfx", 5)

F1A, F2A, F2B, FH, F3A, F3B, FW, FX, FD, FC = 0, 160, 320, 1312, 480, 736, 992, 1072, 1200, 1296
STATS = 0x2A000; CSUM = 0x2E000; SG_WS = 0x32000; EPOCH = 0x7ff00; DIAGO = 0x80000
UROW = 4096 + 128; XROW = 16384 + 128
U_WS = 0x100000; XT_WS = 0x3A0000; HT_WS = 0x640000; WF_WS = 0x8C0000; WDF_WS = 0xC80000; ACT_WS = 0xE60000
WS_END = ACT_WS + 32 * 196608
L_U = 0; U_ROW = 4576; L_HC = 18304; HC_COPY = 4160; HC_CH = 16640
L_WR = 84864; WCELL = 12352; L_XT = 147456; L_ST = 155648
L_R1 = 81920; L_R2 = 0
QS = 512 + 16 * 3; WV = 10 * QS; UN = 4 * WV
def f2u(x): return struct.unpack("<I", struct.pack("<f", x))[0]
C0 = -2.0 * math.log2(math.e) * math.sqrt(2.0 / math.pi); C1 = C0 * 0.044715

sK, sV, sSH, sHK, sX, sWG, sWD, sWU, sDp, sOUT, sWS = 4, 8, 12, 16, 20, 24, 28, 32, 34, 36, 40
SC = [20, 21, 22, 23, 28, 29, 30, 31]
SP = Regs("s", 4, 20)
SR = Regs("s", 44, 102)
sN = SR.get(2); sP0 = SR.get(2); sM = [SR.get(2) for _ in range(3)]; sRF = SR.get(2)
sStamp = SR.get(2) if DIAG else None; sStampC = SR.get(2) if DIAG else None
sW, sXc, sY, sMask, sSpin, sRB, sCB, sRot, sWoff, sWt, sM0 = [SR.get() for _ in range(11)]
sWq = [SR.get() for _ in range(4)]
sT = [SR.get() for _ in range(8)]
sHo = [SR.get() for _ in range(5)]
sHm, sSG, sAct, sF3, sCs, sWd, sA2, sOo, sRes, sResM, sP3, sWm, sPfD = [SR.get() for _ in range(13)]
VR = Regs("v", 1, 256)
vL, vL16, vL16B, vFO, vOOB, vEv, vJ, vG, vPA = [VR.get() for _ in range(9)]
vN = VR.get(2); vPoll = VR.get(2); vPollB = VR.get(2)
vH = VR.get(4, 1); vA = VR.get(3, 1)
vSTw, vSTr, vSTr2, vSGo, vP2, vP3, vPCD, vCs, vResD, vRes, vRw, vRr, vOo = [VR.get() for _ in range(13)]
vPf, vPfH, vPfA = VR.get(), VR.get(), VR.get()
vDum = vL
vStamps = VR.get() if DIAG else None
ones = VR.get(4)
slow = S()
_lab = [0]
def newlab(p): _lab[0] += 1; return f"L_{p}{_lab[0]}"

def stamp(o, k):
    if not DIAG or k in CFG.get("nostamp", ()): return
    o.i(f"s_memrealtime {s(sStamp,2)}\ns_memtime {s(sStampC,2)}"); o.wlg0(); o.i(f"v_writelane_b32 {v(vStamps)}, {s(sStamp)}, {k}\nv_writelane_b32 {v(vStamps)}, {s(sStampC)}, {32+k}")

_pend = [None]
def cstamp(o, k):
    stamp(o, k)
def icache_walk(o, role):
    if not CFG["walk"]: return
    o.i(f"s_mov_b32 s3, {role}\ns_mov_b64 exec, 0")
    for w in range(3): o.i(f"s_cmp_eq_u32 {s(sW)}, {w}\ns_cbranch_scc1 L_pg{w+1}")
    o.i("s_branch L_pg4")
def spin_check(o, tag, load_txts, chk, nap=0):
    back = newlab("ok"); sl = newlab("spin"); lp = newlab("lp"); out = newlab("out")
    o.wvm(tag); chk(o); o.i(f"s_cbranch_vccnz {sl}" if not CFG.get("nospin") else "s_nop 0"); o.label(back)
    slow.label(sl); slow.i(f"s_mov_b32 {s(sSpin)}, {CFG['spin']}"); slow.label(lp)
    slow.i("s_mov_b64 exec, vcc")
    for t in load_txts: slow.i(t)
    slow.i("s_waitcnt vmcnt(0)"); chk(slow)
    slow.i(f"s_cbranch_vccz {out}")
    if nap: slow.i(f"s_sleep {nap}")
    slow.i(f"s_sub_u32 {s(sSpin)}, {s(sSpin)}, 1\ns_cmp_lg_u32 {s(sSpin)}, 0\ns_cbranch_scc1 {lp}")
    slow.label(out); slow.i(f"s_mov_b64 exec, -1\ns_branch {back}")
class Poll:
    def __init__(p, dst, addr, soff, nap=None):
        p.txt = f"buffer_load_dwordx2 {v(dst,2)}, {v(addr)}, {s(sWS,4)}, {soff} offen sc1"; p.dst = dst; p.tag = newlab("pt")
        p.nap = CFG["nap"] if nap is None else nap
    def issue(p): return S().vm(p.txt, p.tag)
    def check(p):
        o = S(); spin_check(o, p.tag, [p.txt], lambda q: q.i(f"v_cmp_ne_u64 vcc, {v(vN,2)}, {v(p.dst,2)}"), p.nap); return o
    def both(p): return p.issue().add(p.check())
def flag_store(o, soff, vfo=None):
    o.vm(f"buffer_store_dwordx2 {v(vN,2)}, {v(vFO if vfo is None else vfo)}, {s(sWS,4)}, {soff} offen sc1"); return o
def nonce(o):
    o.i(f"s_add_u32 {s(sN)}, {s(sN)}, 0x7f4a7c15\ns_addc_u32 {s(sN+1)}, {s(sN+1)}, 0x9e3779b9\nv_mov_b32 {v(vN)}, {s(sN)}\nv_mov_b32 {v(vN+1)}, {s(sN+1)}")
def bf16r(o, d, x):
    o.i(f"v_cvt_pk_bf16_f32 {v(d)}, {v(x)}, {v(x)}\nv_lshlrev_b32 {v(d)}, 16, {v(d)}")
def ln_finalize(o, vsum, vsq, vmean, vsd, t):
    o.i(f"v_mul_f32 {v(vmean)}, {hex(f2u(1/640))}, {v(vsum)}")
    o.i(f"v_mul_f32 {v(t)}, {hex(f2u(1/640))}, {v(vsq)}")
    o.i(f"v_fma_f32 {v(t)}, -{v(vmean)}, {v(vmean)}, {v(t)}")
    o.i(f"v_max_f32 {v(t)}, 0, {v(t)}")
    bf16r(o, vmean, vmean); bf16r(o, t, t)
    o.i(f"v_add_f32 {v(t)}, {hex(f2u(1e-5))}, {v(t)}")
    bf16r(o, t, t)
    o.i(f"v_sqrt_f32 {v(t)}, {v(t)}")
    bf16r(o, vsd, t)
def srd(o, *ps):
    for r, n in ps: o.i(f"s_mov_b32 {s(r+2)}, {n}\ns_mov_b32 {s(r+3)}, 0x00020000")

def prologue():
    o = S()
    if DIAG: o.i(f"s_memrealtime {s(sStamp,2)}\ns_memtime {s(sStampC,2)}")
    o.i(f"s_load_dwordx2 {s(sK,2)}, s[0:1], 8\ns_load_dwordx2 {s(sWS,2)}, s[0:1], 96")
    o.i(f"s_getpc_b64 {s(sP0,2)}\ns_lshr_b32 {s(sY)}, s2, 3\ns_min_u32 {s(sT[0])}, {s(sY)}, 31\ns_mul_i32 {s(sT[0])}, {s(sT[0])}, {CFG['npf'] * 128}")
    o.i(f"v_min_u32 {v(vPollB)}, {CFG['npf'] * 2 - 1}, v0\nv_lshl_add_u32 {v(vPollB)}, {v(vPollB)}, 6, {s(sT[0])}")
    o.i(f"global_load_dword {v(vPollB+1)}, {v(vPollB)}, {s(sP0,2)}")
    for r, off in ((sV, 16), (sSH, 24), (sX, 0), (sWG, 56), (sWU, 64), (sHK, 32), (sWD, 72), (sOUT, 80), (sDp, 40)):
        o.i(f"s_load_dwordx2 {s(r,2)}, s[0:1], {off}")
    o.i("s_cmp_ge_u32 s2, 256\ns_cbranch_scc1 L_end")
    o.i(f"v_lshrrev_b32 {v(vPoll)}, 6, v0\nv_and_b32 {v(vL)}, 63, v0")
    o.i(f"v_readfirstlane_b32 {s(sW)}, {v(vPoll)}")
    o.i(f"s_and_b32 {s(sXc)}, s2, 7\nv_bfrev_b32 {v(vOOB)}, 1\nv_lshlrev_b32 {v(vL16)}, 4, {v(vL)}")
    o.i(f"v_and_b32 {v(vJ)}, 15, {v(vL)}\nv_lshrrev_b32 {v(vG)}, 4, {v(vL)}")
    o.i(f"s_cmp_ge_u32 {s(sY)}, 20\ns_cbranch_scc1 L_prep")
    return o
def kernarg_ready(o):
    o.wlg0()
    if DIAG: o.i(f"v_mov_b32 {v(vStamps)}, 0\nv_writelane_b32 {v(vStamps)}, {s(sStamp)}, 0\nv_writelane_b32 {v(vStamps)}, {s(sStampC)}, 32")
def epoch_load(o): o.i(f"s_load_dwordx2 {s(sN,2)}, {s(sWS,2)}, {EPOCH}")
def common_setup(o):
    srd(o, (sWS, WS_END))
    o.i(f"v_cmp_ne_u32 vcc, 0, v0\ns_mov_b32 {s(sMask)}, 0xffff0000\ns_nop 0\nv_cndmask_b32 {v(vFO)}, 0, {v(vOOB)}, vcc")
def gemm_setup(o, t0, t1, t2):
    T = sT
    srd(o, (sOUT, 2621440))
    R, C = CFG["g1map"]
    o.i(f"s_lshl2_add_u32 {s(T[1])}, {s(sCB)}, {s(sW)}\nv_min_u32 {v(vPf)}, {480 // (2*CFG['g2map']) // CFG['nwd'] - 1}, {v(vL)}\nv_lshlrev_b32 {v(vPf)}, 7, {v(vPf)}")
    o.i(f"s_lshl_b32 {s(sCs)}, {s(T[1])}, 8\ns_add_u32 {s(sCs)}, {s(sCs)}, {CSUM}\nv_min_u32 {v(vCs)}, 2, {v(vJ)}\nv_lshl_add_u32 {v(vCs)}, {v(vCs)}, 2, {v(vG)}\nv_lshlrev_b32 {v(vCs)}, 4, {v(vCs)}")
    o.i(f"s_mul_i32 {s(sAct)}, {s(sRB)}, 196608\ns_mul_i32 {s(T[1])}, {s(T[1])}, 768\ns_add_u32 {s(sAct)}, {s(sAct)}, {s(T[1])}\ns_add_u32 {s(sAct)}, {s(sAct)}, {ACT_WS}")
    o.i(f"s_lshl4_add_u32 {s(sF3)}, {s(sRB)}, {s(sCB)}\ns_add_u32 {s(sF3)}, {s(sF3)}, {F3A}\ns_lshl_b32 {s(sF3)}, {s(sF3)}, {LF}")
    o.i(f"s_add_u32 {s(T[0])}, {s(sW)}, 1\ns_and_b32 {s(T[0])}, {s(T[0])}, 3\ns_lshl_b32 {s(sHm)}, {s(T[0])}, 12\ns_lshl2_add_u32 {s(T[1])}, {s(sRot)}, {s(sRot)}\ns_add_u32 {s(T[0])}, {s(T[0])}, {s(T[1])}")
    o.i(f"s_mul_i32 {s(T[1])}, {s(sRB)}, 81920\ns_add_u32 {s(T[1])}, {s(T[1])}, {HT_WS}")
    for g in range(5):
        o.i(f"s_add_u32 {s(T[2])}, {s(T[0])}, {4*g}\ns_sub_u32 {s(T[3])}, {s(T[2])}, 20\ns_min_u32 {s(T[2])}, {s(T[2])}, {s(T[3])}\ns_lshl_b32 {s(T[2])}, {s(T[2])}, 12\ns_add_u32 {s(sHo[g])}, {s(T[1])}, {s(T[2])}")
    o.i(f"v_add_u32 {v(vL16B)}, {16*81920}, {v(vL16)}")
    o.i(f"v_lshrrev_b32 {v(vP2)}, 3, {v(vL)}\nv_min_u32 {v(vP2)}, 4, {v(vP2)}\nv_lshl_add_u32 {v(vP2)}, {v(vP2)}, 2, {s(T[0])}\nv_subrev_u32 {v(t0)}, 20, {v(vP2)}\nv_min_u32 {v(vP2)}, {v(vP2)}, {v(t0)}")
    o.i(f"s_and_b32 {s(T[2])}, {s(sCB)}, 3\ns_lshl_b32 {s(T[2])}, {s(T[2])}, 10\ns_add_u32 {s(T[2])}, {s(T[2])}, {s(T[1])}\nv_and_b32 {v(t0)}, 7, {v(vL)}\nv_lshl_add_u32 {v(vPfH)}, {v(vP2)}, 5, {v(t0)}\nv_lshl_add_u32 {v(vPfH)}, {v(vPfH)}, 7, {s(T[2])}")
    o.i(f"v_lshl_add_u32 {v(vP2)}, {v(vP2)}, 3, {v(t0)}\nv_lshlrev_b32 {v(vP2)}, {LF2}, {v(vP2)}\nv_add_u32 {v(vP2)}, {F2A*FSP}, {v(vP2)}")
    o.i(f"v_bfe_u32 {v(t0)}, {v(vL)}, 2, 2\nv_lshl_add_u32 {v(t1)}, {v(vG)}, 3, {v(t0)}\nv_lshlrev_b32 {v(t1)}, 7, {v(t1)}\nv_and_b32 {v(t2)}, 3, {v(vL)}\nv_lshlrev_b32 {v(vP3)}, {LF}, {v(t2)}\nv_lshl_add_u32 {v(t1)}, {v(t2)}, 3, {v(t1)}\nv_add_u32 {v(t1)}, {L_R1}, {v(t1)}")
    for k in range(3): o.i(f"v_cmp_eq_u32 {s(sM[k],2)}, {k+1}, {v(t2)}")
    o.i(f"v_lshrrev_b32 {v(t0)}, 1, {v(t0)}\nv_and_b32 {v(t2)}, 1, {v(vG)}\nv_lshl_or_b32 {v(t0)}, {v(t2)}, 1, {v(t0)}")
    for k in range(4):
        o.i(f"s_add_u32 {s(T[0])}, {s(sW)}, {k}\ns_and_b32 {s(T[0])}, {s(T[0])}, 3\nv_xor_b32 {v(t2)}, {s(T[0])}, {v(t0)}\nv_lshl_add_u32 {v(vH+k)}, {v(t2)}, 5, {v(t1)}")
    for k in range(4): o.i(f"v_mov_b32 {v(ones+k)}, 0x3f803f80")
    o.i(f"s_lshl2_add_u32 {s(sSG)}, {s(sRB)}, {s(sW)}\ns_lshl_b32 {s(sSG)}, {s(sSG)}, 10\ns_add_u32 {s(sSG)}, {s(sSG)}, {SG_WS}\ns_lshl_b32 {s(T[0])}, {s(sRot)}, 8")
    o.i(f"s_and_b32 {s(T[1])}, {s(sCB)}, 3\ns_cselect_b32 {s(T[0])}, 0x80000000, {s(T[0])}\nv_lshrrev_b32 {v(t0)}, 2, {v(vJ)}\nv_cmp_eq_u32 vcc, {v(t0)}, {v(vG)}\nv_lshl_add_u32 {v(vSGo)}, {v(vJ)}, 4, {s(T[0])}")
    o.i(f"s_lshl_b32 {s(T[1])}, {s(sW)}, 10\ns_add_u32 {s(T[1])}, {s(T[1])}, {L_R1}\nv_cndmask_b32 {v(vSGo)}, {v(vOOB)}, {v(vSGo)}, vcc")
    o.i(f"v_lshl_add_u32 {v(vSTr)}, {v(vJ)}, 4, {s(T[1])}\nv_sub_u32 {v(t0)}, {s(sW)}, {v(vG)}\nv_and_b32 {v(t0)}, 3, {v(t0)}\nv_lshl_add_u32 {v(t0)}, {v(vG)}, 2, {v(t0)}\nv_lshl_add_u32 {v(t0)}, {v(t0)}, 4, {v(vJ)}\nv_lshlrev_b32 {v(t0)}, 4, {v(t0)}\nv_add_u32 {v(vSTw)}, {L_R1}, {v(t0)}\nv_lshrrev_b32 {v(t2)}, 1, {v(vG)}\nv_lshl_add_u32 {v(vSTr2)}, {v(t2)}, 8, {v(vSTr)}")
    o.i(f"s_mov_b32 {s(T[1])}, 49152\nv_lshlrev_b32 {v(t1)}, 4, {v(vJ)}\nv_and_b32 {v(t0)}, 1, {v(vG)}")
    for p in range(2):
        o.i(f"v_add3_u32 {v(vA+p)}, {v(t0)}, {s(sW)}, {2*p}\nv_and_b32 {v(vA+p)}, 3, {v(vA+p)}\nv_mad_u32_u24 {v(vA+p)}, {v(vA+p)}, {s(T[1])}, {v(t1)}\nv_lshl_add_u32 {v(vA+p)}, {v(t2)}, 8, {v(vA+p)}")
    o.i(f"v_lshl_or_b32 {v(vA+2)}, {v(t0)}, 1, {v(t2)}\nv_add_u32 {v(vA+2)}, {s(sW)}, {v(vA+2)}\nv_and_b32 {v(vA+2)}, 3, {v(vA+2)}\nv_mad_u32_u24 {v(vA+2)}, {v(vA+2)}, {s(T[1])}, {v(t1)}")
    o.i(f"s_mul_i32 {s(T[0])}, {s(sW)}, {WV}\nv_mul_u32_u24 {v(vRw)}, {QS}, {v(t2)}\nv_lshl_add_u32 {v(vRw)}, {v(t0)}, 8, {v(vRw)}\nv_add3_u32 {v(vRw)}, {v(vRw)}, {v(t1)}, {s(T[0])}")
    nr = CFG["g2map"]; nd = 16 // nr; lr = nr.bit_length() - 1; nxr = 16 // nr; lx = nxr.bit_length() - 1
    if R == 8: o.i(f"s_and_b32 {s(T[4])}, {s(sXc)}, 1\ns_lshl_b32 {s(T[4])}, {s(T[4])}, {lx-1}\ns_bfe_u32 {s(T[0])}, {s(sXc)}, {hex(((lx-1) << 16) | 1)}\ns_add_u32 {s(T[4])}, {s(T[4])}, {s(T[0])}")
    else: o.i(f"s_and_b32 {s(T[4])}, {s(sXc)}, {nxr-1}")
    o.i(f"s_lshl_b32 {s(T[4])}, {s(T[4])}, {lr}\ns_and_b32 {s(T[0])}, {s(sY)}, {nr-1}\ns_add_u32 {s(T[4])}, {s(T[4])}, {s(T[0])}")
    o.i(f"s_bfe_u32 {s(T[5])}, {s(sY)}, {hex(0x10000 | lr)}\ns_lshr_b32 {s(T[6])}, {s(sXc)}, {lx}\ns_mul_i32 {s(T[6])}, {s(T[6])}, {nd}\ns_lshr_b32 {s(T[0])}, {s(sY)}, {lr+1}\ns_add_u32 {s(T[6])}, {s(T[6])}, {s(T[0])}")
    o.i(f"s_lshl2_add_u32 {s(T[0])}, {s(T[6])}, {s(sW)}\ns_mul_i32 {s(sWd)}, {s(T[0])}, 61440\ns_add_u32 {s(sWd)}, {s(sWd)}, {WDF_WS}")
    o.i(f"s_and_b32 {s(T[0])}, {s(sY)}, {2*nr - 1}\ns_mul_i32 {s(T[0])}, {s(T[0])}, {61440 // (2*nr) // CFG['nwd']}\ns_add_u32 {s(sPfD)}, {s(sWd)}, {s(T[0])}")
    o.i(f"s_lshr_b32 {s(T[0])}, {s(sY)}, {lr+1}\ns_mul_i32 {s(T[0])}, {s(T[0])}, {12288 // nd}\nv_and_b32 {v(t0)}, 31, {v(vL)}\nv_min_u32 {v(t0)}, {96 // nd - 1}, {v(t0)}\nv_lshl_add_u32 {v(t0)}, {v(t0)}, 7, {s(T[0])}\nv_lshrrev_b32 {v(t1)}, 5, {v(vL)}\nv_mul_u32_u24 {v(t1)}, 49152, {v(t1)}\nv_add_u32 {v(vPfA)}, {v(t0)}, {v(t1)}")
    o.i(f"s_lshl_b32 {s(T[0])}, {s(sW)}, 3\ns_lshr_b32 {s(T[1])}, {s(T[6])}, 2\ns_add_u32 {s(T[0])}, {s(T[0])}, {s(T[1])}\ns_add_u32 {s(T[0])}, {s(T[0])}, {FD}\ns_add_u32 {s(T[1])}, {s(sCB)}, {FC}")
    o.i(f"v_cmp_gt_u32 vcc, 4, {v(vL)}\nv_lshl_add_u32 {v(vPCD)}, {v(vL)}, 1, {s(T[0])}\nv_mov_b32 {v(t0)}, {s(T[1])}\nv_cndmask_b32 {v(vPCD)}, {v(t0)}, {v(vPCD)}, vcc\nv_lshlrev_b32 {v(vPCD)}, {LF}, {v(vPCD)}")
    o.i(f"s_lshl2_add_u32 {s(sP3)}, {s(T[4])}, {s(sW)}\ns_lshl_b32 {s(sP3)}, {s(sP3)}, {LF+2}\ns_add_u32 {s(sP3)}, {s(sP3)}, {F3A*FSP}")
    o.i(f"s_lshl1_add_u32 {s(sA2)}, {s(T[4])}, {s(T[5])}\ns_mul_i32 {s(sA2)}, {s(sA2)}, 98304\ns_mul_i32 {s(T[0])}, {s(sW)}, 12288\ns_add_u32 {s(sA2)}, {s(sA2)}, {s(T[0])}\ns_add_u32 {s(sA2)}, {s(sA2)}, {ACT_WS}")
    o.i(f"s_lshr_b32 {s(T[0])}, {s(sW)}, 1\ns_and_b32 {s(T[1])}, {s(sW)}, 1")
    o.i(f"v_lshrrev_b32 {v(t0)}, 5, {v(vL)}\nv_xor_b32 {v(t0)}, {s(T[5])}, {v(t0)}\nv_lshrrev_b32 {v(t1)}, 2, {v(vL)}\nv_lshl_add_u32 {v(t0)}, {v(t1)}, 1, {v(t0)}\nv_and_b32 {v(t2)}, 3, {v(vL)}\nv_lshl_add_u32 {v(t0)}, {v(t0)}, 2, {v(t2)}\nv_lshlrev_b32 {v(vResD)}, 4, {v(t0)}")
    o.i(f"s_lshl4_add_u32 {s(sRes)}, {s(T[0])}, {s(T[4])}\ns_mul_i32 {s(sRes)}, {s(sRes)}, 81920\ns_mul_i32 {s(T[2])}, {s(T[6])}, 10240\ns_add_u32 {s(sRes)}, {s(sRes)}, {s(T[2])}\ns_mul_i32 {s(T[2])}, {s(T[1])}, 6144\ns_add_u32 {s(sRes)}, {s(sRes)}, {s(T[2])}\ns_add_u32 {s(sRes)}, {s(sRes)}, {HT_WS}")
    o.i(f"s_mul_i32 {s(sResM)}, {s(sW)}, 3072\ns_add_u32 {s(sResM)}, {s(sResM)}, {L_R1 + 16384}\ns_mul_i32 {s(T[2])}, {s(T[0])}, 6144\ns_add_u32 {s(T[2])}, {s(T[2])}, {L_R1 + 16384}")
    o.i(f"v_bfe_u32 {v(t0)}, {v(vL)}, 3, 1\nv_xor_b32 {v(t0)}, {s(T[1])}, {v(t0)}\nv_lshl_add_u32 {v(t0)}, {v(t1)}, 1, {v(t0)}\nv_lshl_add_u32 {v(t0)}, {v(t0)}, 2, {v(t2)}\nv_lshl_add_u32 {v(vRes)}, {v(t0)}, 3, {s(T[2])}")
    o.i(f"s_lshl2_add_u32 {s(sOo)}, {s(T[4])}, {s(T[0])}\ns_lshl1_add_u32 {s(sOo)}, {s(sOo)}, {s(T[5])}\ns_lshl1_add_u32 {s(sOo)}, {s(sOo)}, {s(T[1])}\ns_mul_i32 {s(sOo)}, {s(sOo)}, {4*1280}\ns_mul_i32 {s(T[0])}, {s(T[6])}, 160\ns_add_u32 {s(sOo)}, {s(sOo)}, {s(T[0])}")
    o.i(f"s_lshl_b32 {s(T[0])}, {s(sW)}, 6\ns_movk_i32 {s(T[1])}, 1280")
    o.i(f"v_min_u32 {v(t0)}, 39, {v(vL)}\nv_mul_u32_u24 {v(t1)}, 6554, {v(t0)}\nv_lshrrev_b32 {v(t1)}, 16, {v(t1)}\nv_mul_u32_u24 {v(t2)}, 10, {v(t1)}\nv_sub_u32 {v(t0)}, {v(t0)}, {v(t2)}")
    o.i(f"v_mul_u32_u24 {v(vRr)}, {QS}, {v(t0)}\nv_lshl_add_u32 {v(vRr)}, {v(t1)}, 4, {v(vRr)}\nv_add_u32 {v(vRr)}, {s(T[0])}, {v(vRr)}")
    o.i(f"v_cmp_gt_u32 vcc, 40, {v(vL)}\nv_lshlrev_b32 {v(t0)}, 4, {v(t0)}\nv_mad_u32_u24 {v(vOo)}, {v(t1)}, {s(T[1])}, {v(t0)}\nv_cndmask_b32 {v(vOo)}, {v(vOOB)}, {v(vOo)}, vcc")

class WStage:
    def __init__(w): w.vo = VR.get(3, 1); w.va0 = VR.get(); w.va2 = VR.get()
    def setup(w, o, t0, t1, t2, T0, T1):
        R, C = CFG["g1map"]; lr = R.bit_length() - 1; nxr = 16 // R; lx = nxr.bit_length() - 1; lc = C.bit_length() - 1
        o.i(f"s_and_b32 {s(sRB)}, {s(sXc)}, {nxr-1}\ns_lshl_b32 {s(sRB)}, {s(sRB)}, {lr}\ns_lshr_b32 {s(T0)}, {s(sY)}, {lc}\ns_add_u32 {s(sRB)}, {s(sRB)}, {s(T0)}")
        o.i(f"s_lshr_b32 {s(sCB)}, {s(sXc)}, {lx}\ns_lshl_b32 {s(sCB)}, {s(sCB)}, {lc}\ns_and_b32 {s(T0)}, {s(sY)}, {C-1}\ns_add_u32 {s(sCB)}, {s(sCB)}, {s(T0)}\ns_lshr_b32 {s(sRot)}, {s(sCB)}, 2")
        o.i(f"s_mul_i32 {s(T1)}, {s(sCB)}, 192")
        for q in range(4): o.i(f"s_add_u32 {s(T0)}, {s(sRot)}, {q}\ns_and_b32 {s(T0)}, {s(T0)}, 3\ns_mul_i32 {s(T0)}, {s(T0)}, {160*3072}\ns_add_u32 {s(sWq[q])}, {s(T1)}, {s(T0)}")
        o.i(f"s_lshr_b32 {s(T0)}, {s(sW)}, 1\ns_lshl_b32 {s(T0)}, {s(T0)}, 3\ns_movk_i32 {s(T1)}, 3072\ns_mul_i32 {s(sWm)}, {s(sW)}, 3088")
        for i in range(3):
            o.i(f"v_add_u32 {v(t0)}, {64*i}, {v(vL)}\nv_mul_u32_u24 {v(t1)}, 5462, {v(t0)}\nv_lshrrev_b32 {v(t1)}, 16, {v(t1)}\nv_mul_u32_u24 {v(t2)}, 12, {v(t1)}\nv_sub_u32 {v(t0)}, {v(t0)}, {v(t2)}")
            o.i(f"v_lshlrev_b32 {v(t0)}, 4, {v(t0)}\nv_and_b32 {v(t2)}, 8, {v(t1)}\nv_add3_u32 {v(t1)}, {v(t1)}, {v(t2)}, {s(T0)}\nv_mad_u32_u24 {v(w.vo+i)}, {v(t1)}, {s(T1)}, {v(t0)}")
        srd(o, (sWG, 1966080))
        o.i(f"s_bitcmp1_b32 {s(sW)}, 0\ns_cselect_b32 {s(sWG)}, {s(sWU)}, {s(sWG)}\ns_cselect_b32 {s(sWG+1)}, {s(sWU+1)}, {s(sWG+1)}")
    def setup2(w, o, t0, t1, t2, T0, base):
        o.i(f"v_bfe_u32 {v(t2)}, {v(vL)}, 2, 2\nv_and_b32 {v(t0)}, 1, {v(vG)}\nv_mul_u32_u24 {v(w.va0)}, 6176, {v(t0)}\nv_lshrrev_b32 {v(t0)}, 1, {v(vG)}\nv_lshl_add_u32 {v(t0)}, {v(t0)}, 3, {v(t2)}\nv_mul_u32_u24 {v(t0)}, 192, {v(t0)}")
        o.i(f"s_mul_i32 {s(T0)}, {s(sW)}, 48\ns_add_u32 {s(T0)}, {s(T0)}, {base}\nv_add3_u32 {v(w.va0)}, {v(w.va0)}, {v(t0)}, {s(T0)}\nv_and_b32 {v(t2)}, 3, {v(vL)}")
        o.i(f"v_lshrrev_b32 {v(t0)}, 1, {v(t2)}\nv_mul_u32_u24 {v(t0)}, 3088, {v(t0)}\nv_and_b32 {v(t1)}, 1, {v(t2)}\nv_lshl_add_u32 {v(t0)}, {v(t1)}, 3, {v(t0)}\nv_add3_u32 {v(w.va2)}, {v(w.va0)}, {v(t0)}, 32")
        o.i(f"v_lshl_add_u32 {v(w.va0)}, {v(t2)}, 3, {v(w.va0)}")
    def cdma(w, c, base):
        q, j = divmod(c, 5); r = S()
        for i in range(3):
            r.i(f"s_add_u32 m0, {s(sWm)}, {base + j*WCELL + i*1024}")
            if i == 0 and j: r.i(f"s_add_u32 {s(sWoff)}, {s(sWq[q])}, {j*32*3072}")
            r.vm(f"buffer_load_dwordx4 {v(w.vo+i)}, {s(sWG,4)}, {s(sWoff if j else sWq[q])} offen lds", ("wb", c))
        return singles(r)
    def creads(w, c):
        r = S()
        for tl in range(3):
            for rd in range(2):
                r.lg(f"ds_read_b64_tr_b16 {a(12*c + 4*tl + 2*rd, 2)}, {v(w.va2 if tl == 2 else w.va0)} offset:{(c%5)*WCELL + rd*768 + (3088 if tl == 1 else 0)}", ("wr", c))
        return singles(r)
    def dma(w, q, base): return [g for j in range(5) for g in w.cdma(5*q + j, base)]
    def reads(w, q): return [g for j in range(5) for g in w.creads(5*q + j)]
def h_dma(gam, half):
    r = [S().i(f"s_add_u32 m0, {s(sHm)}, {(L_R1 if half == 0 else L_R2) + 16384*gam}")]
    for q in range(4):
        r.append(S().vm(f"buffer_load_dwordx4 {v(vL16B if half else vL16)}, {s(sWS,4)}, {s(sHo[gam])} offen offset:{1024*q} sc1 lds", ("H", half, gam)))
    return r
def warm(kind, addr, soff):
    if kind not in CFG["warm"]: return []
    return [S().vm(f"buffer_load_dword {v(vDum)}, {v(addr)}, {s(sWS,4)}, {soff} offen sc1")]
def attach(mm, fill):
    n = len(mm); slots = [group(g) for g in mm]
    for k, f in enumerate(fill): slots[k if len(fill) <= n else k * n // len(fill)].add(f)
    return slots
def cat(ls): return [g for l in ls for g in l]

def role_conv():
    o = S(); m0 = VR.mark()
    sD = SC[0]; sCI, sF1, sF2, sCH, sU, sHT = SC[2:8]; sHKo, sXS = sRF, sRF + 1
    vAa, vBa, vUe, vXo, vSo, vHo, vHint = [VR.get() for _ in range(7)]
    ws = WStage()
    m1 = VR.mark()
    vOff, vOffH, vt0, vt1, vt2 = [VR.get() for _ in range(5)]
    kr = VR.get(22); vr_ = VR.get(16); shr = VR.get(8); wt = VR.get(16)
    o.i(f"s_cmp_ge_u32 {s(sY)}, 10\ns_cselect_b32 {s(sT[1])}, 10, 0\ns_addc_u32 {s(sT[7])}, {s(sXc)}, {s(sXc)}\ns_sub_u32 {s(sT[1])}, {s(sY)}, {s(sT[1])}")
    o.i(f"s_lshl2_add_u32 {s(sT[0])}, {s(sT[7])}, {s(sW)}")
    o.i(f"s_mul_i32 {s(sT[2])}, {s(sT[0])}, {32*1280}\ns_lshl_b32 {s(sT[3])}, {s(sT[1])}, 7\ns_add_u32 {s(sT[2])}, {s(sT[2])}, {s(sT[3])}")
    o.i(f"v_lshrrev_b32 {v(vt0)}, 3, {v(vL)}\nv_mul_u32_u24 {v(vOff)}, 1280, {v(vt0)}\nv_and_b32 {v(vt0)}, 7, {v(vL)}\nv_lshl_add_u32 {v(vOff)}, {v(vt0)}, 4, {v(vOff)}")
    o.i(f"s_cmp_eq_u32 {s(sT[0])}, 0\ns_cselect_b32 {s(sT[4])}, 64, 40\ns_cselect_b32 {s(sT[5])}, 0, 10240\nv_cmp_gt_u32 vcc, {s(sT[4])}, {v(vL)}\ns_sub_u32 {s(sT[5])}, {s(sT[2])}, {s(sT[5])}")
    srd(o, (sK, 2621440), (sV, 2621440), (sSH, 5120), (sHK, 2621440))
    o.i(f"v_cndmask_b32 {v(vOffH)}, {v(vOff)}, {v(vOOB)}, vcc\ns_mul_i32 {s(sM0)}, {s(sW)}, {HC_CH}\ns_add_u32 {s(sM0)}, {s(sM0)}, {L_HC}")
    o.i(f"s_lshl_b32 {s(sT[3])}, {s(sT[1])}, 9\nv_lshrrev_b32 {v(vt1)}, 2, {v(vL)}\nv_lshlrev_b32 {v(vt0)}, 5, {v(vt1)}\ns_add_u32 m0, {s(sM0)}, 1088")
    common_setup(o)
    o.i(f"s_mul_i32 {s(sWt)}, {s(sXc)}, 20\ns_add_u32 {s(sWt)}, {s(sWt)}, {s(sY)}\ns_lshl2_add_u32 {s(sT[6])}, {s(sWt)}, {s(sW)}\ns_lshr_b32 {s(sT[6])}, {s(sT[6])}, 1\ns_lshl_b32 {s(sT[6])}, {s(sT[6])}, 2")
    kernarg_ready(o)
    stamp(o, 16)
    for i in range(4):
        o.vm(f"buffer_load_dwordx4 {v(vOff)}, {s(sK,4)}, {s(sT[2] if i == 0 else sT[4])} offen lds", "k")
        if i == 0: epoch_load(o); o.i(f"s_load_dword {s(sD)}, {s(sDp,2)}, {s(sT[6])}")
        if i < 3: o.i(f"s_add_u32 m0, {s(sM0)}, {1088*(i+2)}\ns_add_u32 {s(sT[4])}, {s(sT[2])}, {10240*(i+1)}")
    o.i(f"s_mov_b32 m0, {s(sM0)}")
    o.vm(f"buffer_load_dwordx4 {v(shr,4)}, {v(vt0)}, {s(sSH,4)}, {s(sT[3])} offen", "k")
    o.vm(f"buffer_load_dwordx4 {v(vOffH)}, {s(sK,4)}, {s(sT[5])} offen lds", "k")
    o.i(f"s_add_u32 m0, {s(sM0)}, {1088*5}")
    o.vm(f"buffer_load_dwordx4 {v(shr+4,4)}, {v(vt0)}, {s(sSH,4)}, {s(sT[3])} offen offset:16", "k")
    for i in range(4):
        o.vm(f"buffer_load_dwordx4 {v(vOff)}, {s(sV,4)}, {s(sT[2] if i == 0 else sT[4])} offen lds", "v")
        if i < 3: o.i(f"s_add_u32 m0, {s(sM0)}, {1088*(i+6)}\ns_add_u32 {s(sT[4])}, {s(sT[2])}, {10240*(i+1)}")
    if not DIAG or 17 in CFG.get("nostamp", (17,)): pass
    else: stamp(o, 17)
    hd = VR.get(16); hm = VR.get(8); vM0, vM1 = VR.get(), VR.get()
    o.i(f"s_mov_b32 {s(sCI)}, {s(sWt)}\ns_lshl2_add_u32 {s(sCH)}, {s(sCI)}, {s(sW)}\ns_lshl_b32 {s(sHKo)}, {s(sCH)}, 12")
    o.i(f"v_cmp_eq_u32 vcc, 0, {v(vL)}\nv_add_u32 {v(vM1)}, 1016, {v(vL16)}\nv_subrev_u32 {v(vM0)}, 8, {v(vL16)}\nv_cndmask_b32 {v(vM0)}, {v(vM0)}, {v(vOOB)}, vcc")
    def hk_loads(when):
        for it in range(4):
            if CFG["hk"][it] != when: continue
            o.vm(f"buffer_load_dwordx4 {v(hd+4*it,4)}, {v(vL16)}, {s(sHK,4)}, {s(sHKo)} offen offset:{1024*it}", ("hk", it))
            o.vm(f"buffer_load_dwordx2 {v(hm+2*it,2)}, {v(vM0 if it == 0 else vM1)}, {s(sHK,4)}, {s(sHKo)} offen offset:{1024*(it-1) if it else 0}", ("hk", it))
    hk_loads(0)
    ws.setup(o, vt0, vt1, vt2, sT[2], sT[3])
    ws.setup2(o, vt0, vt1, vt2, sT[2], L_WR)
    vWw = VR.get()
    o.i(f"v_min_u32 {v(vt0)}, 23, {v(vL)}\nv_mul_u32_u24 {v(vt1)}, 10923, {v(vt0)}\nv_lshrrev_b32 {v(vt1)}, 16, {v(vt1)}\nv_mul_u32_u24 {v(vt1)}, {3072 - 768}, {v(vt1)}\nv_lshl_add_u32 {v(vWw)}, {v(vt0)}, 7, {v(vt1)}")
    o.i(f"s_lshr_b32 {s(sT[2])}, {s(sW)}, 1\ns_lshl1_add_u32 {s(sT[2])}, {s(sY)}, {s(sT[2])}\ns_mul_i32 {s(sT[2])}, {s(sT[2])}, {4*3072}\ns_and_b32 {s(sT[3])}, {s(sCB)}, 3\ns_mul_i32 {s(sT[3])}, {s(sT[3])}, 192\ns_sub_u32 {s(sWt)}, {s(sT[2])}, {s(sT[3])}")
    def cwarm(when):
        for q, wh in enumerate(CFG["cwarm"]):
            if wh == when:
                o.i(f"s_add_u32 {s(sWoff)}, {s(sWq[q])}, {s(sWt)}"); o.vm(f"buffer_load_dword {v(vPollB)}, {v(vWw)}, {s(sWG,4)}, {s(sWoff)} offen")
    cwarm(0)
    vSR, vSt = VR.get(), VR.get()
    o.i(f"s_lshl4_add_u32 {s(sF1)}, {s(sT[1])}, {s(sT[7])}\ns_lshl_b32 {s(sF1)}, {s(sF1)}, {LF}")
    o.i(f"v_lshrrev_b32 {v(vt1)}, 2, {v(vL)}\nv_and_b32 {v(vt0)}, 3, {v(vL)}\nv_mul_u32_u24 {v(vSR)}, 1088, {v(vt0)}\nv_lshl_add_u32 {v(vSR)}, {v(vt1)}, 3, {v(vSR)}\nv_add_u32 {v(vSR)}, {s(sM0)}, {v(vSR)}")
    o.i(f"v_mul_u32_u24 {v(vSt)}, {4*UROW}, {v(vt1)}\nv_lshl_add_u32 {v(vSt)}, {v(vt0)}, 4, {v(vSt)}")
    o.i(f"s_mul_i32 {s(sU)}, {s(sT[1])}, {64*UROW}\ns_lshl_b32 {s(sT[3])}, {s(sT[0])}, 6\ns_add_u32 {s(sU)}, {s(sU)}, {s(sT[3])}")
    o.i(f"v_bfe_u32 {v(vt0)}, {v(vJ)}, 1, 2\nv_xor_b32 {v(vt0)}, {s(sW)}, {v(vt0)}\nv_lshlrev_b32 {v(vt0)}, 4, {v(vt0)}\nv_lshl_add_u32 {v(vXo)}, {v(vJ)}, 7, {v(vt0)}\nv_lshrrev_b32 {v(vt0)}, 1, {v(vG)}\nv_lshl_add_u32 {v(vXo)}, {v(vt0)}, 6, {v(vXo)}")
    o.i(f"v_and_b32 {v(vt0)}, 1, {v(vG)}\nv_lshl_add_u32 {v(vXo)}, {v(vt0)}, 3, {v(vXo)}\nv_add_u32 {v(vXo)}, {L_XT}, {v(vXo)}\nv_add_u32 {v(vSo)}, {L_ST}, {v(vL16)}")
    o.i(f"s_mul_i32 {s(sT[2])}, {s(sW)}, {HC_CH}\ns_add_u32 {s(sT[2])}, {s(sT[2])}, {L_HC + 56}")
    o.i(f"v_and_b32 {v(vt0)}, 3, {v(vJ)}\nv_sub_u32 {v(vt0)}, 3, {v(vt0)}\nv_mul_u32_u24 {v(vAa)}, {HC_COPY}, {v(vt0)}\nv_lshrrev_b32 {v(vt0)}, 2, {v(vJ)}")
    o.i(f"v_lshl_add_u32 {v(vAa)}, {v(vt0)}, 3, {v(vAa)}\nv_lshlrev_b32 {v(vt0)}, 4, {v(vG)}\nv_sub_u32 {v(vAa)}, {v(vAa)}, {v(vt0)}\nv_add_u32 {v(vAa)}, {s(sT[2])}, {v(vAa)}")
    o.i(f"s_mul_i32 {s(sT[3])}, {s(sW)}, {U_ROW}\nv_lshl_add_u32 {v(vBa)}, {v(vJ)}, 1, {v(vG)}\nv_lshl_add_u32 {v(vBa)}, {v(vBa)}, 4, {s(sT[3])}")
    o.i(f"v_lshrrev_b32 {v(vt0)}, 1, {v(vG)}\nv_lshl_add_u32 {v(vUe)}, {v(vJ)}, 1, {v(vt0)}\nv_lshlrev_b32 {v(vUe)}, 4, {v(vUe)}\nv_and_b32 {v(vt1)}, 1, {v(vG)}\nv_lshlrev_b32 {v(vt1)}, 3, {v(vt1)}\nv_sub_u32 {v(vUe)}, {v(vUe)}, {v(vt1)}")
    o.i(f"s_add_u32 {s(sT[6])}, {s(sT[3])}, {L_U + 488}\nv_add_u32 {v(vUe)}, {s(sT[6])}, {v(vUe)}")
    o.i(f"s_bfe_u32 {s(sT[6])}, {s(sCH)}, 0x10001\ns_bfe_u32 {s(sT[7])}, {s(sCH)}, 0x10003\ns_lshl1_add_u32 {s(sT[6])}, {s(sT[7])}, {s(sT[6])}")
    o.i(f"v_and_b32 {v(vt0)}, 2, {v(vG)}\nv_bfe_u32 {v(vt1)}, {v(vJ)}, 1, 1\nv_or_b32 {v(vt0)}, {v(vt0)}, {v(vt1)}\nv_xor_b32 {v(vt0)}, {s(sT[6])}, {v(vt0)}\nv_lshlrev_b32 {v(vt0)}, 5, {v(vt0)}")
    o.i(f"v_and_b32 {v(vt1)}, 1, {v(vJ)}\nv_lshl_add_u32 {v(vt0)}, {v(vt1)}, 4, {v(vt0)}\nv_and_b32 {v(vt1)}, 1, {v(vG)}\nv_lshlrev_b32 {v(vt1)}, 2, {v(vt1)}\nv_lshrrev_b32 {v(vHo)}, 2, {v(vJ)}\nv_add_u32 {v(vHo)}, {v(vHo)}, {v(vt1)}")
    o.i(f"s_mov_b32 {s(sT[7])}, 81920\nv_mad_u32_u24 {v(vHo)}, {v(vHo)}, {s(sT[7])}, {v(vt0)}\ns_lshl_b32 {s(sHT)}, {s(sCH)}, 7\ns_add_u32 {s(sHT)}, {s(sHT)}, {HT_WS}")
    zq = VR.get(4); vHW = VR.get(); vZ = VR.get()
    for k in range(4): o.i(f"v_mov_b32 {v(zq+k)}, 0")
    o.i(f"v_add_u32 {v(vt0)}, {s(sT[3])}, {v(vL16)}\nv_subrev_u32 {v(vt1)}, 30, {v(vL)}\nv_lshrrev_b32 {v(vHW)}, 1, {v(vt1)}\nv_mul_u32_u24 {v(vHW)}, {HC_COPY}, {v(vHW)}\nv_and_b32 {v(vt1)}, 1, {v(vt1)}\nv_lshl_add_u32 {v(vHW)}, {v(vt1)}, 4, {v(vHW)}")
    o.i(f"v_cmp_gt_u32 vcc, 30, {v(vL)}\ns_sub_u32 {s(sT[2])}, {s(sT[2])}, 56\nv_add_u32 {v(vHW)}, {s(sT[2])}, {v(vHW)}\nv_cndmask_b32 {v(vZ)}, {v(vHW)}, {v(vt0)}, vcc")
    o.i(f"v_add_u32 {v(vHW)}, {s(sT[2])}, {v(vL16)}")
    o.i(f"s_lshl_b32 {s(sF2)}, {s(sCI)}, {LF2}\ns_add_u32 {s(sT[6])}, {s(sF2)}, {F2B*FSP}\ns_add_u32 {s(sF2)}, {s(sF2)}, {F2A*FSP}\nv_add_u32 {v(vEv)}, {s(sT[6])}, {v(vFO)}")
    o.i(f"s_add_u32 {s(sT[6])}, {s(sXc)}, {FH}\ns_lshl_b32 {s(sT[6])}, {s(sT[6])}, {LF}\ns_cmp_eq_u32 {s(sY)}, 0\ns_cselect_b32 {s(sT[6])}, {s(sT[6])}, 0x80000000\nv_or_b32 {v(vHint)}, {s(sT[6])}, {v(vFO)}")
    o.i(f"s_and_b32 {s(sT[6])}, {s(sCI)}, 0xf0\nv_add_lshl_u32 {v(vPA)}, {v(vJ)}, {s(sT[6])}, {LF}")
    gs = S(); gemm_setup(gs, vt0, vt1, vt2)
    ng = int(len(gs) * CFG.get("gs_early", 0.3))
    while any(x in gs[ng - 1].text for x in ("s_cmp", "s_and_b32", "v_cmp", "s_cselect")) or "vcc" in "".join(x.text for x in gs[ng:ng + 6]): ng += 1
    sv = {}
    o.add(gs[:ng])
    icache_walk(o, 0)
    if CFG["walk"]: o.label("L_pgret"); o.i(f"s_mov_b64 exec, -1\ns_cmp_eq_u32 s3, 1\ns_cbranch_scc1 L_pgret2")
    o.i("s_branch L_main"); o.append(Op("@@SLOW@@", "raw")); o.append(Op(".p2align 12", "raw")); o.label("L_main")
    stamp(o, 18)
    kf = VR.get(48); uf = VR.get(32); up = kr
    o.wvm("k")
    stamp(o, 1)
    for r in range(11): o.lg(f"ds_read_b64 {v(kr+2*r,2)}, {v(vSR)} offset:{(5+r)*128 if r < 3 else 1088 + (r-3)*128}")
    hk_loads(1); cwarm(1)
    for p in range(2):
        for m in range(4):
            for h in range(2):
                src = shr + 2 * (2 * p + h) + (m >> 1); d = wt + (p * 4 + m) * 2 + h
                o.i(f"v_lshlrev_b32 {v(d)}, 16, {v(src)}" if m % 2 == 0 else f"v_and_b32 {v(d)}, {s(sMask)}, {v(src)}")
    o.wlg0()
    mk = len(o)
    for r in range(11):
        for p in range(2):
            o.i(f"v_lshlrev_b32 {v(kf+4*r+2*p)}, 16, {v(kr+2*r+p)}\nv_and_b32 {v(kf+4*r+2*p+1)}, {s(sMask)}, {v(kr+2*r+p)}")
    for m in range(4):
        for t in range(8):
            if m == 3 and t == 2:
                o.wvm("v")
                for r in range(8): o.lg(f"ds_read_b64 {v(vr_+2*r,2)}, {v(vSR)} offset:{5*1088 + r*128}", ("vr", r // 4))
            for p in range(2):
                d = v(uf + 4 * t + 2 * p, 2); kk = v(kf + 4 * (t + 3 - m) + 2 * p, 2); w_ = v(wt + (p * 4 + m) * 2, 2)
                o.i(f"v_pk_mul_f32 {d}, {kk}, {w_}" if m == 0 else f"v_pk_fma_f32 {d}, {kk}, {w_}, {d}")
    for p in range(2):
        for t in range(8):
            if t % 4 == 0: o.wlg(("vr", t // 4))
            o.i(f"v_lshlrev_b32 {v(kf+4*t+2*p)}, 16, {v(vr_+2*t+p)}\nv_and_b32 {v(kf+4*t+2*p+1)}, {s(sMask)}, {v(vr_+2*t+p)}")
        for t in range(8): o.i(f"v_pk_mul_f32 {v(uf+4*t+2*p,2)}, {v(uf+4*t+2*p,2)}, {v(kf+4*t+2*p,2)}")
        for c in (2 * p, 2 * p + 1):
            for q in range(4): o.i(f"v_cvt_pk_bf16_f32 {v(up+4*c+q)}, {v(uf+4*(7-2*q)+c)}, {v(uf+4*(6-2*q)+c)}")
            o.i(f"s_add_u32 {s(sXS)}, {s(sU)}, {U_WS + UROW*c}")
            o.vm(f"buffer_store_dwordx4 {v(up+4*c,4)}, {v(vSt)}, {s(sWS,4)}, {s(sXS)} offen sc1", "ust")
    stamp(o, 2)
    hk_loads(2); cwarm(2)
    o.i(f"s_bfm_b64 exec, 38, 0"); o.lg(f"ds_write_b128 {v(vZ)}, {v(zq,4)}"); o.i("s_mov_b64 exec, -1")
    nonce(o)
    o.add(gs[ng:])
    def copies(it):
        d = [hm + 2 * it, hm + 2 * it + 1] + [hd + 4 * it + k for k in range(4)]
        c1 = kf + 12 * it; c2 = c1 + 4; c3 = c1 + 8
        o.wvm(("hk", it))
        for k in range(4): o.i(f"v_alignbit_b32 {v(c1+k)}, {v(d[k+2])}, {v(d[k+1])}, 16")
        for k in range(4): o.i(f"v_mov_b32 {v(c2+k)}, {v(d[k+1])}")
        for k in range(4): o.i(f"v_alignbit_b32 {v(c3+k)}, {v(d[k+1])}, {v(d[k])}, 16")
        for c, r in enumerate((hd + 4 * it, c1, c2, c3)):
            o.lg(f"ds_write_b128 {v(vHW)}, {v(r,4)} offset:{c*HC_COPY + 32 + 1024*it}")
    early = [it for it in range(4) if CFG["hk"][it] < 2]; nc0 = CFG["copies0"]
    for it in early[:nc0]: copies(it)
    o.wvm("ust"); o.i("s_barrier")
    flag_store(o, s(sF1))
    stamp(o, 3)
    hk_loads(3); cwarm(3)
    o.i(f"s_bitcmp1_b32 {s(sCH)}, 0\ns_cselect_b32 {s(sT[6])}, 0, 16\ns_lshl_b32 {s(sD)}, {s(sD)}, {s(sT[6])}\ns_and_b32 {s(sD)}, {s(sD)}, {s(sMask)}\ns_mov_b32 {s(sD+1)}, {s(sD)}")
    o.i(f"s_mul_i32 {s(sT[6])}, {s(sCH)}, {UROW}\ns_add_u32 {s(sT[6])}, {s(sT[6])}, {U_WS}\ns_lshl_b32 {s(sXS)}, {s(sW)}, 11\ns_mul_i32 {s(sU)}, {s(sCI)}, {XROW}\ns_add_u32 {s(sU)}, {s(sU)}, {s(sXS)}")
    mk = len(o)
    for it in range(4):
        if it not in early[:nc0]: copies(it)
    o[mk:] = flat(spread(singles(S(o[mk:])), ws.dma(0, L_WR)))
    f1 = Poll(vPoll, vPA, "0"); o.add(f1.issue())
    o.i(f"s_mul_i32 {s(sT[3])}, {s(sW)}, {U_ROW}\ns_add_u32 m0, {s(sT[3])}, {L_U + 480}\ns_mov_b32 {s(sT[5])}, {FX*FSP}\ns_mov_b32 {s(sT[7])}, {FX*FSP + (64 << LFX)}\ns_lshl_b32 {s(sT[4])}, {s(sW)}, 4")
    o.add(f1.check())
    stamp(o, 4)
    for q in range(4): o.vm(f"buffer_load_dwordx4 {v(vL16)}, {s(sWS,4)}, {s(sT[6])} offen offset:{1024*q} sc1 lds", ("udma", q // 2))
    o.i(f"v_add_lshl_u32 {v(vPA)}, {v(vJ)}, {s(sT[4])}, {LFX}")
    fx = [Poll(vPoll, vPA, s(sT[5]), CFG["napw"]), Poll(vPoll, vPA, s(sT[7]), CFG["napw"])]
    o.add(fx[0].issue()); cwarm(4)
    o.wvm(("wb", 4)); o.i("s_barrier"); o.add(flat(ws.reads(0)))
    o.wlg0(); o.i("s_barrier")
    VR.release(m1)
    accA = VR.get(16); accB = VR.get(16); fr = VR.get(128); est = VR.get(32)
    def slot(c): return ("A", c) if c < 8 else ("B", c - 8)
    def fA(c, M): return fr + (c % 2) * 64 + 8 * M
    def fB(c, b): return fr + (c % 2) * 64 + 8 * b + 4
    def eregs(half):
        b = fr + 64 * (1 - half) + 32; return b, est, b + 8, b + 16
    def reads(c):
        half, m = slot(c); r = []
        if half == "A": order = [("B", 0), ("A", 0), ("B", 1), ("B", 2), ("B", 3), ("A", 1), ("A", 2), ("A", 3)]
        else: order = [("A", 0), ("B", 4), ("B", 5), ("B", 6), ("B", 7), ("A", 1), ("B", 3), ("A", 2), ("B", 2), ("A", 3), ("B", 1), ("A", 4), ("B", 0), ("A", 5), ("A", 6), ("A", 7)]
        if CFG["chain"]:
            if half == "A": order = [("A", 0), ("B", 0), ("B", 1), ("A", 1), ("B", 2), ("A", 2), ("B", 3), ("A", 3)]
            else: order = [("A", 0), ("B", 4), ("A", 1), ("B", 3), ("A", 2), ("B", 2), ("A", 3), ("B", 1), ("A", 4), ("B", 0), ("B", 5), ("A", 5), ("B", 6), ("A", 6), ("B", 7), ("A", 7)]
        for kind, q in order:
            if kind == "B": r.append(S().lg(f"ds_read_b128 {v(fB(c,q),4)}, {v(vBa)} offset:{L_U + 512*q - 64*m + 448}", ("f", c, "B", q)))
            else:
                r.append(S().lg(f"ds_read_b64 {v(fA(c,q),2)}, {v(vAa)} offset:{64*(8*q+m)}", ("f", c, "A", q)))
                r.append(S().lg(f"ds_read_b64 {v(fA(c,q)+2,2)}, {v(vAa)} offset:{64*(8*q+m)+8}", ("f", c, "A", q)))
        return r
    def mfmas(c):
        half, m = slot(c); lo, hi = (0, 4) if half == "A" else (4, 8); acc = accA if half == "A" else accB
        wpts = {0: 0, 1: 3} if half == "A" else {0: 2, 2: 7}
        r = []
        if CFG["chain"]:
            wj = {0: 1, 2: 3} if half == "A" else {4: 4, 5: 7}
            for jt in range(lo, hi):
                for M in range(jt + 1):
                    g = S(); d = v(acc + 4 * (jt - lo), 4)
                    if M == 0 and jt in wj: g.wlg([("f", c, k_, x) for k_ in "AB" for x in range(wj[jt] + 1)])
                    g.i(f"v_mfma_f32_16x16x32_bf16 {d}, {v(fA(c,M),4)}, {v(fB(c,jt-M),4)}, {'0' if (m == 0 and M == 0) else d}")
                    r.append(g)
            return r
        for M in range(hi):
            bs = [jt - M for jt in range(lo, hi) if 0 <= jt - M]
            g0 = S()
            if M in wpts:
                Ms = range(M, wpts[M] + 1)
                g0.wlg([("f", c, "A", x) for x in Ms] + [("f", c, "B", jt - x) for x in Ms for jt in range(lo, hi) if jt - x >= 0])
            for b in bs:
                d = v(acc + 4 * (M + b - lo), 4)
                cc = "0" if (m == 0 and M == 0) else d
                g = g0 if b == bs[0] else S()
                g.i(f"v_mfma_f32_16x16x32_bf16 {d}, {v(fA(c,M),4)}, {v(fB(c,b),4)}, {cc}")
                r.append(g)
        return r
    def xs_dma(half):
        q = S()
        for base, src, off in ((L_XT, sU, XT_WS), (L_ST, sXS, STATS)):
            q.i(f"s_add_u32 m0, {s(sXS)}, {base}\ns_add_u32 {s(sT[4])}, {s(src)}, {off + 8192*half}")
            for k in range(2): q.vm(f"buffer_load_dwordx4 {v(vL16)}, {s(sWS,4)}, {s(sT[4])} offen offset:{1024*k} sc1 lds", ("xs", half))
        return singles(q)
    def epi_reads(half):
        r = []; xe, st, ue, tm = eregs(half)
        for q in range(4): r.append(S().lg(f"ds_read_b64 {v(xe+2*q,2)}, {v(vXo)} offset:{2048*q}", ("xe", half)))
        for q in range(4):
            for h in range(2): r.append(S().lg(f"ds_read_b128 {v(st+8*q+4*h,4)}, {v(vSo)} offset:{2048*q + 1024*h}", ("st", half)))
        for q in range(4): r.append(S().lg(f"ds_read_b64 {v(ue+2*q,2)}, {v(vUe)} offset:{512*(4*half+q)}", ("ue", half)))
        return r
    def epilogue(half):
        e = S(); acc = accA if half == 0 else accB; xe, st, ue, tm = eregs(half)
        e.wlg(("xe", half))
        for q in range(4):
            t = tm + 4 * q
            e.i(f"v_lshlrev_b32 {v(t)}, 16, {v(xe+2*q)}\nv_and_b32 {v(t+1)}, {s(sMask)}, {v(xe+2*q)}\nv_lshlrev_b32 {v(t+2)}, 16, {v(xe+2*q+1)}\nv_and_b32 {v(t+3)}, {s(sMask)}, {v(xe+2*q+1)}")
        e.wlg(("st", half))
        for q in range(4):
            for h in range(2): e.i(f"v_pk_fma_f32 {v(st+8*q+2*h,2)}, {v(tm+4*q+2*h,2)}, {v(st+8*q+2*h,2)}, {v(st+8*q+4+2*h,2)}")
        e.wlg(("ue", half))
        for q in range(4):
            t = st + 8 * q + 4
            e.i(f"v_and_b32 {v(t)}, {s(sMask)}, {v(ue+2*q+1)}\nv_lshlrev_b32 {v(t+1)}, 16, {v(ue+2*q+1)}\nv_and_b32 {v(t+2)}, {s(sMask)}, {v(ue+2*q)}\nv_lshlrev_b32 {v(t+3)}, 16, {v(ue+2*q)}")
        for q in range(4):
            for h in range(2): e.i(f"v_pk_fma_f32 {v(acc+4*q+2*h,2)}, {v(st+8*q+4+2*h,2)}, {s(sD,2)}, {v(acc+4*q+2*h,2)}")
        for q in range(4):
            for h in range(2): e.i(f"v_pk_fma_f32 {v(tm+4*q+2*h,2)}, {v(st+8*q+2*h,2)}, {v(acc+4*q+2*h,2)}, {v(tm+4*q+2*h,2)}")
        for q in range(4):
            for h in range(2): e.i(f"v_cvt_pk_bf16_f32 {v(ue+2*q+h)}, {v(tm+4*q+2*h)}, {v(tm+4*q+2*h+1)}")
        for p in range(2):
            e.i(f"s_add_u32 {s(sT[3])}, {s(sHT)}, {(16*half + 8*p)*81920}")
            for h in range(2): e.i(f"v_permlane16_swap_b32 {v(ue+4*p+h)}, {v(ue+4*p+2+h)}")
            e.vm(f"buffer_store_dwordx4 {v(ue+4*p,4)}, {v(vHo)}, {s(sWS,4)}, {s(sT[3])} offen sc1", ("hst", half))
        return e
    n5 = CFG.get("c5_first", 1)
    o.add(flat([g for c in range(5, 5 + n5) for g in ws.cdma(c, L_WR)]))
    o.wvm(("udma", 0))
    stamp(o, 5)
    o.add(flat(reads(0)))
    f2a = Poll(vPoll, vP2, "0", CFG["nap2"])
    if "rounds" in CFG: pos = [p_ for p_, _ in CFG["rounds"]]; cnt = [n_ for _, n_ in CFG["rounds"]]
    else: pos = list(CFG["rA"]); pos += [int(CFG["rB"][0] + k * CFG["rB"][1]) for k in range(15 - len(pos))]; cnt = [1] * 15
    NR = len(pos); pos.append(288); c0 = [5 + sum(cnt[:k]) for k in range(NR + 1)]; assert c0[-1] == 20
    mm = []
    for c in range(16): mm += attach(mfmas(c), epi_reads(0) if c == 7 else epi_reads(1) if c == 15 else reads(c + 1))
    def insert(k, q):
        g = mm[k]; i = [x.text.startswith("v_mfma") for x in g].index(True); mm[k] = group(g[:i + 1], q, g[i + 1:])
    dmaA = []; dmaB = []; st = []
    cxa = CFG.get("cxa", 1); insert(cxa, fx[0].check())
    dmaA.append((xs_dma(0) + [g for c in range(5 + n5, 10) for g in ws.cdma(c, L_WR)], cxa, CFG["i59"]))
    xa = max(k for k in range(NR) if pos[k] <= 70); xb = max(k for k in range(NR) if pos[k] <= 262)
    f2k = xa + 1 + CFG["f2a"]; assert pos[f2k] < CFG["cxb"] < pos[xb]
    insert(CFG["cxb"], fx[1].check())
    for k in range(NR):
        q = S(); tags = [("wb", c0[k + 1] - 1)]
        if k == xa: tags += [("xs", 0), ("udma", 1)]
        if k == xb: tags.append(("xs", 1))
        if k == f2k: tags.append(("hst", 0))
        q.wvm(tags)
        if k: q.wlg(("wr", c0[k] - 1))
        q.i("s_barrier")
        if k == f2k: flag_store(q, s(sF2))
        insert(pos[k], q)
        end = min(pos[k + 1], 80 if pos[k] < 80 else 288) - 1
        rd = [g for c in range(c0[k], c0[k + 1]) for g in ws.creads(c)]
        if rd: st.append((rd, pos[k], min(end, pos[k] + CFG.get("rspan", 10) * cnt[k])))
        d = [g for c in range(c0[k - 1] + 5, min(20, c0[k] + 5)) for g in ws.cdma(c, L_WR)] if k else []
        dend = min(end, pos[k] + CFG.get("dspan", 16) * (cnt[k - 1] if k else 0))
        if pos[k] <= CFG["cxb"] < pos[k + 1]:
            if d: dmaB.append((d, pos[k], max(pos[k], min(dend, CFG["cxb"] - 1))))
            dmaB.append((xs_dma(1), CFG["cxb"], min(end, CFG["cxb"] + 12)))
        elif d: (dmaA if pos[k] < 80 else dmaB).append((d, max(pos[k], CFG["i59"] + 1), max(dend, CFG["i59"] + 1)))
    st += dmaA + dmaB
    st.append(([fx[1].issue()], CFG["pxb"], CFG["pxb"] + 4))
    st.append(([f2a.issue()], CFG["p2a"], CFG["p2a"] + 4))
    c2a = CFG["c2a"]
    if c2a:
        assert c2a >= max(270, pos[min(k for k in range(NR + 1) if c0[k] > 17)] + 1) and CFG["p2a"] > CFG["cxb"]
        st.append(([f2a.check()] + h_dma(0, 0) + warm("h", vPfH, "0"), c2a, 287))
    if CFG["hint"]: st.append(([flag_store(S(), "0", vHint)], CFG["hint"], CFG["hint"] + 4))
    mm = sched(mm, st)
    for kill in CFG.get("kill", ()):
        mm = [S([Op("s_nop 0" if kill in x.text and CFG.get("killnop") else "; x", x.kind if x.kind != "x" else "cmt", x.tag) if kill in x.text else x for x in g]) for g in mm]
    sys.stderr.write(f"conv overflow {sched.over}\n")
    if CFG.get("fine") == 2:
        for c in range(9, 16): q = S(); stamp(q, 14 + c); mm[80 + 26 * (c - 8)] = group(q, mm[80 + 26 * (c - 8)])
    o.add(flat(mm[:80]))
    stamp(o, 6)
    o.add(flat(spread(singles(epilogue(0)), reads(8), 0.0, 0.7)))
    stamp(o, 19)
    o.add(flat(mm[80:]))
    stamp(o, 7)
    o.wlg(("wr", 19))
    if not c2a: o.i("s_barrier"); o.add(f2a.check())
    o.add(flat(spread(singles(epilogue(1)), ([] if c2a else h_dma(0, 0) + warm("h", vPfH, "0")) + h_dma(1, 0), 0.0, CFG.get("h01_hi", 0.8))))
    VR.release(m0)
    return o

def role_prep():
    o = S(); m0 = VR.mark()
    o.label("L_prep")
    vt0, vt1, vt2, vr, vc = [VR.get() for _ in range(5)]
    fr = VR.get(60); xo = VR.get(5, 1); do = VR.get(5, 1); vXr, vXs, vXw, vXt = [VR.get() for _ in range(4)]
    xs = VR.get(20); acc = VR.get(4); onesr = VR.get()
    sP12, sUn = sRF, sRF + 1
    sDo, sDi, sDm, sWw = [SP.get() for _ in range(4)]
    vDr, vCw, vWw = VR.get(), VR.get(), VR.get(); df = VR.get(20); cs = VR.get(12)
    ws = WStage(); RA = 0; RB_ = 5 * WCELL; PX = 10 * WCELL; L_PD = 143360
    o.i(f"s_sub_u32 {s(sP12)}, {s(sY)}, 20")
    common_setup(o)
    o.i(f"s_cmp_ge_u32 {s(sY)}, 28\ns_cbranch_scc1 L_dprep")
    head = o
    def divmod_c(q, add, magic, c):
        q.i(f"v_add_u32 {v(vt0)}, {add}, {v(vL)}\nv_mul_u32_u24 {v(vt1)}, {magic}, {v(vt0)}\nv_lshrrev_b32 {v(vt1)}, 16, {v(vt1)}\nv_mul_u32_u24 {v(vt2)}, {c}, {v(vt1)}\nv_sub_u32 {v(vt0)}, {v(vt0)}, {v(vt2)}")
    def touch(q):
        q.i(f"s_mul_i32 {s(sT[0])}, {s(sXc)}, 12\ns_add_u32 {s(sT[0])}, {s(sT[0])}, {s(sP12)}\ns_lshl2_add_u32 {s(sT[0])}, {s(sT[0])}, {s(sW)}\ns_lshl_b32 {s(sT[0])}, {s(sT[0])}, 10")
        q.i(f"v_cmp_gt_u32 vcc, 16, {v(vL)}\nv_lshlrev_b32 {v(vt0)}, 6, {v(vL)}\nv_mov_b32 {v(vt1)}, 0\nv_cndmask_b32 {v(vt0)}, {v(vOOB)}, {v(vt0)}, vcc")
        q.vm(f"buffer_atomic_add {v(vt1)}, {v(vt0)}, {s(sWS,4)}, {s(sT[0])} offen sc1")
    def lanes(q): q.i(f"v_bfe_u32 {v(vr)}, {v(vL)}, 2, 2\nv_and_b32 {v(vc)}, 3, {v(vL)}")
    def x_addr(q):
        srd(q, (sX, 2621440))
        q.i(f"s_lshr_b32 {s(sT[0])}, {s(sW)}, 1\ns_lshl_b32 {s(sT[0])}, {s(sT[0])}, 2\ns_movk_i32 {s(sT[1])}, 1280")
        for i in range(5):
            divmod_c(q, 64 * i, 820, 80)
            q.i(f"v_or_b32 {v(vt2)}, {s(sT[0])}, {v(vt1)}\nv_lshlrev_b32 {v(vt2)}, 1, {v(vt2)}\nv_xor_b32 {v(vt0)}, {v(vt0)}, {v(vt2)}\nv_lshlrev_b32 {v(vt0)}, 4, {v(vt0)}\nv_mad_u32_u24 {v(xo+i)}, {v(vt1)}, {s(sT[1])}, {v(vt0)}")
    def x_dma(q, k, px):
        q.i(f"s_lshl2_add_u32 {s(sT[0])}, {s(sUn)}, {s(sW)}\ns_mul_i32 {s(sT[0])}, {s(sT[0])}, 5120\ns_mul_i32 {s(sT[1])}, {s(sW)}, 5120")
        if k: q.i(f"s_add_u32 {s(sT[0])}, {s(sT[0])}, {20480*64*k}")
        for i in range(5):
            q.i(f"s_add_u32 m0, {s(sT[1])}, {px[k] + i*1024}\ns_nop 0")
            q.vm(f"buffer_load_dwordx4 {v(xo+i)}, {s(sX,4)}, {s(sT[0])} offen lds", ("xd", k))
    def x_setup(q, px):
        q.i(f"v_and_b32 {v(vt0)}, 1, {v(vG)}\nv_lshl_add_u32 {v(vt1)}, {v(vt0)}, 3, {v(vr)}\nv_mul_u32_u24 {v(vXr)}, 1280, {v(vt1)}\nv_lshl_or_b32 {v(vt1)}, {v(vt0)}, 2, {v(vr)}")
        q.i(f"v_lshrrev_b32 {v(vt2)}, 1, {v(vG)}\ns_lshl_b32 {s(sT[0])}, {s(sW)}, 1\nv_or_b32 {v(vXw)}, {s(sT[0])}, {v(vt2)}\nv_xor_b32 {v(vt1)}, {v(vt1)}, {v(vXw)}\nv_lshl_add_u32 {v(vXr)}, {v(vt1)}, 5, {v(vXr)}\nv_lshl_add_u32 {v(vXr)}, {v(vc)}, 3, {v(vXr)}\nv_add_u32 {v(vXr)}, {px}, {v(vXr)}")
        q.i(f"v_lshrrev_b32 {v(vt1)}, 2, {v(vJ)}\nv_lshl_add_u32 {v(vt1)}, {v(vt2)}, 2, {v(vt1)}\nv_mul_u32_u24 {v(vXw)}, {XROW}, {v(vt1)}\nv_lshl_add_u32 {v(vXw)}, {v(vt0)}, 6, {v(vXw)}\nv_lshl_add_u32 {v(vXw)}, {v(vc)}, 4, {v(vXw)}")
        q.i(f"s_mul_i32 {s(sT[0])}, {s(sW)}, 5120\ns_add_u32 {s(sT[0])}, {s(sT[0])}, {px}\nv_mul_u32_u24 {v(vXs)}, 1280, {v(vG)}\nv_lshl_add_u32 {v(vXs)}, {v(vJ)}, 4, {v(vXs)}\nv_add_u32 {v(vXs)}, {s(sT[0])}, {v(vXs)}")
        q.i(f"v_cmp_gt_u32 vcc, 2, {v(vJ)}\nv_lshlrev_b32 {v(vt0)}, 10, {v(vJ)}\nv_lshl_add_u32 {v(vt0)}, {v(vG)}, 2, {v(vt0)}\nv_cndmask_b32 {v(vXt)}, {v(vOOB)}, {v(vt0)}, vcc\nv_mov_b32 {v(onesr)}, 0x3f803f80")
    def x_unit(q, k):
        kk = k
        q.wvm(("xd", k)); q.i("s_barrier")
        for f in range(5):
            for rd in range(2): q.lg(f"ds_read_b64_tr_b16 {v(fr+20*kk+4*f+2*rd,2)}, {v(vXr)} offset:{20480*kk + 5120*rd + 256*f}", ("xt", k, f))
        for i in range(5): q.lg(f"ds_read_b128 {v(xs+4*i,4)}, {v(vXs)} offset:{20480*kk + 256*i}", ("xr", k))
        q.i(f"s_add_u32 {s(sT[2])}, {s(sUn)}, {64*k}\ns_mul_i32 {s(sT[0])}, {s(sW)}, {8*XROW}\ns_lshl_b32 {s(sT[1])}, {s(sT[2])}, 7\ns_add_u32 {s(sT[0])}, {s(sT[0])}, {s(sT[1])}")
        q.i(f"s_bfe_u32 {s(sT[1])}, {s(sT[2])}, 0x20001\ns_lshl_b32 {s(sT[1])}, {s(sT[1])}, 4\nv_xor_b32 {v(vt2)}, {s(sT[1])}, {v(vXw)}")
        for f in range(5):
            q.i(f"s_add_u32 {s(sT[1])}, {s(sT[0])}, {XT_WS + f*32*XROW}")
            q.wlg(("xt", k, f))
            q.vm(f"buffer_store_dwordx4 {v(fr+20*kk+4*f,4)}, {v(vt2)}, {s(sWS,4)}, {s(sT[1])} offen sc1", ("xst", k))
        for j in range(4): q.i(f"v_mov_b32 {v(acc+j)}, 0")
        q.wlg(("xr", k))
        for j in range(20):
            q.i(f"v_dot2c_f32_bf16 {v(acc+(j&1))}, {v(xs+j)}, {v(onesr)}\nv_dot2c_f32_bf16 {v(acc+2+(j&1))}, {v(xs+j)}, {v(xs+j)}")
        q.i(f"s_lshr_b32 {s(sT[0])}, {s(sT[2])}, 4\ns_lshl_b32 {s(sT[0])}, {s(sT[0])}, 11\ns_and_b32 {s(sT[2])}, {s(sT[2])}, 15\ns_lshl4_add_u32 {s(sT[2])}, {s(sW)}, {s(sT[2])}\ns_lshl4_add_u32 {s(sT[0])}, {s(sT[2])}, {s(sT[0])}\ns_add_u32 {s(sT[0])}, {s(sT[0])}, {STATS}")
        q.i(f"v_add_f32 {v(acc)}, {v(acc)}, {v(acc+1)}\nv_add_f32 {v(acc+2)}, {v(acc+2)}, {v(acc+3)}")
        for sh in (8, 4, 2, 1):
            for j in (0, 2): q.i(f"v_add_f32_dpp {v(acc+j)}, {v(acc+j)}, {v(acc+j)} row_ror:{sh} row_mask:0xf bank_mask:0xf")
        ln_finalize(q, acc, acc + 2, acc + 1, acc + 3, vt0)
        q.i(f"v_rcp_f32 {v(acc+3)}, {v(acc+3)}\nv_cmp_eq_u32 vcc, 0, {v(vJ)}\nv_mul_f32_e64 {v(acc+1)}, -{v(acc+1)}, {v(acc+3)}\nv_cndmask_b32 {v(vt1)}, {v(acc+1)}, {v(acc+3)}, vcc")
        q.vm(f"buffer_store_dword {v(vt1)}, {v(vXt)}, {s(sWS,4)}, {s(sT[0])} offen sc1", ("xst", k))
    def x_flag(q, n, half):
        q.i(f"s_lshl_b32 {s(sT[0])}, {s(sUn)}, {LFX}\ns_add_u32 {s(sT[0])}, {s(sT[0])}, {FX*FSP + ((64*half) << LFX)}")
        q.i(f"v_cmp_gt_u32 vcc, {n}, v0\nv_lshlrev_b32 {v(vt0)}, {LFX}, v0\nv_cndmask_b32 {v(vt0)}, {v(vOOB)}, {v(vt0)}, vcc")
        q.wvm(("xst", half)); q.i("s_barrier"); flag_store(q, s(sT[0]), vt0)
    def d_setup(o):
        srd(o, (sWD, 1966080))
        o.i(f"s_movk_i32 {s(sT[2])}, 1280")
        for i in range(5):
            divmod_c(o, 64 * i, 6554, 10)
            o.i(f"v_lshlrev_b32 {v(vt0)}, 4, {v(vt0)}\nv_and_b32 {v(vt2)}, 4, {v(vt1)}\nv_lshlrev_b32 {v(vt2)}, 1, {v(vt2)}\nv_and_b32 {v(do+i)}, 8, {v(vt1)}\nv_lshrrev_b32 {v(do+i)}, 1, {v(do+i)}\nv_and_b32 {v(vt1)}, 19, {v(vt1)}\nv_or3_b32 {v(vt1)}, {v(vt1)}, {v(vt2)}, {v(do+i)}")
            o.i(f"v_mad_u32_u24 {v(do+i)}, {v(vt1)}, {s(sT[2])}, {v(vt0)}")
        o.i(f"s_lshl2_add_u32 {s(sT[3])}, {s(sP12)}, {s(sW)}\ns_bfe_u32 {s(sT[0])}, {s(sT[3])}, 0x10003\ns_and_b32 {s(sT[3])}, {s(sT[3])}, 7\ns_lshl1_add_u32 {s(sT[0])}, {s(sXc)}, {s(sT[0])}\ns_mul_i32 {s(sT[0])}, {s(sT[0])}, 3")
        o.i(f"s_mul_i32 {s(sT[1])}, {s(sT[3])}, 160\ns_mul_i32 {s(sT[3])}, {s(sT[3])}, 48\ns_add_u32 {s(sT[3])}, {s(sT[3])}, {s(sT[0])}\ns_mul_i32 {s(sT[0])}, {s(sT[0])}, {32*1280}\ns_add_u32 {s(sDi)}, {s(sT[0])}, {s(sT[1])}")
        o.i(f"s_mul_i32 {s(sDm)}, {s(sW)}, 15360\ns_mul_i32 {s(sDo)}, {s(sT[3])}, 5120\ns_add_u32 {s(sDo)}, {s(sDo)}, {WDF_WS}")
        o.i(f"v_and_b32 {v(vt0)}, 1, {v(vG)}\nv_lshl_add_u32 {v(vt0)}, {v(vt0)}, 2, {v(vr)}\nv_lshrrev_b32 {v(vt1)}, 1, {v(vG)}\nv_lshl_add_u32 {v(vt0)}, {v(vt1)}, 4, {v(vt0)}\nv_mul_u32_u24 {v(vt0)}, 160, {v(vt0)}\nv_lshl_add_u32 {v(vt0)}, {v(vc)}, 3, {v(vt0)}\nv_add_u32 {v(vDr)}, {s(sDm)}, {v(vt0)}")
        o.i(f"s_lshl2_add_u32 {s(sT[2])}, {s(sXc)}, {s(sP12)}\ns_add_u32 {s(sT[2])}, {s(sT[2])}, {FD - 8}\ns_lshl_b32 {s(sT[2])}, {s(sT[2])}, {LF}\nv_add_u32 {v(vEv)}, {s(sT[2])}, {v(vFO)}")
    def d_dma(o):
        for j in range(3):
            for k in range(5):
                o.i(f"s_add_u32 m0, {s(sDm)}, {RA + j*5120 + k*1024}\ns_nop 0")
                o.vm(f"buffer_load_dwordx4 {v(do+k)}, {s(sWD,4)}, {s(sDi)} offen lds", ("dd", j))
            o.i(f"s_add_u32 {s(sDi)}, {s(sDi)}, {32*1280}")
    def d_unit(o):
        for j in range(3):
            o.wvm(("dd", j))
            for dl in range(5):
                for rd in range(2): o.lg(f"ds_read_b64_tr_b16 {v(fr+20*j+4*dl+2*rd,2)}, {v(vDr)} offset:{RA + j*5120 + rd*1280 + dl*32}", ("dt", j, dl))
            for dl in range(5):
                i = 5 * j + dl
                o.wlg(("dt", j, dl)); o.vm(f"buffer_store_dwordx4 {v(fr+4*i,4)}, {v(vL16)}, {s(sWS,4)}, {s(sDo)} offen offset:{1024*(i%4)} sc1")
                if i % 4 == 3: o.i(f"s_add_u32 {s(sDo)}, {s(sDo)}, 4096")
    def w_warm_setup(o, first):
        divmod_c(o, 0, 10923, 6)
        o.i(f"v_min_u32 {v(vt1)}, 9, {v(vt1)}\nv_mul_u32_u24 {v(vt1)}, 3072, {v(vt1)}\nv_lshl_add_u32 {v(vWw)}, {v(vt0)}, 7, {v(vt1)}")
        o.i(f"s_and_b32 {s(sT[1])}, {s(sCB)}, 3\ns_mul_i32 {s(sT[1])}, {s(sT[1])}, 192\ns_mul_i32 {s(sWw)}, {first}, {10*3072}\ns_sub_u32 {s(sWw)}, {s(sWw)}, {s(sT[1])}")
    def w_warm(o, q, add=0):
        if "W" not in CFG.get("warmw", "W"): return
        o.i(f"s_add_u32 {s(sT[0])}, {s(sWq[q])}, {s(sWw)}")
        if add: o.i(f"s_add_u32 {s(sT[0])}, {s(sT[0])}, {add*10*3072}")
        o.vm(f"buffer_load_dword {v(vPollB)}, {v(vWw)}, {s(sWG,4)}, {s(sT[0])} offen")
    def run(o, prog, nw):
        free = {0: True, 1: True}
        for st in prog.split():
            k = int(st[1]) if len(st) > 1 and st[1].isdigit() else None
            if st[0] == "w":
                for j in range(nw): w_warm(o, k, j)
            elif st[0] == "l":
                assert free[k % 2]; free[k % 2] = False; o.add(flat(ws.dma(k, RA if k % 2 == 0 else RB_)))
            elif st[0] == "r":
                o.wvm(("wb", 5*k + 4)); o.i("s_barrier"); o.add(flat(ws.reads(k)))
                free[1 - k % 2] = free[1 - k % 2] or free.get(("p", 1 - k % 2), False); free[("p", 1 - k % 2)] = False
                d = (RB_ - RA) if k % 2 == 0 else (RA - RB_) & 0xffffffff
                if k < 3: o.i(f"v_add_u32 {v(ws.va0)}, {d}, {v(ws.va0)}\nv_add_u32 {v(ws.va2)}, {d}, {v(ws.va2)}")
                o.wlg(("wr", 5*k + 4)); free[("p", k % 2)] = True
            elif st in ("b", "xu", "xf"):
                if st == "b": o.i("s_barrier")
                if st == "xu": x_unit(o, 1)
                if st == "xf": x_flag(o, 1, 1); stamp(o, 3)
                for h in (0, 1): free[h] = free[h] or free.get(("p", h), False); free[("p", h)] = False
            elif st == "xd": x_dma(o, 1, px)
            elif st == "ds": d_setup(o)
            elif st == "dd": assert free[0]; free[0] = False; d_dma(o)
            elif st == "du": d_unit(o); free[("p", 0)] = True
            elif st == "z": o.wvm0()
            elif st[0] == "s": stamp(o, int(st[1:]))
            elif st == "cs":
                for j in range(60): o.i(f"v_mfma_f32_16x16x32_bf16 {v(cs+4*(j%3),4)}, {a(4*j,4)}, {v(ones,4)}, {'0' if j < 3 else v(cs+4*(j%3),4)}")
                for tl in range(3): o.vm(f"buffer_store_dwordx4 {v(cs+4*tl,4)}, {v(vCw)}, {s(sWS,4)}, {s(sCs)} offen offset:{64*tl} sc1")
            else: raise ValueError(st)
    o = S(); px = (PX - 20480, PX)
    o.i(f"s_lshl3_add_u32 {s(sUn)}, {s(sXc)}, {s(sP12)}")
    x_addr(o)
    kernarg_ready(o); epoch_load(o)
    late_x = CFG.get("late_x", 0)
    if not late_x: x_dma(o, 0, px)
    touch(o); lanes(o); x_setup(o, px[0])
    ws.setup(o, vt0, vt1, vt2, sT[2], sT[3]); ws.setup2(o, vt0, vt1, vt2, sT[2], RA)
    o.i(f"s_lshr_b32 {s(sT[4])}, {s(sW)}, 1\ns_lshl1_add_u32 {s(sT[4])}, {s(sP12)}, {s(sT[4])}"); w_warm_setup(o, s(sT[4]))
    o.wlg0(); nonce(o)
    if late_x: x_dma(o, 0, px)
    o.i(f"v_mov_b32 {v(vEv)}, {v(vOOB)}")
    run(o, CFG.get("xpre0", ""), 1)
    stamp(o, 18)
    x_unit(o, 0)
    stamp(o, 1)
    run(o, CFG.get("xpre1", "w2"), 1)
    gemm_setup(o, vt0, vt1, vt2)
    x_flag(o, 1, 0)
    stamp(o, 17)
    run(o, CFG.get("xprog", "xd w3 l0 xu l1 xf r0 b l2 r1 s16 b l3 r2 r3"), 1)
    o.i("s_branch L_ptail")
    wprep = o
    o = S(); o.label("L_dprep")
    kernarg_ready(o); epoch_load(o)
    ws.setup(o, vt0, vt1, vt2, sT[2], sT[3])
    o.i(f"s_and_b32 {s(sT[4])}, {s(sW)}, 2\ns_sub_u32 {s(sT[5])}, {s(sP12)}, 8\ns_lshl2_add_u32 {s(sT[4])}, {s(sT[5])}, {s(sT[4])}"); w_warm_setup(o, s(sT[4]))
    if CFG.get("w0_early", 1): w_warm(o, 0); w_warm(o, 0, 1)
    touch(o); lanes(o); ws.setup2(o, vt0, vt1, vt2, sT[2], RA); d_setup(o); gemm_setup(o, vt0, vt1, vt2)
    R, C = CFG["g1map"]; assert C == 4
    o.i(f"s_and_b32 {s(sT[2])}, {s(sXc)}, {16//R - 1}\ns_cselect_b32 {s(sT[2])}, 0x80000000, 0")
    o.i(f"v_cmp_eq_u32 vcc, 0, {v(vJ)}\nv_or_b32 {v(vt0)}, {s(sT[2])}, {v(vCs)}\ns_add_u32 {s(sT[3])}, {s(sCB)}, {FC}\nv_cndmask_b32 {v(vCw)}, {v(vOOB)}, {v(vt0)}, vcc")
    o.i(f"s_lshl_b32 {s(sT[3])}, {s(sT[3])}, {LF}\ns_or_b32 {s(sT[3])}, {s(sT[3])}, {s(sT[2])}\nv_cmp_eq_u32 vcc, 1, v0\nv_mov_b32 {v(vt0)}, {s(sT[3])}\nv_cndmask_b32 {v(vEv)}, {v(vEv)}, {v(vt0)}, vcc")
    o.wlg0(); nonce(o)
    stamp(o, 18)
    run(o, CFG.get("dprog", "l0 l1 s1 r0 b l2 r1 b l3 r2 b dd r3 s3 cs du"), 2)
    xprep = o
    o = S(); o.label("L_ptail")
    stamp(o, 5)
    f2 = Poll(vPoll, vP2, "0", CFG["nap2"])
    if not CFG["hint"]: o.add(f2.issue())
    icache_walk(o, 1); o.label("L_pgret2")
    if CFG.get("ev_early", 1): o.wvm0(); o.i("s_barrier"); flag_store(o, "0", vEv); o.i(f"v_mov_b32 {v(vEv)}, {v(vOOB)}")
    else: o.i("s_barrier")
    if CFG["hint"]:
        o.i(f"s_add_u32 {s(sT[5])}, {s(sXc)}, {FH}\ns_lshl_b32 {s(sT[5])}, {s(sT[5])}, {LF}\nv_mov_b32 {v(vPA)}, 0")
        o.add(Poll(vPoll, vPA, s(sT[5]), CFG["nap2"]).both()); o.add(f2.issue())
    o.add(f2.check())
    stamp(o, 7)
    o.add(flat(h_dma(0, 0) + warm("h", vPfH, "0") + h_dma(1, 0)))
    o.wvm(("H", 0, 0)); o.i("s_branch L_join")
    VR.release(m0)
    return [head + wprep, xprep, o]

def gemms():
    o = S(); o.label("L_join")
    m0 = VR.mark()
    cs = VR.get(12); sa = VR.get(8); pk = VR.get(12)
    acc = VR.get(48)
    hf = VR.get(32); sg = VR.get(16)
    kc = VR.get(24); tmp = VR.get(16)
    res = VR.get(10)
    nsp = (256 - VR.mark()) // 4; spare = VR.get(4 * nsp); NE = nsp + 4
    assert cs == ones + 4
    def dreg(i): return v(spare + 4 * i, 4) if i < nsp else a(240 + 4 * (i - nsp), 4) if i < NE else a(4 * (i - NE), 4)
    wd = []
    for i in range(60):
        g = [S().vm(f"buffer_load_dwordx4 {dreg(i)}, {v(vL16)}, {s(sWS,4)}, {s(sWd)} offen offset:{1024*(i%4)} sc1", ("D", i // 5))]
        if i % 4 == 3 and i < 59: g.append(S().i(f"s_add_u32 {s(sWd)}, {s(sWd)}, 4096"))
        wd.append(g)

    def hreads(half, b):
        r = []; pr, k = divmod(b, 4)
        for e in range(2):
            st_ = 2 * pr + e
            for rd in range(2):
                g = S()
                if st_ == 16 and rd == 0: g.i(f"v_add_u32 {v(vH+k)}, 0x10000, {v(vH+k)}")
                g.lg(f"ds_read_b64_tr_b16 {v(hf+8*k+4*e+2*rd,2)}, {v(vH+k)} offset:{(st_%16)*4096 + rd*512}", ("h", half, b))
                r.append(g)
        return r
    def g1_mfmas(half, b):
        r = []; pr, k = divmod(b, 4)
        h = lambda e: v(hf + 8 * k + 4 * e, 4)
        for tl, e in ([(tl, e) for tl in range(3) for e in range(2)] if CFG["chain"] else [(tl, e) for e in range(2) for tl in range(3)]):
            g = S(); st_ = 2 * pr + e
            if not r: g.wlg(("h", half, b))
            d = v(acc + 12 * k + 4 * tl, 4)
            g.i(f"v_mfma_f32_16x16x32_bf16 {d}, {a(12*st_+4*tl,4)}, {h(e)}, {'0' if st_ == 0 else d}")
            r.append(g)
        if k == 0:
            es = [e for e in range(2) if 2 * pr + e < 5]
            for e in es: r.append(S().i(f"v_mfma_f32_16x16x32_bf16 {v(sa,4)}, {v(ones,4)}, {h(e)}, {'0' if pr + e == 0 else v(sa,4)}"))
            for e in es: r.append(S().i(f"v_mfma_f32_16x16x32_bf16 {v(sa+4,4)}, {h(e)}, {h(e)}, {'0' if pr + e == 0 else v(sa+4,4)}"))
        return r
    def sg_publish(half):
        q = S()
        q.i(f"v_cndmask_b32 {v(sa+2)}, {v(sa+4)}, {v(sa+5)}, {s(sM[0],2)}\nv_mov_b32 {v(sa+1)}, {v(vN)}\nv_cndmask_b32 {v(sa+2)}, {v(sa+2)}, {v(sa+6)}, {s(sM[1],2)}\nv_mov_b32 {v(sa+3)}, {v(vN+1)}\nv_cndmask_b32 {v(sa+2)}, {v(sa+2)}, {v(sa+7)}, {s(sM[2],2)}")
        q.vm(f"buffer_store_dwordx4 {v(sa,4)}, {v(vSGo)}, {s(sWS,4)}, {s(sSG)} offen sc1")
        return singles(q)
    sgt = [f"buffer_load_dwordx4 {v(sg+4*k,4)}, {v(vL16)}, {s(sWS,4)}, {s(sSG)} offen offset:{1024*k} sc1" for k in range(1)]
    def sg_loads(half): return [S().vm(t, ("sg", half)) for t in sgt]
    def sg_finish(half):
        def chk(q):
            q.i(f"v_xor_b32 {v(sg+1)}, {v(vN)}, {v(sg+1)}")
            for k in range(1, 2): q.i(f"v_bitop3_b32 {v(sg+1)}, {v(sg+2*k+1)}, {v(vN+(k&1))}, {v(sg+1)} bitop3:0xbe")
            q.i(f"v_cmp_ne_u32 vcc, 0, {v(sg+1)}")
        c = S(); spin_check(c, ("sg", half), sgt, chk, CFG["nap"])
        r = singles(S(c[:-3])) + [S(c[-3:])]
        e = S(); q = tmp
        for sw in ("32", "16"):
            e.i(f"v_mov_b32 {v(sg+1)}, {v(sg)}\nv_mov_b32 {v(sg+3)}, {v(sg+2)}\nv_permlane{sw}_swap_b32 {v(sg)}, {v(sg+1)}\nv_permlane{sw}_swap_b32 {v(sg+2)}, {v(sg+3)}")
            e.i(f"v_add_f32 {v(sg)}, {v(sg)}, {v(sg+1)}\nv_add_f32 {v(sg+2)}, {v(sg+2)}, {v(sg+3)}")
        ln_finalize(e, sg, sg + 2, q, q + 3, q + 4)
        e.i(f"v_rcp_f32 {v(q+4)}, {v(q+3)}\nv_mul_f32 {v(q+3)}, {v(q+3)}, {v(q+3)}\nv_mul_f32 {v(q+1)}, {hex(f2u(C0))}, {v(q+4)}\nv_mul_f32 {v(q+2)}, {v(q+4)}, {v(q+4)}")
        e.i(f"v_mul_f32 {v(q+4)}, {hex(f2u(C1))}, {v(q+4)}\nv_mul_f32 {v(q+2)}, {v(q+2)}, {v(q+4)}")
        e.lg(f"ds_write_b128 {v(vSTw)}, {v(q,4)} offset:{4096*half}", ("kw", half))
        if half == 0: e.i(f"s_add_u32 {s(sSG)}, {s(sSG)}, {16*4096}")
        return r + singles(e)
    def kc_reads(half):
        e = S(); e.wlg(("kw", half)); e.i("s_barrier")
        for k in range(6): e.lg(f"ds_read_b128 {v(kc+4*k,4)}, {v(vSTr if k < 4 else vSTr2)} offset:{4096*half + (256*k if k < 4 else 512*(k-4))}", ("kc", half))
        return singles(e)
    def g1_pass(half, events, extras):
        p = S(); fine = CFG.get("fine", -1) == half
        p.wvm(("H", half, 0)); p.i("s_barrier")
        if fine: stamp(p, 23)
        p.add(flat(hreads(half, 0) + hreads(half, 1)))
        slots = []; first = []
        for b in range(40):
            mm = g1_mfmas(half, b); st_ = b // 2
            if b % 2 == 0:
                pre = S()
                if st_ % 4 == 3 and st_ < 19:
                    if fine: stamp(pre, 24 + 2 * (st_ // 4))
                    pre.wvm([("H", half, st_ // 4 + 1)] + events.get(st_, ([], None))[0]); pre.i("s_barrier")
                    if fine: stamp(pre, 25 + 2 * (st_ // 4))
                if st_ in events and events[st_][1] is not None: pre.add(events[st_][1])
                mm[0] = group(mm[0], pre)
                first.append(len(slots))
            slots += attach(mm, hreads(half, b + 2) if b < 38 else [])
        first.append(len(slots))
        p.add(flat(sched(slots, [(gs, first[lo], first[hi + 1] - 1) for gs, lo, hi in extras if gs])))
        sys.stderr.write(f"pass {half}: fillers {sum(ninstr(g) for gs, _, _ in extras for g in gs)} overflow {sched.over}\n")
        return p
    def gelu(items):
        e = S()
        T = lambda k: tmp + 4 * k
        for k, (g, u, q, d) in enumerate(items): e.i(f"v_pk_mul_f32 {v(T(k),2)}, {v(g,2)}, {v(g,2)}")
        for k, (g, u, q, d) in enumerate(items): e.i(f"v_pk_fma_f32 {v(T(k),2)}, {v(T(k),2)}, {v(q+2,2)}, {v(q,2)} op_sel:[0,0,1] op_sel_hi:[1,0,1]")
        for k, (g, u, q, d) in enumerate(items): e.i(f"v_pk_mul_f32 {v(T(k),2)}, {v(T(k),2)}, {v(g,2)}")
        for k, (g, u, q, d) in enumerate(items): e.i(f"v_exp_f32 {v(T(k))}, {v(T(k))}\nv_exp_f32 {v(T(k)+1)}, {v(T(k)+1)}\nv_pk_mul_f32 {v(T(k)+2,2)}, {v(g,2)}, {v(u,2)}")
        for k, (g, u, q, d) in enumerate(items): e.i(f"v_pk_fma_f32 {v(T(k),2)}, {v(T(k),2)}, {v(q+2,2)}, {v(q+2,2)} op_sel:[0,1,1] op_sel_hi:[1,1,1]")
        for k, (g, u, q, d) in enumerate(items): e.i(f"v_rcp_f32 {v(T(k))}, {v(T(k))}\nv_rcp_f32 {v(T(k)+1)}, {v(T(k)+1)}")
        for k, (g, u, q, d) in enumerate(items): e.i(f"v_pk_mul_f32 {v(T(k),2)}, {v(T(k),2)}, {v(T(k)+2,2)}")
        for k, (g, u, q, d) in enumerate(items): e.i(f"v_cvt_pk_bf16_f32 {v(d)}, {v(T(k))}, {v(T(k)+1)}")
        return e
    def g1_epilogue(half):
        e = S()
        e.wlg(("kc", half))
        for k in range(4):
            for j in range(6):
                d = v(acc + 12 * k + 2 * j, 2)
                e.i(f"v_pk_fma_f32 {d}, {v(cs+2*j,2)}, {v(kc+4*k,2)}, {d} op_sel_hi:[1,0,1] neg_lo:[0,1,0] neg_hi:[0,1,0]")
        for p in range(2):
            for r in range(4): e.i(f"v_permlane32_swap_b32 {v(acc+24*p+8+r)}, {v(acc+24*p+20+r)}")
        for p in range(3):
            if p < 2: items = [(acc + 12 * k + 2 * h, acc + 12 * k + 4 + 2 * h, kc + 4 * k, pk + 4 * p + 2 * (k % 2) + h) for k in (2 * p, 2 * p + 1) for h in range(2)]
            else: items = [(acc + 24 * pp + 8 + 2 * h, acc + 24 * pp + 20 + 2 * h, kc + 16 + 4 * pp, pk + 8 + 2 * pp + h) for pp in range(2) for h in range(2)]
            e.add(gelu(items))
            for h in range(2): e.i(f"v_permlane16_swap_b32 {v(pk+4*p+h)}, {v(pk+4*p+2+h)}")
            e.vm(f"buffer_store_dwordx4 {v(pk+4*p,4)}, {v(vA+p)}, {s(sWS,4)}, {s(sAct)} offen offset:{512 if p == 2 else 0} sc1", ("ast", half))
        return singles(e)

    stamp(o, 8)
    ev = flag_store(S(), "0", vEv)
    f2b = Poll(vPoll, vP2, s(sT[5]), CFG["nap2"]); fcd = Poll(vPollB, vPCD, "0")
    need = [(4 * g - 1, 0, h_dma(g, 0)) for g in (2, 3, 4)]
    need.sort(key=lambda t: t[:2])
    sl, sc = CFG["sg_ld"], CFG["sg_chk"]; hba = CFG["hb_a"]; nhi = CFG["needA_hi"]; assert nhi < CFG["cb"]
    hb = [h_dma(g, 1) for g in range(5)]
    csl = [S().vm(f"buffer_load_dwordx4 {v(sg+4,4)}, {v(vCs)}, {s(sWS,4)}, {s(sCs)} offen sc1", "cs")]
    csb = S().wvm("cs")
    for k in range(12): csb.i(f"v_mov_b32_dpp {v(cs+k)}, {v(sg+4+k%4)} row_newbcast:{k//4} row_mask:0xf bank_mask:0xf")
    wmd = []
    for i in range(CFG["nwd"]):
        if "d" in CFG["warm"]: wmd.append(warm("d", vPf, s(sPfD)) + ([S().i(f"s_add_u32 {s(sPfD)}, {s(sPfD)}, {61440 // CFG['nwd']}")] if i < CFG["nwd"] - 1 else []))
    nda = CFG.get("nwd_a", CFG["nwd"])
    wmh = [S().i(f"s_mov_b32 {s(sT[4])}, {16*81920}")] + warm("h", vPfH, s(sT[4]))
    wi = min(CFG["wd_a"], NE)
    o.add(g1_pass(0, {3: ([("hst", 1)], ev)},
                  [(cat([x for _, _, x in need]), 0, nhi), (sg_publish(0), 5, 5),
                   ([fcd.issue()], CFG["pcd"], CFG["pcd"]), ([fcd.check()] + csl + cat(wmd[:nda]) + cat(wd[:wi]), CFG["ccd"], CFG["cd_hi"] if wi or wmd else CFG["ccd"]), (singles(csb), CFG["csb"], min(19, CFG["csb"] + 1)),
                   ([S().i(f"s_movk_i32 {s(sT[5])}, {(F2B-F2A)*FSP}"), f2b.issue()], CFG["pb"], CFG["pb"]), ([f2b.check()] + wmh + cat(hb[:hba]), CFG["cb"], 19),
                   (sg_loads(0), sl, sl), (sg_finish(0), sc, 18), (kc_reads(0), 19, 19)]))
    stamp(o, 9)
    r1 = S()
    for i in range(3):
        r1.i(f"s_add_u32 m0, {s(sResM)}, {1024*i}\ns_add_u32 {s(sT[0])}, {s(sRes)}, {2048*i}")
        r1.vm(f"buffer_load_dwordx4 {v(vResD)}, {s(sWS,4)}, {s(sT[0])} offen sc1 lds", "res")
    hbg = CFG["hb_g"]; n = min(CFG["wd_ga"], NE - wi)
    o.add(flat(spread(g1_epilogue(0), cat(hb[hba:hba + hbg]) + singles(r1) + cat(wd[wi:wi + n]), 0.0, CFG.get("ga_hi", 0.9)))); wi += n
    for k in range(4): o.i(f"v_add_u32 {v(vH+k)}, {(L_R2 - L_R1 - 0x10000) & 0xffffffff}, {v(vH+k)}")
    stamp(o, 10)
    ev = flag_store(S(), s(sF3))
    e2 = singles(S().i(f"s_add_u32 {s(sF3)}, {s(sF3)}, {(F3B-F3A)*FSP}\ns_add_u32 {s(sAct)}, {s(sAct)}, {16*196608}"))
    nb = min(CFG["wd_b"], 60 - wi); exw = []; w0 = wi; wlo = CFG.get("wd_lo", 1)
    for st_ in range(wlo, 20):
        tgt = w0 + round(nb * (st_ + 1 - wlo) / (20 - wlo))
        n = max(0, min(tgt, NE + 6 * (st_ // 2)) - wi); exw.append((cat(wd[wi:wi + n]), st_, st_)); wi += n
    r3 = S()
    for dl in range(5): r3.lg(f"ds_read_b64_tr_b16 {v(res+2*dl,2)}, {v(vRes)} offset:{1024*dl}", "rr")
    f3 = [Poll(vPoll, vP3, s(sP3)), Poll(vPoll, vP3, s(sT[6]), 0)]
    o.add(g1_pass(1, {3: ([("ast", 0), "res"], ev)},
                  [(cat(hb[hba + hbg:]), 0, 3), (cat(wmd[nda:]), 0, CFG.get("wmd_hi", 8)), (e2, 4, 4), (sg_publish(1), 5, 5)] + exw +
                  [(sg_loads(1), sl, sl), (singles(r3), 7, 8), (sg_finish(1), sc, 18), (kc_reads(1), 19, 19),
                   ([S().i(f"s_add_u32 {s(sT[6])}, {s(sP3)}, {(F3B-F3A)*FSP}"), f3[0].issue()], CFG["p3a"], CFG["p3a"]),
                   ([f3[0].check()] + warm("a", vPfA, s(sA2)), CFG["c3a"], CFG["c3a"])]))
    stamp(o, 11)
    af = [hf, acc]; ac2 = [kc, kc + 20]; rt = ones
    def act_loads(u):
        r = []
        for st_ in range(12):
            g = S()
            g.vm(f"buffer_load_dwordx4 {v(af[u%2]+4*st_,4)}, {v(vL16)}, {s(sWS,4)}, {s(sA2)} offen offset:{1024*(st_%4)} sc1", ("a", u, st_))
            if st_ in (3, 7): g.i(f"s_add_u32 {s(sA2)}, {s(sA2)}, 4096")
            if st_ == 11 and u < 3: g.i(f"s_add_u32 {s(sA2)}, {s(sA2)}, {(49152 if u != 1 else 16*196608 - 49152) - 8192}")
            r.append(g)
        return r
    def acc_init(u):
        r = [S().i(f"s_cmp_eq_u32 {s(sW)}, {u}\ns_cselect_b32 {s(sRF)}, 0x10000, 0\ns_cselect_b32 {s(sRF+1)}, {s(sMask)}, 0")]
        e = S()
        for dl in range(5):
            d = ac2[u % 2] + 4 * dl
            for h in range(2): e.i(f"v_mul_u32_u24 {v(d+2*h)}, {s(sRF)}, {v(res+2*dl+h)}\nv_and_b32 {v(d+2*h+1)}, {s(sRF+1)}, {v(res+2*dl+h)}")
        return r + singles(e)
    def g2_mfmas(u):
        r = []
        ch = 2 if CFG["chain"] else 1
        for s0 in range(0, 12, ch):
            for dl in range(5):
                for st_ in range(s0, s0 + ch):
                    g = S()
                    if dl == 0 and st_ == s0: g.wvm([("a", u, s0 + ch - 1), ("D", s0 + ch - 1)])
                    d = v(ac2[u % 2] + 4 * dl, 4)
                    g.i(f"v_mfma_f32_16x16x32_bf16 {d}, {dreg(5*st_+dl)}, {v(af[u%2]+4*st_,4)}, {d}")
                    r.append(g)
        return r
    def reduce_out(u, packed):
        e = S()
        for dl in range(5): e.lg(f"ds_write_b128 {v(vRw)}, {v(ac2[u%2]+4*dl,4)} offset:{dl*2*QS}", ("rw", u))
        w1 = singles(e); e = S()
        e.wlg(("rw", u)); e.i("s_barrier")
        for w_ in range(4):
            for h in range(2): e.lg(f"ds_read_b128 {v(rt+8*w_+4*h,4)}, {v(vRr)} offset:{w_*WV + 256*h}", ("r", u, w_))
        if u < 3: e.i(f"v_add_u32 {v(vRw)}, {UN}, {v(vRw)}\nv_add_u32 {v(vRr)}, {UN}, {v(vRr)}")
        w2 = singles(e); e = S()
        for w_ in range(1, 4):
            e.wlg(("r", u, w_))
            if packed:
                for k in range(4): e.i(f"v_pk_add_f32 {v(rt+2*k,2)}, {v(rt+2*k,2)}, {v(rt+8*w_+2*k,2)}")
            else:
                for k in range(8): e.i(f"v_add_f32 {v(rt+k)}, {v(rt+k)}, {v(rt+8*w_+k)}")
        for k in range(4): e.i(f"v_cvt_pk_bf16_f32 {v(rt+32+k)}, {v(rt+2*k)}, {v(rt+2*k+1)}")
        e.vm(f"buffer_store_dwordx4 {v(rt+32,4)}, {v(vOo)}, {s(sOUT,4)}, {s(sOo)} offen{CFG['out_sc'][u]}")
        if u < 3: e.i(f"s_add_u32 {s(sOo)}, {s(sOo)}, {(32 if u != 1 else 1024 - 32)*1280}")
        return w1, w2, singles(e)
    def red_streams(u):
        w1, w2, w3 = reduce_out(u, False); return [(w1, 4, 18), (w2, 26, 35), (w3, 40, 59)]
    al = act_loads(0); ne = CFG["u0_early"]; n = min(CFG["wd_gb"], 60 - wi)
    o.add(flat(spread(g1_epilogue(1), al[:ne] + cat(wd[wi:wi + n]), 0.0, CFG.get("gb_hi", 0.75)))); wi += n
    stamp(o, 12)
    need = [(k, 1, x) for k, x in enumerate(al) if k >= ne] + [(i // 5, 0, flat(x)) for i, x in enumerate(wd) if i >= wi]
    need.sort(key=lambda t: t[:2]); need = [x for _, _, x in need]
    o.wlg("rr"); o.add(flat(acc_init(0)))
    mm = g2_mfmas(0)
    ev = S(); ev.wvm(("ast", 1)); ev.i("s_barrier"); flag_store(ev, s(sF3))
    k = CFG["f3b_at"]; mm[k] = group(mm[k], ev)
    a1 = act_loads(1); n1 = CFG["u1_in0"]
    mm = sched(mm, [(acc_init(1), 30, 56)])
    o.add(flat(ahead(mm, need + a1[:n1], CFG.get("u0_hi", 0.9))))
    stamp(o, 20)
    mm = g2_mfmas(1)
    k = CFG["p3b_at"]; mm[k] = group(mm[k], f3[1].issue())
    al = act_loads(2) + act_loads(3); w1, w2, w3 = reduce_out(1, False); n0 = CFG["u2_first"]; c3b = CFG["c3b_at"]; nb4 = CFG["b_before"]
    ex = red_streams(0)
    if c3b < 60: ex.append(([f3[1].check()] + al[:nb4], c3b, 59))
    o.add(flat(ahead(sched(mm, ex), a1[n1:], 0.25)))
    stamp(o, 13)
    if c3b >= 60: o.add(f3[1].check()); o.add(flat(al[:nb4]))
    stamp(o, 21)
    o.add(flat(spread(w1 + acc_init(2), al[nb4:n0], 0.0, 1.0)))
    stamp(o, 14)
    mm = sched(g2_mfmas(2), [(w2, 0, 9), (w3, 14, 36), (acc_init(3), 38, 56)]) + sched(g2_mfmas(3), red_streams(2))
    o.add(flat(ahead(mm, al[n0:], CFG.get("u23_hi", 0.6))))
    stamp(o, 22)
    o.add(flat(cat(reduce_out(3, True))))
    o.i(f"s_cmp_lg_u32 s2, 0\ns_cbranch_scc1 L_noep\ns_mov_b32 {s(sT[0])}, {EPOCH}")
    flag_store(o, s(sT[0])); o.label("L_noep")
    if DIAG:
        o.wvm0(); stamp(o, 15)
        o.i(f"s_lshl_b32 {s(sT[0])}, s2, 10\ns_add_u32 {s(sT[0])}, {s(sT[0])}, {DIAGO}\nv_lshlrev_b32 {v(vPA)}, 2, v0")
        o.i(f"buffer_store_dword {v(vStamps)}, {v(vPA)}, {s(sWS,4)}, {s(sT[0])} offen")
        if CFG.get("tdiag"):
            k1, k0, lo, hi = CFG["tdiag"]
            o.i(f"s_cmp_lt_u32 {s(sY)}, {lo}\ns_cbranch_scc1 L_end\ns_cmp_ge_u32 {s(sY)}, {hi}\ns_cbranch_scc1 L_end")
            o.i(f"v_readlane_b32 {s(sT[0])}, {v(vStamps)}, {k1}\nv_readlane_b32 {s(sT[1])}, {v(vStamps)}, {k0}\ns_sub_u32 {s(sT[0])}, {s(sT[0])}, {s(sT[1])}\ns_min_u32 {s(sT[0])}, {s(sT[0])}, 10000\ns_mul_i32 {s(sT[0])}, {s(sT[0])}, 10\ns_mov_b32 {s(sT[2])}, {s(sStamp)}")
            o.label("L_td")
            o.i(f"s_memrealtime {s(sStamp,2)}\ns_waitcnt lgkmcnt(0)\ns_sub_u32 {s(sT[1])}, {s(sStamp)}, {s(sT[2])}\ns_cmp_lt_u32 {s(sT[1])}, {s(sT[0])}\ns_cbranch_scc1 L_td")
    o.label("L_end"); o.i("s_endpgm")
    sys.stderr.write(f"early down-weight fragments: {NE}\n")
    VR.release(m0)
    return o

def layout(lines):
    import subprocess, re
    isins = lambda l: not (l.endswith(":") or l.startswith((";", ".")))
    src = '.amdgcn_target "amdgcn-amd-amdhsa--gfx950"\n.text\n' + f"{NAME}:\n" + "\n".join(l for l in lines if not l.startswith(".p2align")) + "\n" + "".join(f"L_pg{k}:\n" for k in range(1, 5))
    open("_lay.s", "w").write(src)
    subprocess.run(["clang", "-x", "assembler", "-target", "amdgcn-amd-amdhsa", "-mcpu=gfx950", "-c", "_lay.s", "-o", "_lay.o"], check=True)
    dis = subprocess.run(["llvm-objdump", "-d", "-z", "--mcpu=gfx950", "_lay.o"], capture_output=True, text=True).stdout
    enc = [m.group(1).split() for m in re.finditer(r"// [0-9A-F]{12}: ([0-9A-F ]+)", dis)]
    idx = [k for k, l in enumerate(lines) if isins(l)]; assert len(idx) == len(enc)
    size = {k: 4 * len(e) for k, e in zip(idx, enc)}
    def wide(l):
        op = l.split()[0]
        if not op.startswith("v_") or op.startswith(("v_readfirstlane", "v_permlane", "v_dot2c", "v_mov_b64", "v_accvgpr")) or op.endswith(("_e64", "_dpp")): return None
        return op + "_e64" + l[len(op):]
    nxt = {a_: b_ for a_, b_ in zip(idx, idx[1:])}
    out = []; addr = 0; main = None; npg = 0; cand = None; fixed = left = 0; stubs = []
    for k, l in enumerate(lines):
        if l.startswith(".p2align"): addr = 0; cand = None
        if l == "L_main:": main = True
        if l == "L_end:": main = False
        if not isins(l): out.append(l); continue
        if main and CFG["walk"] and addr >= 4096 * (npg + 1):
            npg += 1; out.append(f"L_pg{npg}:"); stubs.append(len(out)); out.append(None); addr += 4
        if size[k] == 8 and addr % 32 == 28 and CFG["align"]:
            if cand is not None: out[cand] = wide(out[cand]); addr += 4; fixed += 1; cand = None
            else:
                run = []; q = k
                while q is not None and len(run) < 5: run.append(q); q = nxt.get(q)
                if all(size[q] == 8 and not lines[q].startswith("v_mfma") for q in run): out.append("s_nop 0"); addr += 4; fixed += 1
                else: left += 1
        if addr % 32 == 0 or (size[k] == 8 and addr % 32 == 28): cand = None
        out.append(l)
        if size[k] == 4 and wide(l): cand = len(out) - 1
        addr += size[k]
    for n, k in enumerate(stubs): out[k] = f"s_cbranch_execz {'L_pg%d' % (n + 5) if n + 5 <= npg else 'L_pgret'}"
    assert npg >= 4 or not CFG["walk"]
    sys.stderr.write(f"pages {npg} straddles fixed {fixed} left {left}\n")
    return out

def build():
    pro = prologue(); conv = role_conv(); preps = role_prep(); gm = gemms()
    lines = resolve(S(pro + conv + gm))
    for p in preps: lines += resolve(p)
    k = lines.index("@@SLOW@@"); lines[k:k + 1] = resolve(slow)
    lines, added = pad_hazards(lines, verbose=CFG.get("verbose", 0))
    lines = layout(lines)
    npf = CFG["npf"]
    hdr = open("cdna_kernels/" + NAME[:-7] + ".s.ref").read().split("\n")
    hdr = [l for l in hdr[:hdr.index('.amdgcn_target "amdgcn-amd-amdhsa--gfx950"')] if "@launch" not in l]
    txt = "\n".join(hdr) + "\n; @launch grid=(256,1,1) block=(256,1,1) lds=163840\n"
    txt += f'.amdgcn_target "amdgcn-amd-amdhsa--gfx950"\n.text\n.globl {NAME}\n.p2align 8\n.type {NAME},@function\n{NAME}:\n'
    txt += "\n".join(l if l.endswith(":") or l.startswith(".") else "    " + l for l in lines) + "\n"
    txt += f"L_codeend:\n.if (L_codeend - L_main) > {(npf-1)*4096}\n.error \"code larger than the prefetched range\"\n.endif\n.fill ({npf*4096} - (L_codeend - L_main)) / 4, 4, 0xbf800000\n"
    txt += f""".section .rodata,"a"
.p2align 6
.amdhsa_kernel {NAME}
  .amdhsa_next_free_vgpr 512
  .amdhsa_next_free_sgpr 102
  .amdhsa_accum_offset 256
  .amdhsa_group_segment_fixed_size 0
  .amdhsa_kernarg_size 104
  .amdhsa_user_sgpr_count 2
  .amdhsa_user_sgpr_kernarg_segment_ptr 1
  .amdhsa_system_sgpr_workgroup_id_x 1
.end_amdhsa_kernel
"""
    sys.stderr.write(f"lines={len(lines)} nop_states_added={added} vmax={VR.max} smax={SR.max}\n")
    return txt

if __name__ == "__main__":
    open(sys.argv[1], "w").write(build())
```
